```python
import torch

def _softmax(x, axis=-1):
    return torch.softmax(x, dim=axis)

def _gelu(x):
    return torch.nn.functional.gelu(x, approximate='tanh')

def _silu(x):
    return torch.nn.functional.silu(x)

def _sigmoid(x):
    return torch.sigmoid(x)

def _layernorm(x, axis=-1, eps=1e-05):
    m = x.mean(dim=axis, keepdim=True)
    v = x.var(dim=axis, keepdim=True, unbiased=False)
    return (x - m) / torch.sqrt(v + eps)

def _scatter_add(tgt, idx, src, axis=0):
    return tgt.clone().index_add_(axis, idx, src)

def _segment_sum(src, seg, n):
    out = torch.zeros((n,) + src.shape[1:], dtype=src.dtype)
    return out.index_add_(0, seg, src)

def _pad(x, pw):
    flat = tuple((v for pair in reversed(pw) for v in pair))
    return torch.nn.functional.pad(x, flat)
kernel_name = 'parallel_sum__grouped_kv_mqa__mixer_gmlp__prompt'

def setup_inputs():

    _w = lambda a: (lambda t: t.to(torch.bfloat16) if t.is_floating_point() else t)(torch.as_tensor(a))

    def _A_setup():
        B, S, D, H = (1, 2048, 640, 32)
        Dh = D // H
        return {'x': _w((lambda *s: torch.randn(*s, dtype=torch.bfloat16) * 0.05)(B, S, D)), 'wq': _w((lambda *s: torch.randn(*s, dtype=torch.bfloat16) * 0.2)(D, H * Dh)), 'wk': _w((lambda *s: torch.randn(*s, dtype=torch.bfloat16) * 0.2)(D, Dh)), 'wv': _w((lambda *s: torch.randn(*s, dtype=torch.bfloat16) * 0.1)(D, Dh)), 'wo': _w((lambda *s: torch.randn(*s, dtype=torch.bfloat16) * 0.1)(H * Dh, D))}
    _A_in = _A_setup()

    def _B_setup():
        B, S, D, F = (1, 2048, 640, 1728)
        Fh = F // 2
        return {'x': _w((lambda *s: torch.randn(*s, dtype=torch.bfloat16) * 0.05)(B, S, D)), 'w_in': _w((lambda *s: torch.randn(*s, dtype=torch.bfloat16) * 0.8)(D, 2 * Fh)), 'w_sp': _w(0.01 * (lambda *s: torch.randn(*s, dtype=torch.bfloat16) * 0.8)(S, S)), 'b_sp': _w(1.0 + 0.01 * (lambda *s: torch.randn(*s, dtype=torch.bfloat16) * 0.1)(S)), 'w_out': _w((lambda *s: torch.randn(*s, dtype=torch.bfloat16) * 0.1)(Fh, D))}
    _B_in = _B_setup()
    return {'A_x': _A_in['x'], 'A_wq': _A_in['wq'], 'A_wk': _A_in['wk'], 'A_wv': _A_in['wv'], 'A_wo': _A_in['wo'], 'B_x': _B_in['x'], 'B_w_in': _B_in['w_in'], 'B_w_sp': _B_in['w_sp'], 'B_b_sp': _B_in['b_sp'], 'B_w_out': _B_in['w_out']}

def reference(A_x, A_wq, A_wk, A_wv, A_wo, B_x, B_w_in, B_w_sp, B_b_sp, B_w_out):

    def _A_ref(x, wq, wk, wv, wo):
        B, S, D = x.shape
        H = 32
        Dh = D // H
        q = (lambda x, *d: x.permute(*d))((x @ wq).reshape(B, S, H, Dh), 0, 2, 1, 3)
        k = x @ wk
        v = x @ wv
        scores = torch.einsum('bhqd,bkd->bhqk', q, k) * Dh ** (-0.5)
        p = _softmax(scores, axis=-1)
        o = torch.einsum('bhqk,bkd->bhqd', p, v)
        return (lambda x, *d: x.permute(*d))(o, 0, 2, 1, 3).reshape(B, S, H * Dh) @ wo

    def _B_ref(x, w_in, w_sp, b_sp, w_out):
        B, S, D = x.shape
        F = w_in.shape[-1]
        Fh = F // 2
        z = _gelu(torch.einsum('bsd,df->bsf', x, w_in))
        z1 = z[..., :Fh].clone()
        z2 = _layernorm(z[..., Fh:], axis=-1)
        g = torch.einsum('ts,bsf->btf', w_sp, z2) + b_sp[None, :, None]
        return torch.einsum('bsf,fd->bsd', z1 * g, w_out)
    x = A_x
    xn = _layernorm(x, axis=-1)
    return x + _A_ref(xn, A_wq, A_wk, A_wv, A_wo) + _B_ref(xn, B_w_in, B_w_sp, B_b_sp, B_w_out)
```

```python
import re

class Asm:
    def __init__(self):
        self.lines = []
    def __call__(self, s):
        for l in s.split("\n"):
            l = l.strip()
            if l:
                self.lines.append("  " + l)
    def label(self, l):
        self.lines.append(l + ":")
    def raw(self, s):
        self.lines.append(s)
    def text(self):
        return "\n".join(self.lines) + "\n"

def vr(a, n=1):
    return f"v{a}" if n == 1 else f"v[{a}:{a+n-1}]"
def ar(a, n=1):
    return f"a{a}" if n == 1 else f"a[{a}:{a+n-1}]"
def sr(a, n=1):
    return f"s{a}" if n == 1 else f"s[{a}:{a+n-1}]"

_REG = re.compile(r"^(-|\|)?(abs\()?([vas])(\d+|\[(\d+):(\d+)\])")
def regs_of(op):
    op = op.strip()
    if op in ("vcc",): return {("s", 106), ("s", 107)}
    if op == "exec": return {("s", 126), ("s", 127)}
    if op == "m0": return {("s", 124)}
    m = _REG.match(op)
    if not m: return set()
    k = m.group(3)
    if m.group(5) is not None:
        return {(k, i) for i in range(int(m.group(5)), int(m.group(6)) + 1)}
    return {(k, int(m.group(4)))}

TRANS = ("v_exp_f32", "v_rcp_f32", "v_rsq_f32", "v_log_f32", "v_sqrt_f32")
def parse(line):
    line = line.split(";")[0].strip()
    if not line or line.endswith(":") or line.startswith("."): return None
    parts = line.split(None, 1)
    op = parts[0]
    ops = []
    if len(parts) > 1:
        depth = 0; cur = ""
        for ch in parts[1]:
            if ch == "[": depth += 1
            if ch == "]": depth -= 1
            if ch == "," and depth == 0:
                ops.append(cur); cur = ""
            else: cur += ch
        ops.append(cur)
        ops = [o.strip().split(" ")[0] for o in ops]
    d = dict(op=op, w=set(), r=set(), kind="other", line=line, passes=0, srcC=set(), srcAB=set())
    if op.startswith("v_mfma"):
        d["kind"] = "mfma"
        d["w"] = regs_of(ops[0]); d["srcAB"] = regs_of(ops[1]) | regs_of(ops[2]); d["srcC"] = regs_of(ops[3])
        d["r"] = d["srcAB"] | d["srcC"]
        d["passes"] = 8 if "32x32" in op else 4
    elif op.startswith("v_cmp"):
        d["kind"] = "valu"; d["w"] = regs_of(ops[0]); d["r"] = set().union(*[regs_of(o) for o in ops[1:]])
    elif op.startswith("v_permlane"):
        d["kind"] = "valu"; d["w"] = regs_of(ops[0]) | regs_of(ops[1]); d["r"] = set(d["w"])
    elif op.startswith("v_"):
        d["kind"] = "valu"; d["w"] = regs_of(ops[0]); d["r"] = set().union(*[regs_of(o) for o in ops[1:]]) if len(ops) > 1 else set()
        if op.startswith(("v_fmac", "v_dot2c")): d["r"] |= d["w"]
        if op.startswith("v_cndmask") and len(ops) == 3: d["r"] |= regs_of("vcc")
        if "_co_" in op: d["w"] |= regs_of(ops[1])
    elif op.startswith("ds_read") or op.startswith("ds_bpermute"):
        d["kind"] = "ds"; d["w"] = regs_of(ops[0]); d["r"] = set().union(*[regs_of(o) for o in ops[1:]])
    elif op.startswith("ds_"):
        d["kind"] = "ds"; d["r"] = set().union(*[regs_of(o) for o in ops])
    elif op.startswith(("buffer_load", "global_load")):
        d["kind"] = "vmem"
        if " lds" in line or "load_lds" in op:
            d["r"] = set().union(*[regs_of(o) for o in ops]) | regs_of("m0"); d["dma"] = True
        else:
            d["w"] = regs_of(ops[0]); d["r"] = set().union(*[regs_of(o) for o in ops[1:]])
    elif op.startswith(("buffer_store", "global_store", "buffer_atomic", "global_atomic")):
        d["kind"] = "vmem"; d["r"] = set().union(*[regs_of(o) for o in ops])
        if "x4" in op or "x3" in op:
            d["wide"] = regs_of(ops[0]) if op.startswith("buffer") else regs_of(ops[1])
    elif op.startswith("s_"):
        d["kind"] = "salu"
        if op.startswith(("s_cmp", "s_cbranch", "s_branch", "s_waitcnt", "s_barrier", "s_nop", "s_sleep", "s_setprio", "s_endpgm")):
            d["r"] = set().union(*[regs_of(o) for o in ops]) if ops else set()
        else:
            d["w"] = regs_of(ops[0]); d["r"] = set().union(*[regs_of(o) for o in ops[1:]]) if len(ops) > 1 else set()
            if "saveexec" in op: d["w"] |= regs_of("exec")
    d["ws"] = 1
    if op == "s_nop": d["ws"] = int(ops[0], 0) + 1
    return d

def check_linear(lines, name=""):
    ins = [p for p in (parse(l) for l in lines) if p]
    probs = []
    MF_V = {4: 8, 8: 12}; MF_C = {4: 6, 8: 10}; MF_WAR = {4: 3, 8: 7}
    for i, c in enumerate(ins):
        dist = 0
        for j in range(i - 1, max(-1, i - 25), -1):
            p = ins[j]
            need = 0
            vw = {x for x in p["w"] if x[0] in "va"}
            sw = {x for x in p["w"] if x[0] == "s"}
            if p["kind"] == "mfma":
                if c["kind"] == "mfma":
                    if c["srcAB"] & vw: need = max(need, MF_V[p["passes"]])
                    if c["srcC"] & vw:
                        if not (c["srcC"] == p["w"] and c["passes"] == p["passes"]): need = max(need, MF_C[p["passes"]])
                    elif c["w"] & vw: need = max(need, MF_C[p["passes"]])
                elif (c["r"] | c["w"]) & vw: need = max(need, MF_V[p["passes"]])
                if c["kind"] in ("valu",) and c["w"] & p["srcC"]: need = max(need, MF_WAR[p["passes"]])
            if p["kind"] == "valu":
                if c["kind"] == "mfma" and c["r"] & vw: need = max(need, 2)
                if c["op"].startswith("v_permlane") and c["r"] & vw: need = max(need, 2)
                if c["op"].startswith(("v_readfirstlane", "v_readlane")) and c["r"] & vw: need = max(need, 1)
                if p["op"].startswith(TRANS) and c["kind"] == "valu" and not c["op"].startswith(TRANS) and c["r"] & vw: need = max(need, 1)
                if p["op"].startswith(TRANS) and c["kind"] == "valu" and c["op"].startswith(TRANS) and c["r"] & vw: need = max(need, 1)
                if p["op"].startswith("v_dot2") and c["kind"] in ("valu", "mfma", "ds", "vmem") and (c["r"] | c["w"]) & vw:
                    if not (c["op"] == p["op"]): need = max(need, 3)
                if sw:
                    if c["kind"] == "vmem" and c["r"] & sw: need = max(need, 5)
                    if c["kind"] == "valu" and c["r"] & sw: need = max(need, 4 if c["op"].startswith(("v_readlane", "v_writelane")) else 2)
                    if c["kind"] == "salu" and c["r"] & sw: need = max(need, 1)
            if p["kind"] == "salu" and ("s", 124) in p["w"] and c.get("dma"): need = max(need, 1)
            if p.get("wide") and c["w"] & p["wide"]: need = max(need, 2)
            if need > dist:
                probs.append(f"{name}: need {need} have {dist}: [{p['line']}] -> [{c['line']}]")
            dist += p["ws"]
    return probs
```

```python
import math, struct
from asmlib import *

NAME = "parallel_sum__grouped_kv_mqa__mixer_gmlp__prompt"
WS_Q  = 0
WS_Z1 = 0x280000
WS_Z2 = 0x5E0000
WS_KV = 0x960000
WS_OH = 0x9A0000
WS_WT = 0xF80000
WS_ST = 0x1160000
WS_FL = 0x11A0000
WS_ZR = 0x11C0000
WS_END = WS_ZR + 0x380000
OH_TG = 96256
KVREC = 3584

def f2u(f):
    return struct.unpack("<I", struct.pack("<f", f))[0]
def hx(f):
    return "0x%08x" % f2u(f)

LOG2E = math.log2(math.e)
QSCALE = LOG2E / math.sqrt(20.0)
GC0 = -2.0 * math.sqrt(2.0 / math.pi) * LOG2E
GC1 = GC0 * 0.044715

def kernel_header(a, name):
    a.raw(f".globl {name}")
    a.raw(".p2align 8")
    a.raw(f".type {name},@function")
    a.label(name)

def kernel_desc(name, vgpr, sgpr, accum):
    return f""".p2align 6
.amdhsa_kernel {name}
  .amdhsa_next_free_vgpr {vgpr}
  .amdhsa_next_free_sgpr {sgpr}
  .amdhsa_accum_offset {accum}
  .amdhsa_group_segment_fixed_size 0
  .amdhsa_kernarg_size 104
  .amdhsa_user_sgpr_count 2
  .amdhsa_user_sgpr_kernarg_segment_ptr 1
  .amdhsa_system_sgpr_workgroup_id_x 1
.end_amdhsa_kernel
"""

def srd(a, d, base, size):
    a(f"s_mov_b32 s{d}, s{base}")
    a(f"s_mov_b32 s{d+1}, s{base+1}")
    a(f"s_mov_b32 s{d+2}, {size}")
    a(f"s_mov_b32 s{d+3}, 0x20000")

import os
STAMP = bool(os.environ.get("STAMP"))
WS_STAMP = 0x2000000
def stamp(a, i):
    if STAMP:
        a(f"s_memtime s[{64+2*i}:{65+2*i}]")
        a("s_waitcnt lgkmcnt(0)")
def stamp_flush(a, n, kidx, swave, ws_pair, nwaves, vt):
    if not STAMP: return
    a(f"s_memrealtime s[{64+2*n}:{65+2*n}]")
    a("s_waitcnt lgkmcnt(0)")
    a(f"s_mul_i32 s100, s2, {nwaves}")
    a(f"s_add_u32 s100, s100, s{swave}")
    a("s_lshl_b32 s100, s100, 6")
    a(f"s_add_u32 s100, s100, {WS_STAMP + kidx*0x100000}")
    a("s_mov_b64 exec, 1")
    a(f"v_mov_b32 v{vt}, s100")
    for i in range(n + 1):
        a(f"v_mov_b32 v{vt+1}, s{64+2*i}")
        a(f"global_store_dword v{vt}, v{vt+1}, s[{ws_pair}:{ws_pair+1}] offset:{4*i}")

def stamp_rt(a, i):
    if STAMP:
        a(f"s_memrealtime s[{64+2*i}:{65+2*i}]")
        a("s_waitcnt lgkmcnt(0)")

def code_prefetch(a, label, kb_per_wave, vtmp, vwave, vlane, sp=96):
    a(f"s_getpc_b64 s[{sp}:{sp+1}]")
    a.label(f"{label}_pc")
    a(f"s_sub_u32 s{sp}, s{sp}, {label}_pc-{label}")
    a(f"s_subb_u32 s{sp+1}, s{sp+1}, 0")
    a(f"v_lshlrev_b32 v{vtmp}, 7, v{vlane}")
    a(f"v_lshl_add_u32 v{vtmp}, v{vwave}, 13, v{vtmp}")
    a(f"v_min_u32 v{vtmp}, Lcode_end-{label}-4, v{vtmp}")
    a(f"global_load_dword v{vtmp+1}, v{vtmp}, s[{sp}:{sp+1}]")
```

```python
from common import *

EXP = os.environ.get('EXP', '').split(',')
SLOT = 36864
SCR = 147456
CSR = SCR
STR = SCR + 2560
VTR = SCR + 4096
K1_LDS = VTR + 8192

sX, sA, sB, sC, sW, sPF = 20, 24, 28, 32, 36, 24
sWAVE, sRB, sG, sW4, sROLE, sTG, sLOOP, sSLOT = 40, 41, 42, 43, 44, 45, 46, 47
sXO, sAO, sBO, sCO, sAS, sBS, sCS_, sXD, sWD = 48, 49, 50, 51, 52, 53, 54, 55, 56
sT0, sT1, sT2, sT3 = 57, 58, 59, 60
sROT = 61
sHI = 62
sTY0, sTY1, sB0 = 48, 49, 50
sM = 52
vLANE = 1
vXA = 8; vWA = 12
vL16, vZ2O = 16, 17
vR = 18
vGC = 20
vN = 22
vSEL = 24
vMU = 28
BUF = (32, 44)
vCS = 56
ACC = (64, 80)
vT = 96
vD = 112
vSA = 120
vSQ = 122
vU = 32
vS1, vS2, vS3, vS4 = 124, 125, 126, 127
T_Q, T_Z1, T_Z2 = 0, 1, 2

def reads(a, s, nb):
    if 'xrd' in EXP: return
    buf = BUF[s & 1]
    a(f"ds_read_b128 {vr(buf,4)}, v{vXA+s}")
    for bi in range(nb):
        for h in range(2):
            a(f"ds_read_b64_tr_b16 {vr(buf+4+4*bi+2*h,2)}, v{vWA+s} offset:{bi*4096 + h*256}")

def mfmas(a, s, nb, stats):
    buf = BUF[s & 1]
    for bi in range(nb):
        if 'xmf' not in EXP: a(f"v_mfma_f32_32x32x16_bf16 {vr(ACC[bi],16)}, {vr(buf+4+4*bi,4)}, {vr(buf,4)}, {vr(ACC[bi],16)}")
        if s == 0 and 'xcs' not in EXP:
            a(f"v_mfma_f32_16x16x32_bf16 {vr(vCS+4*bi,4)}, {vr(buf+4+4*bi,4)}, {vr(vSEL,4)}, {vr(vCS+4*bi,4)}")
    if stats and 'xst' not in EXP:
        for r in range(4):
            t = vT + 2*(r & 1)
            a(f"v_lshlrev_b32 v{t}, 16, v{buf+r}")
            a(f"v_and_b32 v{t+1}, v{vT+4}, v{buf+r}")
            a(f"v_add_f32 v{vS1}, v{vS1}, v{t}")
            a(f"v_fmac_f32 v{vS2}, v{t}, v{t}")
            a(f"v_add_f32 v{vS3}, v{vS3}, v{t+1}")
            a(f"v_fmac_f32 v{vS4}, v{t+1}, v{t+1}")

def compute_loop(a, tag, nb, stats):
    nr = 1 + 2*nb
    a("s_barrier")
    stamp(a, 1)
    reads(a, 0, nb)
    a(f"s_mov_b32 s{sLOOP}, 0")
    a.raw(".p2align 6")
    a.label(f"L1_loop{tag}")
    st = len(a.lines)
    for s in range(3):
        reads(a, s+1, nb)
        if s == 2:
            a(f"s_add_u32 s{sLOOP}, s{sLOOP}, 1")
            a(f"s_and_b32 s{sT0}, s{sLOOP}, 3")
            a(f"s_cselect_b32 s{sT0}, s{sT1}, s{sT2}")
            for i in range(4):
                a(f"v_add_u32 v{vXA+i}, s{sT0}, v{vXA+i}")
                a(f"v_add_u32 v{vWA+i}, s{sT0}, v{vWA+i}")
        a(f"s_waitcnt lgkmcnt({nr})")
        mfmas(a, s, nb, stats)
    a("s_waitcnt lgkmcnt(0)")
    a("s_barrier")
    reads(a, 0, nb)
    mfmas(a, 3, nb, stats)
    a(f"s_cmp_lt_u32 s{sLOOP}, 10")
    a(f"s_cbranch_scc1 L1_loop{tag}")
    for p in check_linear(a.lines[st:] + a.lines[st:], "k1 loop x2"): print("HAZARD", p)
    a("s_waitcnt lgkmcnt(0)")
    stamp(a, 2)

def write_colsum(a, nb):
    a(f"v_and_b32 v{vT}, 1, v{vLANE}")
    a(f"v_lshlrev_b32 v{vT}, 8, v{vT}")
    a(f"v_lshrrev_b32 v{vT+1}, 4, v{vLANE}")
    a(f"v_lshl_add_u32 v{vT}, v{vT+1}, 6, v{vT}")
    a(f"s_lshl_b32 s{sT0}, s{sW4}, 2")
    a(f"s_lshl_b32 s{sT3}, s{sROLE}, 10")
    a(f"s_add_u32 s{sT3}, s{sT3}, {CSR}")
    a(f"s_add_u32 s{sT0}, s{sT0}, s{sT3}")
    a(f"v_add_u32 v{vT}, s{sT0}, v{vT}")
    n = 4 * nb
    for k in range(n): a(f"v_cvt_pk_bf16_f32 v{vT+2+k}, v{vCS+k}, v{vCS+k}")
    for k in range(n): a(f"v_lshlrev_b32 v{vT+2+k}, 16, v{vT+2+k}")
    for k in range(n): a(f"v_sub_f32 v{vT+2+k}, v{vCS+k}, v{vT+2+k}")
    for k in range(n): a(f"v_cvt_pk_bf16_f32 v{vT+2+k}, v{vCS+k}, v{vT+2+k}")
    a("s_mov_b32 exec_lo, 0x00030003")
    a("s_mov_b32 exec_hi, 0x00030003")
    for bi in range(nb):
        for r in range(4):
            a(f"ds_write_b32 v{vT}, v{vT+2+4*bi+r} offset:{bi*512 + r*16}")
    a("s_mov_b64 exec, -1")

def stats_addr(a, v):
    a(f"v_and_b32 v{v}, 31, v{vLANE}")
    a(f"v_lshlrev_b32 v{v}, 3, v{v}")
    a(f"s_lshl_b32 s{sT0}, s{sW4}, 8")
    a(f"s_add_u32 s{sT0}, s{sT0}, {STR}")
    a(f"v_add_u32 v{v}, s{sT0}, v{v}")

def correction(a, nb, have_stats):
    a(f"v_and_b32 v{vT}, 0x1f0, v{vL16}")
    a(f"v_add_u32 v{vT}, s{sT3}, v{vT}")
    if not have_stats:
        stats_addr(a, vT+1)
    a("s_waitcnt lgkmcnt(0)")
    a("s_barrier")
    if not have_stats:
        a(f"ds_read_b64 {vr(vT+2,2)}, v{vT+1}")
    for bi in range(nb):
        a(f"ds_read_b128 {vr(BUF[0]+4*bi,4)}, v{vT} offset:{bi*512}")
    if not have_stats:
        a(f"s_waitcnt lgkmcnt({nb})")
    a(f"v_cndmask_b32 v{vMU}, v{vT+2}, 0, {sr(sHI,2)}")
    a(f"v_mov_b32 v{vR}, v{vT+3}")
    for i in range(1, 4):
        a(f"v_mov_b32 v{vMU+i}, v{vMU}")
    a(f"v_mul_f32 v{vR+1}, {hx(QSCALE)}, v{vT+3}")
    a("s_waitcnt lgkmcnt(0)")
    for bi in reversed(range(nb)):
        a(f"v_mfma_f32_32x32x16_bf16 {vr(ACC[bi],16)}, {vr(BUF[0]+4*bi,4)}, {vr(vMU,4)}, {vr(ACC[bi],16)}")
    a("s_nop 11")
    stamp(a, 3)

def scale(a, acc, hi):
    sel = "op_sel:[0,1] op_sel_hi:[1,1]" if hi else "op_sel_hi:[1,0]"
    for i in range(8):
        a(f"v_pk_mul_f32 {vr(acc+2*i,2)}, {vr(acc+2*i,2)}, {vr(vR,2)} {sel}")

def gelu(a, acc):
    scale(a, acc, False)
    for i in range(8):
        a(f"v_pk_mul_f32 {vr(vT+2*i,2)}, {vr(acc+2*i,2)}, {vr(acc+2*i,2)}")
    for i in range(8):
        a(f"v_pk_fma_f32 {vr(vT+2*i,2)}, {vr(vT+2*i,2)}, {vr(vGC,2)}, {vr(vGC,2)} op_sel:[0,0,1] op_sel_hi:[1,0,1]")
    for i in range(8):
        a(f"v_pk_mul_f32 {vr(vT+2*i,2)}, {vr(vT+2*i,2)}, {vr(acc+2*i,2)}")
    for i in range(16):
        a(f"v_exp_f32 v{vT+i}, v{vT+i}")
    for i in range(8):
        a(f"v_pk_add_f32 {vr(vT+2*i,2)}, {vr(vT+2*i,2)}, 1.0 op_sel_hi:[1,0]")
    for i in range(16):
        a(f"v_rcp_f32 v{vT+i}, v{vT+i}")
    for i in range(8):
        a(f"v_pk_mul_f32 {vr(acc+2*i,2)}, {vr(acc+2*i,2)}, {vr(vT+2*i,2)}")

def pack(a, acc, d=vD):
    for i in range(8):
        a(f"v_cvt_pk_bf16_f32 v{d+i}, v{acc+2*i}, v{acc+2*i+1}")

def swaps(a, d=vD, n=2):
    a("s_nop 1")
    for i in range(n):
        a(f"v_permlane32_swap_b32 v{d+4*i}, v{d+4*i+2}")
        a(f"v_permlane32_swap_b32 v{d+4*i+1}, v{d+4*i+3}")

def store_lin(a, soff, d=vD):
    a(f"buffer_store_dwordx4 {vr(d,4)}, v{vL16}, {sr(sW,4)}, s{soff} offen")
    a(f"buffer_store_dwordx4 {vr(d+4,4)}, v{vL16}, {sr(sW,4)}, s{soff} offen offset:1024")
    a("s_nop 1")

def epi_q(a, acc, sblk):
    scale(a, acc, True)
    pack(a, acc)
    swaps(a)
    a(f"s_mul_i32 s{sT0}, s{sTG}, 40960")
    a(f"s_lshl_b32 s{sT1}, s{sblk}, 11")
    a(f"s_add_u32 s{sT0}, s{sT0}, s{sT1}")
    if WS_Q: a(f"s_add_u32 s{sT0}, s{sT0}, {WS_Q}")
    store_lin(a, sT0)

def store_z1(a, acc, sblk):
    pack(a, acc)
    a(f"s_mul_i32 s{sT0}, s{sTG}, {27*2048}")
    a(f"s_lshl_b32 s{sT1}, s{sblk}, 11")
    a(f"s_add_u32 s{sT0}, s{sT0}, s{sT1}")
    a(f"s_add_u32 s{sT0}, s{sT0}, {WS_Z1}")
    store_lin(a, sT0)

def z2stats(a, acc):
    for i in range(8):
        a(f"v_pk_add_f32 {vr(vSA,2)}, {vr(vSA,2)}, {vr(acc+2*i,2)}")
        a(f"v_pk_fma_f32 {vr(vSQ,2)}, {vr(acc+2*i,2)}, {vr(acc+2*i,2)}, {vr(vSQ,2)}")

def store_z2(a, acc, sblk):
    pack(a, acc)
    a(f"s_lshl_b32 s{sT0}, s{sblk}, 17")
    a(f"s_lshl_b32 s{sT1}, s{sTG}, 11")
    a(f"s_add_u32 s{sT0}, s{sT0}, s{sT1}")
    a(f"s_add_u32 s{sT0}, s{sT0}, {WS_ZR - 27*131072}")
    store_lin(a, sT0)

def epi_c(a):
    acc = ACC[0]
    u = vT
    a(f"s_cmp_eq_u32 s{sG}, 0")
    a(f"s_cbranch_scc1 L1_ck")
    a(f"s_cmp_eq_u32 s{sG}, 1")
    a(f"s_cbranch_scc1 L1_cv")
    a(f"s_add_u32 s{sB0}, s{sG}, 8")
    a(f"s_cmp_lt_u32 s{sG}, 10")
    a(f"s_cbranch_scc1 L1_q0")
    a(f"s_add_u32 s{sB0}, s{sG}, 4")
    a(f"s_cmp_lt_u32 s{sG}, 14")
    a(f"s_cbranch_scc1 L1_fin")
    a(f"s_branch L1_q0")
    a.label(f"L1_ck")
    scale(a, acc, False)
    pack(a, acc)
    a(f"v_mov_b32 v{u}, 0x3f803f80")
    a(f"v_mov_b32 v{u+1}, 0x00003f80")
    a(f"v_cndmask_b32 v{vD+4}, v{vD+4}, v{u}, {sr(sHI,2)}")
    a(f"v_cndmask_b32 v{vD+5}, v{vD+5}, v{u+1}, {sr(sHI,2)}")
    swaps(a, n=1)
    a(f"s_mul_i32 s{sT0}, s{sTG}, {KVREC}")
    a(f"s_add_u32 s{sT0}, s{sT0}, {WS_KV}")
    a(f"v_lshlrev_b32 v{u+2}, 3, v{vLANE}")
    a(f"buffer_store_dwordx4 {vr(vD,4)}, v{vL16}, {sr(sW,4)}, s{sT0} offen")
    a(f"buffer_store_dwordx2 {vr(vD+4,2)}, v{u+2}, {sr(sW,4)}, s{sT0} offen offset:3072")
    a(f"s_branch L1_fin")
    a.label(f"L1_cv")
    scale(a, acc, False)
    pack(a, acc)
    a(f"v_mov_b32 v{u}, 0x00003f80")
    a(f"v_cndmask_b32 v{vD+4}, v{vD+4}, v{u}, {sr(sHI,2)}")
    a(f"v_cndmask_b32 v{vD+5}, v{vD+5}, 0, {sr(sHI,2)}")
    a(f"v_cndmask_b32 v{vD+6}, v{u}, 0, {sr(sHI,2)}")
    a(f"v_mov_b32 v{vD+7}, 0")
    a(f"v_and_b32 v{u+1}, 31, v{vLANE}")
    a(f"v_lshlrev_b32 v{u+1}, 6, v{u+1}")
    a(f"v_lshrrev_b32 v{u+2}, 5, v{vLANE}")
    a(f"v_lshl_add_u32 v{u+1}, v{u+2}, 3, v{u+1}")
    a(f"s_lshl_b32 s{sT0}, s{sW4}, 11")
    a(f"s_add_u32 s{sT0}, s{sT0}, {VTR}")
    a(f"v_add_u32 v{u+1}, s{sT0}, v{u+1}")
    for k in range(4):
        a(f"ds_write_b64 v{u+1}, {vr(vD+2*k,2)} offset:{16*k}")
    a(f"v_bfe_u32 v{u+3}, v{vLANE}, 2, 2")
    a(f"v_lshl_add_u32 v{u+3}, v{u+2}, 2, v{u+3}")
    a(f"v_lshlrev_b32 v{u+3}, 6, v{u+3}")
    a(f"v_bfe_u32 v{u+4}, v{vLANE}, 4, 1")
    a(f"v_lshl_add_u32 v{u+3}, v{u+4}, 5, v{u+3}")
    a(f"v_and_b32 v{u+4}, 3, v{vLANE}")
    a(f"v_lshl_add_u32 v{u+3}, v{u+4}, 3, v{u+3}")
    a(f"v_add_u32 v{u+3}, s{sT0}, v{u+3}")
    a("s_waitcnt lgkmcnt(0)")
    for k in range(4):
        a(f"ds_read_b64_tr_b16 {vr(vD+2*k,2)}, v{u+3} offset:{512*k}")
    a(f"s_mul_i32 s{sT0}, s{sTG}, {KVREC}")
    a(f"s_add_u32 s{sT0}, s{sT0}, {WS_KV + 1024}")
    a("s_waitcnt lgkmcnt(0)")
    store_lin(a, sT0)
    a(f"s_branch L1_fin")

zX0, zX1, zA, zB, zC, zPF, zZERO, zNL = 8, 9, 10, 11, 12, 13, 14, 16

def z_issue(a):
    a0 = a
    FL = os.environ.get("DMAF", "")
    class A2:
        def __call__(self, t): a0(t.replace(" lds", f" {FL} lds") if FL else t)
        def label(self, l): a0.label(l)
    a = A2()
    a(f"s_add_u32 s{sT0}, s{sXD}, s{sSLOT}")
    a(f"s_add_u32 s{sT1}, s{sWD}, s{sSLOT}")
    a(f"s_mov_b32 m0, s{sT0}")
    a(f"s_add_u32 s{sT2}, s{sXO}, {16*1280}")
    a(f"buffer_load_dwordx4 v{zX0}, {sr(sX,4)}, s{sXO} offen lds")
    a(f"s_add_u32 m0, s{sT0}, 1024")
    a(f"s_add_u32 s{sSLOT}, s{sSLOT}, {SLOT}")
    a(f"buffer_load_dwordx4 v{zX1}, {sr(sX,4)}, s{sXO} offen lds")
    a(f"s_add_u32 m0, s{sT0}, 2048")
    a(f"s_add_u32 s{sXO}, s{sXO}, 128")
    a(f"buffer_load_dwordx4 v{zX0}, {sr(sX,4)}, s{sT2} offen lds")
    a(f"s_add_u32 m0, s{sT0}, 3072")
    a(f"s_cmp_eq_u32 s{sSLOT}, {4*SLOT}")
    a(f"buffer_load_dwordx4 v{zX1}, {sr(sX,4)}, s{sT2} offen lds")
    a(f"s_cselect_b32 s{sSLOT}, 0, s{sSLOT}")
    a(f"s_mov_b32 m0, s{sT1}")
    a("s_nop 0")
    a(f"buffer_load_dwordx4 v{zA}, {sr(sA,4)}, s{sAO} offen lds")
    a(f"s_add_u32 m0, s{sT1}, {4096-64}")
    a("s_nop 0")
    a(f"buffer_load_dwordx4 v{zA}, {sr(sA,4)}, s{sAO} offen offset:64 lds")
    a(f"s_add_u32 m0, s{sT1}, 8192")
    a(f"s_add_u32 s{sAO}, s{sAO}, s{sAS}")
    a(f"buffer_load_dwordx4 v{zB}, {sr(sB,4)}, s{sBO} offen lds")
    a(f"s_add_u32 m0, s{sT1}, {12288-64}")
    a("s_nop 0")
    a(f"buffer_load_dwordx4 v{zB}, {sr(sB,4)}, s{sBO} offen offset:64 lds")
    a(f"s_add_u32 m0, s{sT1}, 16384")
    a(f"s_add_u32 s{sBO}, s{sBO}, s{sBS}")
    a(f"buffer_load_dwordx4 v{zC}, {sr(sC,4)}, s{sCO} offen lds")
    a(f"s_add_u32 s{sCO}, s{sCO}, s{sCS_}")
    a(f"s_add_u32 s{sROT}, s{sROT}, 1")
    a(f"s_cmp_lg_u32 s{sROT}, 10")
    a("s_cbranch_scc1 L1_nowrap")
    a(f"s_sub_u32 s{sXO}, s{sXO}, 1280")
    for o, st in ((sAO, sAS), (sBO, sBS), (sCO, sCS_)):
        a(f"s_mul_i32 s{sT0}, s{st}, 10")
        a(f"s_sub_u32 s{o}, s{o}, s{sT0}")
    a.label("L1_nowrap")

def gen_loader(a):
    a(f"v_lshrrev_b32 v3, 3, v{vLANE}")
    a(f"v_mul_u32_u24 v3, 1280, v3")
    a(f"v_lshrrev_b32 v4, 4, v{vLANE}")
    a(f"v_xor_b32 v4, v4, v{vLANE}")
    a(f"v_and_b32 v4, 7, v4")
    a(f"v_lshl_add_u32 v{zX0}, v4, 4, v3")
    a(f"v_xor_b32 v4, 4, v4")
    a(f"v_lshl_add_u32 v{zX1}, v4, 4, v3")
    a(f"v_add_u32 v{zX1}, {8*1280}, v{zX1}")
    a(f"v_lshrrev_b32 v6, 2, v{vLANE}")
    a(f"s_lshl_b32 s{sT0}, s{sW4}, 4")
    a(f"v_add_u32 v6, s{sT0}, v6")
    a(f"v_and_b32 v7, 3, v{vLANE}")
    a(f"v_lshlrev_b32 v7, 4, v7")
    a(f"v_mov_b32 v{zZERO}, 0")
    a(f"v_lshlrev_b32 v{zPF}, 7, v{vLANE}")
    a(f"s_lshl_b32 s{sXD}, s{sW4}, 12")
    a(f"s_lshl_b32 s{sWD}, s{sW4}, 10")
    a(f"s_add_u32 s{sWD}, s{sWD}, 16384")
    a(f"s_mul_i32 s{sXO}, s{sTG}, {32*1280}")
    a(f"s_mov_b32 s{sSLOT}, 0")
    def pitch_col(cmp, colA, colB, sO, sStep, vdst):
        a(f"s_add_i32 s{sT0}, s{sG}, {colA}")
        a(f"s_add_i32 s{sT1}, s{sG}, {colB}")
        a(cmp)
        a(f"s_cselect_b32 s{sT2}, 27, 10")
        a(f"s_cselect_b32 s{sO}, s{sT0}, s{sT1}")
        a(f"s_lshl_b32 s{sT2}, s{sT2}, 7")
        a(f"s_lshl_b32 s{sStep}, s{sT2}, 6")
        a(f"s_lshl_b32 s{sO}, s{sO}, 7")
        a(f"v_mad_u32_u24 v{vdst}, v6, s{sT2}, v7")
    pitch_col(f"s_cmp_le_u32 s{sG}, 13", 13, -14, sAO, sAS, zA)
    a(f"s_mul_i32 s{sA+2}, s{sT2}, 640")
    pitch_col(f"s_cmp_ge_u32 s{sG}, 3", -3, 2, sBO, sBS, zB)
    a(f"s_mul_i32 s{sB+2}, s{sT2}, 640")
    a(f"s_add_u32 s{sT0}, s{sG}, 8")
    a(f"s_add_u32 s{sT1}, s{sG}, 4")
    a(f"s_cmp_lt_u32 s{sG}, 10")
    a(f"s_cselect_b32 s{sT0}, s{sT0}, s{sT1}")
    a(f"s_lshl_b32 s{sT0}, s{sT0}, 6")
    a(f"s_movk_i32 s{sT1}, 1280")
    a(f"s_cmp_le_u32 s{sG}, 1")
    a(f"s_cselect_b32 s{sT2}, 40, s{sT1}")
    a(f"s_cselect_b32 s{sCO}, 0, s{sT0}")
    a(f"s_mul_i32 s{sC+2}, s{sT2}, 640")
    a(f"s_sub_u32 s{sT1}, s{sG}, 10")
    a(f"s_cmp_lt_u32 s{sT1}, 4")
    a(f"s_cselect_b32 s{sC+2}, 0, s{sC+2}")
    a(f"s_lshl_b32 s{sCS_}, s{sT2}, 6")
    a(f"v_mad_u32_u24 v{zC}, v6, s{sT2}, v7")
    RG, RR = (int(v) for v in os.environ.get("ROT1", "5,10").split(","))
    a(f"s_and_b32 s{sT0}, s{sG}, 7")
    a(f"s_mul_i32 s{sT0}, s{sT0}, {RG}")
    a(f"s_and_b32 s{sT1}, s{sRB}, 3")
    a(f"s_mul_i32 s{sT1}, s{sT1}, {RR}")
    a(f"s_add_u32 s{sT0}, s{sT0}, s{sT1}")
    a(f"s_lshr_b32 s{sROT}, s{sT0}, 2")
    a(f"s_sub_u32 s{sT0}, s{sROT}, 10")
    a(f"s_cselect_b32 s{sROT}, s{sROT}, s{sT0}")
    a(f"s_lshl_b32 s{sT0}, s{sROT}, 7")
    a(f"s_add_u32 s{sXO}, s{sXO}, s{sT0}")
    for o, st in ((sAO, sAS), (sBO, sBS), (sCO, sCS_)):
        a(f"s_mul_i32 s{sT0}, s{st}, s{sROT}")
        a(f"s_add_u32 s{o}, s{o}, s{sT0}")
    for r in (sX+3, sA+3, sB+3, sC+3, sW+3):
        a(f"s_mov_b32 s{r}, 0x20000")
    a(f"s_mov_b32 s{sX+2}, {2048*1280}")
    a(f"s_mov_b32 s{sW+2}, {WS_END}")
    a("s_waitcnt lgkmcnt(0)")
    stamp(a, 8)
    a(f"s_mov_b64 {sr(sX,2)}, s[4:5]")
    a(f"s_mov_b64 {sr(sW,2)}, s[18:19]")
    a(f"s_cmp_le_u32 s{sG}, 13")
    a(f"s_cselect_b64 {sr(sA,2)}, s[12:13], s[6:7]")
    a(f"s_cmp_ge_u32 s{sG}, 3")
    a(f"s_cselect_b64 {sr(sB,2)}, s[12:13], s[6:7]")
    a(f"s_cmp_eq_u32 s{sG}, 0")
    a(f"s_cselect_b64 {sr(sC,2)}, s[8:9], s[10:11]")
    a(f"s_cmp_le_u32 s{sG}, 1")
    a(f"s_cselect_b64 {sr(sC,2)}, {sr(sC,2)}, s[6:7]")
    if 'nox' in EXP: a(f"s_mov_b32 s{sX+2}, 0")
    if 'noab' in EXP:
        a(f"s_mov_b32 s{sA+2}, 0"); a(f"s_mov_b32 s{sB+2}, 0")
    if 'noc' in EXP: a(f"s_mov_b32 s{sC+2}, 0")
    a(f"s_mov_b32 s{sLOOP}, 0")
    a.label("L1_zloop")
    if 'xdma' not in EXP: z_issue(a)
    a(f"s_add_u32 s{sLOOP}, s{sLOOP}, 1")
    NPRO = int(os.environ.get("NPRO", "2"))
    a(f"s_cmp_eq_u32 s{sLOOP}, {NPRO}")
    a("s_cbranch_scc1 L1_zfirst")
    a(f"s_cmp_lt_u32 s{sLOOP}, 4")
    a("s_cbranch_scc1 L1_zloop")
    a(f"s_cmp_eq_u32 s{sLOOP}, 10")
    a("s_cbranch_scc1 L1_ztail")
    a(f"s_waitcnt vmcnt({54 if 'deep' in EXP else 18})")
    a("s_barrier")
    a("s_branch L1_zloop")
    a.label("L1_zfirst")
    stamp(a, 9)
    a(f"s_waitcnt vmcnt({9*(NPRO-1)})")
    a("s_barrier")
    stamp(a, 1)
    a("s_branch L1_zloop")
    a.label("L1_ztail")
    a("s_waitcnt vmcnt(18)")
    a("s_barrier")
    a("s_load_dwordx2 s[4:5], s[0:1], 56")
    a("s_load_dwordx2 s[6:7], s[0:1], 32")
    a("s_load_dwordx2 s[8:9], s[0:1], 72")
    a(f"s_and_b32 s{sT0}, s2, 7")
    a(f"s_lshl_b32 s{sT0}, s{sT0}, 7")
    a(f"s_lshr_b32 s{sT1}, s2, 3")
    a(f"s_lshl_b32 s{sT1}, s{sT1}, 2")
    a(f"s_add_u32 s{sT0}, s{sT0}, s{sT1}")
    a(f"s_add_u32 s{sT0}, s{sT0}, s{sW4}")
    a(f"s_lshl_b32 s{sT1}, s{sT0}, 13")
    a(f"s_lshl_b32 s{sT2}, s2, 13")
    a("s_waitcnt lgkmcnt(0)")
    srd(a, sA, 4, 2048*4096)
    a(f"s_cmp_eq_u32 s{sW4}, 2")
    a(f"s_cselect_b64 {sr(sB,2)}, s[6:7], s[8:9]")
    a(f"s_mov_b32 s{sT0}, {640*1280}")
    a(f"s_cselect_b32 s{sB+2}, s{sT0}, {864*1280}")
    a(f"s_cmp_ge_u32 s{sW4}, 2")
    a(f"s_cselect_b32 s{sB+2}, s{sB+2}, 0")
    if 'nopf2' not in EXP:
        a(f"buffer_load_dword v20, v{zPF}, {sr(sA,4)}, s{sT1} offen")
        a(f"buffer_load_dword v21, v{zPF}, {sr(sB,4)}, s{sT2} offen")
    npf = 0 if 'nopf2' in EXP else 2
    a(f"s_waitcnt vmcnt({9+npf})")
    a("s_barrier")
    a(f"s_waitcnt vmcnt({npf})")
    a("s_barrier")
    a("s_barrier")
    a("s_barrier")
    a("s_branch L1_fin")

def gen_k1(a):
    kernel_header(a, "k1_kernel")
    a("s_cmp_ge_u32 s2, 256")
    a("s_cbranch_scc1 L1_end")
    stamp(a, 0)
    a("s_load_dwordx8 s[4:11], s[0:1], 0")
    a("s_load_dwordx2 s[12:13], s[0:1], 48")
    a("s_load_dwordx4 s[16:19], s[0:1], 88")
    a(f"v_and_b32 v{vLANE}, 63, v0")
    a("v_lshrrev_b32 v2, 6, v0")
    a(f"s_and_b32 s{sT0}, s2, 7")
    a(f"v_readfirstlane_b32 s{sWAVE}, v2")
    a(f"s_lshr_b32 s{sT1}, s2, 3")
    a(f"s_lshr_b32 s{sRB}, s{sT0}, 1")
    a(f"s_lshl_b32 s{sRB}, s{sRB}, 2")
    a(f"s_lshr_b32 s{sT2}, s{sT1}, 3")
    a(f"s_add_u32 s{sRB}, s{sRB}, s{sT2}")
    a(f"s_and_b32 s{sG}, s{sT0}, 1")
    a(f"s_lshl_b32 s{sG}, s{sG}, 3")
    a(f"s_and_b32 s{sT2}, s{sT1}, 7")
    a(f"s_add_u32 s{sG}, s{sG}, s{sT2}")
    a(f"s_and_b32 s{sW4}, s{sWAVE}, 3")
    a(f"s_lshl_b32 s{sTG}, s{sRB}, 2")
    a(f"s_add_u32 s{sTG}, s{sTG}, s{sW4}")
    a(f"s_lshr_b32 s{sROLE}, s{sWAVE}, 2")
    a(f"s_sub_u32 s{sROLE}, s{sROLE}, 1")
    a("s_cbranch_scc0 L1_comp")
    gen_loader(a)

    a.label("L1_comp")
    if 'nocpf' not in EXP:
        a("v_subrev_u32 v2, 4, v2")
        code_prefetch(a, "k1_kernel", 8, 126, 2, vLANE, sp=60)
    a(f"v_lshlrev_b32 v{vL16}, 4, v{vLANE}")
    a(f"s_mov_b32 s{sHI}, 0")
    a(f"s_mov_b32 s{sHI+1}, -1")
    a(f"v_and_b32 v3, 31, v{vLANE}")
    a(f"v_lshrrev_b32 v4, 5, v{vLANE}")
    a(f"v_mov_b32 v5, s{sW4}")
    a(f"v_lshl_add_u32 v6, v5, 5, v3")
    a(f"v_lshl_add_u32 v7, v5, 1, v4")
    a(f"v_bfe_u32 v{vXA+1}, v3, 1, 3")
    a(f"v_xor_b32 v7, v7, v{vXA+1}")
    a(f"v_lshlrev_b32 v7, 4, v7")
    a(f"v_lshl_add_u32 v{vXA}, v6, 7, v7")
    for s in range(1, 4):
        a(f"v_xor_b32 v{vXA+s}, {32*s}, v{vXA}")
    a(f"v_lshlrev_b32 v6, 10, v5")
    a(f"v_lshl_add_u32 v6, v4, 9, v6")
    a(f"v_bfe_u32 v7, v{vLANE}, 2, 2")
    a(f"v_lshl_add_u32 v6, v7, 6, v6")
    a(f"v_bfe_u32 v7, v{vLANE}, 4, 1")
    a(f"v_lshl_add_u32 v6, v7, 5, v6")
    a(f"v_and_b32 v7, 3, v{vLANE}")
    a(f"v_lshl_add_u32 v6, v7, 3, v6")
    a(f"s_lshl_b32 s{sT0}, s{sROLE}, 13")
    a(f"s_add_u32 s{sT0}, s{sT0}, 16384")
    a(f"v_add_u32 v{vWA}, s{sT0}, v6")
    for s in range(1, 4):
        a(f"v_xor_b32 v{vWA+s}, {1024*s}, v{vWA}")
    a(f"v_lshlrev_b32 v6, 3, v3")
    a(f"v_lshl_add_u32 v{vZ2O}, v4, 2, v6")
    a(f"v_bfe_u32 v{vSEL}, v{vLANE}, 4, 1")
    a(f"v_and_b32 v{vSEL+1}, 15, v{vLANE}")
    a(f"v_cmp_eq_u32 vcc, v{vSEL}, v{vSEL+1}")
    a(f"v_mov_b32 v{vSEL+1}, 0x3f803f80")
    a(f"v_mov_b32 v{vGC}, {hx(GC1)}")
    a(f"v_cndmask_b32 v{vSEL}, 0, v{vSEL+1}, vcc")
    a(f"v_mov_b32 v{vGC+1}, {hx(GC0)}")
    for i in range(1, 4):
        a(f"v_mov_b32 v{vSEL+i}, v{vSEL}")
    for r in list(range(vCS, vCS+8+32)) + list(range(vSA, vSA+4)):
        a(f"v_mov_b32 v{r}, 0")
    a(f"s_mov_b32 s{sT1}, {SLOT}")
    a(f"s_mov_b32 s{sT2}, {-3*SLOT}")
    a("s_waitcnt lgkmcnt(0)")
    srd(a, sW, 18, WS_END)
    a(f"s_cmp_eq_u32 s{sROLE}, 2")
    a("s_cbranch_scc1 L1_S")

    compute_loop(a, "xy", 2, False)
    write_colsum(a, 2)
    a(f"s_cmp_eq_u32 s{sROLE}, 0")
    a(f"s_cselect_b32 s{sT0}, 13, -3")
    a(f"s_cselect_b32 s{sT1}, -14, 2")
    a(f"s_add_i32 s{sT0}, s{sT0}, s{sG}")
    a(f"s_add_i32 s{sT1}, s{sT1}, s{sG}")
    a(f"s_cmp_lt_u32 s{sT0}, 27")
    a(f"s_cselect_b32 s{sB0}, s{sT0}, s{sT1}")
    a(f"s_cselect_b32 s{sTY0}, 1, 0")
    a(f"s_lshl_b32 s{sB0}, s{sB0}, 1")
    correction(a, 2, False)
    a(f"s_add_u32 s{sT2}, s{sB0}, 1")
    a(f"s_cmp_eq_u32 s{sTY0}, 1")
    a("s_cbranch_scc1 L1_g")
    epi_q(a, ACC[1], sT2)
    a.label("L1_q0")
    epi_q(a, ACC[0], sB0)
    a("s_branch L1_fin")
    a.label("L1_g")
    gelu(a, ACC[1])
    a(f"s_cmp_ge_u32 s{sT2}, 27")
    a("s_cbranch_scc1 L1_g1s")
    store_z1(a, ACC[1], sT2)
    a("s_branch L1_g0")
    a.label("L1_g1s")
    store_z2(a, ACC[1], sT2)
    z2stats(a, ACC[1])
    a.label("L1_g0")
    gelu(a, ACC[0])
    a(f"s_cmp_ge_u32 s{sB0}, 27")
    a("s_cbranch_scc1 L1_g0s")
    store_z1(a, ACC[0], sB0)
    a(f"s_cmp_ge_u32 s{sT2}, 27")
    a("s_cbranch_scc0 L1_fin")
    a("s_branch L1_pub")
    a.label("L1_g0s")
    store_z2(a, ACC[0], sB0)
    z2stats(a, ACC[0])
    a.label("L1_pub")
    stamp(a, 4)
    a(f"v_add_f32 v{vSA}, v{vSA}, v{vSA+1}")
    a(f"v_add_f32 v{vSQ}, v{vSQ}, v{vSQ+1}")
    a(f"s_lshl_b32 s{sT3}, s{sTG}, 12")
    a(f"s_add_u32 s{sT3}, s{sT3}, {WS_ST}")
    a(f"v_permlane32_swap_b32 v{vSA}, v{vSQ}")
    a(f"s_lshl_b32 s{sT0}, s{sG}, 8")
    a(f"s_add_u32 s{sT0}, s{sT0}, s{sT3}")
    a(f"v_add_f32 v{vSA}, v{vSA}, v{vSQ}")
    a(f"buffer_store_dword v{vSA}, v{vZ2O}, {sr(sW,4)}, s{sT0} offen")
    a("s_branch L1_fin")

    a.label("L1_S")
    a(f"s_lshl_b32 s{sT0}, s{sW4}, 8")
    a(f"s_or_b32 s{sT0}, s{sT0}, s2")
    a(f"s_cmp_ge_u32 s{sT0}, 14")
    a("s_cbranch_scc1 L1_nolead")
    a(f"s_lshl_b32 s{sT0}, s2, 8")
    a(f"s_add_u32 s{sT0}, s{sT0}, {WS_FL}")
    a(f"buffer_store_dword v{vSA}, v{vZ2O}, {sr(sW,4)}, s{sT0} offen")
    a.label("L1_nolead")
    a("s_waitcnt vmcnt(0)")
    for r in (vS1, vS2, vS3, vS4):
        a(f"v_mov_b32 v{r}, 0")
    a(f"v_mov_b32 v{vT+4}, 0xffff0000")
    a("s_setprio 1")
    compute_loop(a, "s", 1, True)
    a("s_setprio 3")
    a(f"v_add_f32 v{vS1}, v{vS1}, v{vS3}")
    a(f"v_add_f32 v{vS2}, v{vS2}, v{vS4}")
    stats_addr(a, vS3)
    a(f"v_permlane32_swap_b32 v{vS1}, v{vS2}")
    a("s_nop 0")
    a(f"v_add_f32 v{vS1}, v{vS1}, v{vS2}")
    a(f"v_mul_f32 v{vS1}, {hx(1.0/640)}, v{vS1}")
    a(f"v_mov_b32 v{vS2}, v{vS1}")
    a("s_nop 1")
    a(f"v_permlane32_swap_b32 v{vS1}, v{vS2}")
    a("s_nop 0")
    a(f"v_cvt_pk_bf16_f32 v{vD}, -v{vS1}, -v{vS1}")
    a(f"v_fma_f32 v{vS2}, -v{vS1}, v{vS1}, v{vS2}")
    a(f"v_max_f32 v{vS2}, 0, v{vS2}")
    a(f"v_add_f32 v{vS2}, {hx(1e-5)}, v{vS2}")
    a(f"v_rsq_f32 v{vD+1}, v{vS2}")
    a("s_nop 0")
    a(f"ds_write_b64 v{vS3}, {vr(vD,2)}")
    write_colsum(a, 1)
    a(f"v_mov_b32 v{vT+2}, v{vD}")
    a(f"v_mov_b32 v{vT+3}, v{vD+1}")
    a("s_setprio 0")
    correction(a, 1, True)
    epi_c(a)

    a.label("L1_fin")
    if STAMP: a("s_waitcnt vmcnt(0)")
    stamp(a, 7)
    stamp_flush(a, 12, 0, sWAVE, 18, 16, 100)
    a.label("L1_end")
    a("s_endpgm")
    return dict(name="k1_kernel", grid=256, block=1024, lds=K1_LDS, vgpr=128, sgpr=102 if STAMP else 64, accum=128)
```

```python
from common import *

NSL = 6
GSLOT = 24576
MX = NSL * GSLOT
FL = MX + 2048
K2_LDS = FL + 64
MARGIN = float(os.environ.get('MARGIN', '90'))
EXP = os.environ.get('EXP', '').split(',')

sW, sSP, sA, sB = 20, 24, 28, 32
sWAVE, sXC, sJ, sTG, sHEAD, sKT, sLOOP = 40, 41, 42, 43, 44, 45, 46
sT0, sT1, sT2, sT3 = 47, 48, 49, 50
sKO, sSPO, sZO, sVO, sNEED, sSPD, sZD, sRB, sCG = 51, 52, 53, 54, 55, 56, 57, 58, 59
sSPB, sZB = 60, 61
sHI = 62
vLANE = 1
vL16, vL8 = 2, 3
S = (4, 20)
P = (36, 44)
O = (52, 68, 84, 100)
QL = (116, 120, 124, 128)
QH = (132, 134, 136, 138)
KL = (140, 144)
KH = (148, 150)
VV = (152, 160)

def mf16(d, a_, b, c):
    cc = c if isinstance(c, str) else vr(c, 16)
    return f"v_mfma_f32_32x32x16_bf16 {vr(d,16)}, {vr(a_,4)}, {vr(b,4)}, {cc}"
def mf8(d, a_, b):
    return f"v_mfma_f32_32x32x8bf16_1k {vr(d,16)}, {vr(a_,2)}, {vr(b,2)}, {vr(d,16)}"

def phase(a, Sx, Px, mf, x0=(), x2=(), x3=()):
    E = lambda i: f"v_exp_f32 v{Sx+i}, v{Sx+i}"
    C = lambda k: f"v_cvt_pk_bf16_f32 v{Px+k}, v{Sx+2*k}, v{Sx+2*k+1}"
    mf = list(mf)
    if 'nopv' in EXP: mf[2] = mf[3] = "s_nop 0"
    if 'noqh' in EXP: mf[1] = "s_nop 0"
    if 'noql' in EXP: mf[0] = "s_nop 0"
    if 'noexp' in EXP: E = lambda i: f"v_mov_b32 v{Sx+i}, v{Sx+i}"
    for x in x0: a(x)
    a(mf[0])
    a(E(0)); a(E(1)); a(E(2)); a(E(3)); a(E(4)); a(C(0))
    a(mf[1])
    a(E(5)); a(E(6)); a(C(1)); a(E(7)); a(E(8)); a(C(2))
    for x in x2: a(x)
    a(mf[2])
    a(E(9)); a(C(3)); a(E(10)); a(E(11)); a(C(4)); a(E(12))
    a(mf[3])
    a(E(13))
    for x in x3: a(x)
    a(C(5)); a(E(14)); a(E(15)); a(C(6)); a(C(7))

def ldK(b):
    return [f"buffer_load_dwordx4 {vr(KL[b],4)}, v{vL16}, {sr(sW,4)}, s{sKO} offen",
            f"buffer_load_dwordx2 {vr(KH[b],2)}, v{vL8}, {sr(sW,4)}, s{sKO} offen offset:3072",
            f"s_add_u32 s{sKO}, s{sKO}, {4*KVREC}"]
def ldV(b):
    return [f"buffer_load_dwordx4 {vr(VV[b],4)}, v{vL16}, {sr(sW,4)}, s{sVO} offen offset:1024",
            f"buffer_load_dwordx4 {vr(VV[b]+4,4)}, v{vL16}, {sr(sW,4)}, s{sVO} offen offset:2048",
            f"s_add_u32 s{sVO}, s{sVO}, {4*KVREC}"]

def att_tile(a, c):
    n = c ^ 1
    def qk(j, kb): return [mf16(S[j & 1], KL[kb], QL[j], "0"), mf8(S[j & 1], KH[kb], QH[j])]
    def pv(j, vb): return [mf16(O[j], VV[vb], P[j & 1], O[j]), mf16(O[j], VV[vb]+4, P[j & 1]+4, O[j])]
    phase(a, S[0], P[0], qk(1, c) + pv(3, n))
    phase(a, S[1], P[1], qk(2, c) + pv(0, c), x2=["s_waitcnt vmcnt(2)"], x3=ldV(n))
    phase(a, S[0], P[0], qk(3, c) + pv(1, c))
    phase(a, S[1], P[1], qk(0, n) + pv(2, c), x0=["s_waitcnt vmcnt(2)"], x3=ldK(c))

def make_qhi(a, Q, vm, t):
    a(f"v_cvt_pk_bf16_f32 v{t}, -v{vm}, -v{vm}")
    a(f"v_lshlrev_b32 v{t}, 16, v{t}")
    a(f"v_add_f32 v{t+1}, v{vm}, v{t}")
    a(f"v_cvt_pk_bf16_f32 v{t+2}, v{t}, -v{t+1}")
    a(f"v_and_b32 v{t}, 0xffff0000, v{t+2}")
    a(f"v_add_f32 v{t+1}, v{t+1}, v{t}")
    a(f"v_cvt_pk_bf16_f32 v{t+3}, -v{t+1}, 0")
    a(f"v_cndmask_b32 v{Q}, v{Q}, v{t+2}, {sr(sHI,2)}")
    a(f"v_cndmask_b32 v{Q+1}, v{Q+1}, v{t+3}, {sr(sHI,2)}")

def max16(a, Sx, vm, first):
    k = 0
    if first:
        a(f"v_max3_f32 v{vm}, v{Sx}, v{Sx+1}, v{Sx+2}")
        a(f"v_max_f32 v{vm}, v{vm}, v{Sx+3}")
        k = 4
    for i in range(k, 16, 2):
        a(f"v_max3_f32 v{vm}, v{vm}, v{Sx+i}, v{Sx+i+1}")

def halves_max(a, vm, t):
    a(f"v_mov_b32 v{t}, v{vm}")
    a("s_nop 1")
    a(f"v_permlane32_swap_b32 v{t}, v{vm}")
    a("s_nop 0")
    a(f"v_max_f32 v{vm}, v{vm}, v{t}")

QB = 5 * GSLOT
KB = QB + 10240

def read_q(a, j, t):
    if j: a(f"s_xor_b32 s{sT0}, s{sWAVE}, {j}")
    a(f"s_mul_i32 s{sT0}, s{sT0 if j else sWAVE}, 5")
    for k in range(3):
        if k == 1: a(f"s_add_u32 s{sT0}, s{sT0}, 1")
        if k == 2: a(f"s_add_u32 s{sT0}, s{sT0}, 3")
        a(f"s_lshr_b32 s{sT1}, s{sT0}, 1")
        a(f"s_lshl_b32 s{sT1}, s{sT1}, 9")
        a(f"s_and_b32 s{sT2}, s{sT0}, 1")
        a(f"s_lshl3_add_u32 s{sT1}, s{sT2}, s{sT1}")
        a(f"v_add_u32 v{S[0]+3*j+k}, s{sT1}, v{t if k < 2 else t+1}")

def gen_att(a):
    a(f"s_and_b32 s{sKT}, s{sWAVE}, 3")
    a(f"s_lshl_b32 s{sTG}, s{sXC}, 3")
    a(f"s_lshr_b32 s{sT0}, s{sJ}, 2")
    a(f"s_add_u32 s{sTG}, s{sTG}, s{sT0}")
    a(f"s_and_b32 s{sT0}, s{sJ}, 3")
    a(f"s_mul_i32 s{sT3}, s{sT0}, 10240")
    a(f"s_lshl_b32 s{sT0}, s{sT0}, 3")
    a(f"s_add_u32 s{sHEAD}, s{sT0}, s{sWAVE}")
    a(f"v_lshlrev_b32 v{vL16}, 4, v{vLANE}")
    a(f"v_lshlrev_b32 v{vL8}, 3, v{vLANE}")
    a(f"s_mul_i32 s{sT0}, s{sTG}, 40960")
    a(f"s_add_u32 s{sT3}, s{sT3}, s{sT0}")
    if WS_Q: a(f"s_add_u32 s{sT3}, s{sT3}, {WS_Q}")
    a(f"s_lshl_b32 s{sT0}, s{sWAVE}, 10")
    a(f"s_add_u32 s{sT3}, s{sT3}, s{sT0}")
    a(f"s_mul_i32 s{sKO}, s{sKT}, {KVREC}")
    a(f"s_add_u32 s{sKO}, s{sKO}, {WS_KV}")
    a(f"s_mov_b32 s{sVO}, s{sKO}")
    a(f"s_lshr_b32 s{sT1}, s{sWAVE}, 2")
    a(f"s_mul_i32 s{sT1}, s{sT1}, 3072")
    a(f"s_add_u32 s{sT1}, s{sT1}, s{sKO}")
    a("s_waitcnt lgkmcnt(0)")
    srd(a, sW, 18, WS_END)
    a(f"s_add_u32 m0, s{sT0}, {QB}")
    a(f"s_cmp_ge_u32 s{sWAVE}, 2")
    a(f"buffer_load_dwordx4 v{vL16}, {sr(sW,4)}, s{sT3} offen lds")
    a("s_cbranch_scc1 L2_q8")
    a(f"s_add_u32 m0, s{sT0}, {QB + 8192}")
    a(f"s_add_u32 s{sT3}, s{sT3}, 8192")
    a(f"buffer_load_dwordx4 v{vL16}, {sr(sW,4)}, s{sT3} offen lds")
    a.label("L2_q8")
    a(f"s_add_u32 m0, s{sT0}, {KB}")
    a("s_nop 0")
    a(f"buffer_load_dwordx4 v{vL16}, {sr(sW,4)}, s{sT1} offen lds")
    for x in ldK(0) + ldV(0) + ldK(1): a(x)
    tq = P[0]
    a(f"v_add_u32 v{tq}, {QB}, v{vL16}")
    a(f"v_and_b32 v{tq+1}, 0x1f0, v{vL16}")
    a(f"v_add_u32 v{tq+1}, {QB}, v{tq+1}")
    for j in range(4): read_q(a, j, tq)
    a(f"v_add_u32 v{tq+1}, {KB + 4096}, v{vL8}")
    for r in list(range(O[2], O[2]+32)) + list(range(P[1], P[1]+8)) + list(range(VV[1], VV[1]+8)):
        a(f"v_mov_b32 v{r}, 0")
    a("s_waitcnt vmcnt(6)")
    a("s_barrier")
    kb = [(O[0], O[0]+4), (O[0]+8, O[0]+12), (O[1], O[1]+4), (O[1]+8, O[1]+12)]
    def rq(j):
        for k in range(3):
            dst = vr(QL[j] + 2*k, 2) if k < 2 else vr(QH[j], 2)
            a(f"ds_read_b64 {dst}, v{S[0]+3*j+k}")
    for j in (1, 2, 3, 0): rq(j)
    a("s_waitcnt lgkmcnt(6)")
    for t in range(4):
        a(f"ds_read_b128 {vr(kb[t][0],4)}, v{tq} offset:{KB - QB + 1024*t}")
        a(f"ds_read_b64 {vr(kb[t][1],2)}, v{tq+1} offset:{1024*t}")
    a("s_waitcnt lgkmcnt(8)")
    for r in (QH[0], QH[0]+1):
        a(f"v_cndmask_b32 v{r}, v{r}, 0, {sr(sHI,2)}")
    vm = P[0] + 2
    for t in range(4):
        Sx = S[t & 1]
        a(f"s_waitcnt lgkmcnt({6-2*t})")
        if t == 0: a("s_nop 0")
        a(mf16(Sx, kb[t][0], QL[0], "0"))
        a(mf8(Sx, kb[t][1], QH[0]))
        if t >= 1:
            if t == 1: a("s_nop 8")
            max16(a, S[(t-1) & 1], vm, t == 1)
            a("s_nop 1")
    stamp(a, 1)
    a("s_nop 1")
    max16(a, S[1], vm, False)
    halves_max(a, vm, vm+1)
    a(f"v_add_f32 v{vm}, {hx(MARGIN)}, v{vm}")
    a(f"s_lshl_b32 s{sT0}, s{sWAVE}, 8")
    a(f"s_add_u32 s{sT0}, s{sT0}, {MX}")
    va = S[1]
    a(f"v_lshlrev_b32 v{va}, 2, v{vLANE}")
    a(f"v_add_u32 v{va}, s{sT0}, v{va}")
    a(f"ds_write_b32 v{va}, v{vm}")
    for j in range(1, 4):
        a(f"v_xor_b32 v{va+j}, {256*j}, v{va}")
    make_qhi(a, QH[0], vm, vm+2)
    for r in range(O[0], O[0]+32):
        a(f"v_mov_b32 v{r}, 0")
    a("s_waitcnt lgkmcnt(0)")
    a("s_barrier")
    for j in range(1, 4):
        a(f"ds_read_b32 v{va+4+j}, v{va+j}")
    a("s_waitcnt vmcnt(4)")
    a(mf16(S[0], KL[0], QL[0], "0"))
    a(mf8(S[0], KH[0], QH[0]))
    a("s_waitcnt lgkmcnt(0)")
    for j in range(1, 4):
        make_qhi(a, QH[j], va+4+j, vm+2)
    a("s_nop 1")
    stamp(a, 2); stamp_rt(a, 5)
    a(f"s_mov_b32 s{sLOOP}, 8")
    a.raw(".p2align 6")
    a.label("L2_aloop")
    st = len(a.lines)
    att_tile(a, 0)
    att_tile(a, 1)
    a(f"s_sub_u32 s{sLOOP}, s{sLOOP}, 1")
    a(f"s_cmp_lg_u32 s{sLOOP}, 0")
    a("s_cbranch_scc1 L2_aloop")
    for p in check_linear(a.lines[st:] + a.lines[st:], "k2 att loop x2"): print("HAZARD", p)
    a(mf16(O[3], VV[1], P[1], O[3]))
    a(mf16(O[3], VV[1]+4, P[1]+4, O[3]))
    stamp(a, 3); stamp_rt(a, 6)
    a("s_barrier")
    va = S[0]
    for j in range(1, 4):
        a(f"s_xor_b32 s{sT0}, s{sWAVE}, {j}")
        a(f"s_mul_i32 s{sT0}, s{sT0}, 12288")
        a(f"v_add_u32 v{va+j}, s{sT0}, v{vL16}")
    a(f"s_mul_i32 s{sT0}, s{sWAVE}, 12288")
    a(f"v_add_u32 v{va}, s{sT0}, v{vL16}")
    for j in range(1, 4):
        for k in range(3):
            a(f"ds_write_b128 v{va+j}, {vr(O[j]+4*k,4)} offset:{(j-1)*4096 + 1024*k}")
        a(f"ds_write_b32 v{va+j}, v{O[j]+12} offset:{(j-1)*4096 + 3072}")
    a("s_waitcnt lgkmcnt(0)")
    a("s_barrier")
    for j in range(1, 4):
        for k in range(3):
            a(f"ds_read_b128 {vr(O[j]+4*k,4)}, v{va} offset:{(j-1)*4096 + 1024*k}")
        a(f"ds_read_b32 v{O[j]+12}, v{va} offset:{(j-1)*4096 + 3072}")
    OA = O[0]
    for j in range(1, 4):
        a(f"s_waitcnt lgkmcnt({12-4*j})")
        for k in range(13):
            a(f"v_add_f32 v{OA+k}, v{OA+k}, v{O[j]+k}")
    t = S[1]
    a(f"v_cndmask_b32 v{t}, v{OA+12}, v{OA+8}, {sr(sHI,2)}")
    a(f"v_add_f32 v{t+1}, |v{OA}|, |v{OA+1}|")
    for k in range(2, 8):
        a(f"v_add_f32 v{t+1}, v{t+1}, |v{OA+k}|")
    a(f"v_add_f32 v{t+2}, v{t+1}, |v{OA+8}|")
    for k in range(9, 12):
        a(f"v_add_f32 v{t+2}, v{t+2}, |v{OA+k}|")
    a(f"s_mov_b32 s{sT0}, {hx(2.0**120)}")
    a(f"s_mov_b32 s{sT1}, {hx(2.0**-100)}")
    a(f"s_mov_b32 s{sT2}, {hx(2.0**126)}")
    a(f"v_cmp_gt_f32 s[36:37], s{sT0}, v{t}")
    a(f"v_cmp_le_f32 s[38:39], s{sT1}, v{t+1}")
    a(f"v_cmp_gt_f32 vcc, s{sT2}, v{t+2}")
    a("s_nop 1")
    a("s_and_b64 s[36:37], s[36:37], s[38:39]")
    a("s_and_b64 s[36:37], s[36:37], vcc")
    a("s_cmp_eq_u64 s[36:37], -1")
    a("s_waitcnt vmcnt(0)")
    if not any(e.startswith('no') for e in EXP): a("s_cbranch_scc0 L2_fallback")
    a.label("L2_final")
    a(f"v_cndmask_b32 v{t}, v{OA+12}, v{OA+8}, {sr(sHI,2)}")
    a(f"v_rcp_f32 v{t}, v{t}")
    a(f"s_mul_i32 s{sT0}, s{sHEAD}, 5")
    a(f"v_lshrrev_b32 v{t+1}, 5, v{vLANE}")
    a(f"v_add_u32 v{t+1}, s{sT0}, v{t+1}")
    a(f"v_and_b32 v{t+2}, 0x1f0, v{vL16}")
    a(f"v_lshrrev_b32 v{t+3}, 1, v{t+1}")
    a(f"v_lshl_add_u32 v{t+3}, v{t+3}, 9, v{t+2}")
    a(f"v_and_b32 v{t+1}, 1, v{t+1}")
    a(f"v_lshl_add_u32 v{t+3}, v{t+1}, 3, v{t+3}")
    a(f"s_mul_i32 s{sT1}, s{sTG}, {OH_TG}")
    a(f"s_add_u32 s{sT1}, s{sT1}, {WS_OH}")
    for k in range(12):
        a(f"v_mul_f32 v{OA+k}, v{OA+k}, v{t}")
    PA = P[0]
    for k in range(6):
        a(f"v_cvt_pk_bf16_f32 v{PA+k}, v{OA+2*k}, v{OA+2*k+1}")
    a(f"buffer_store_dwordx2 {vr(PA,2)}, v{t+3}, {sr(sW,4)}, s{sT1} offen")
    a(f"buffer_store_dwordx2 {vr(PA+2,2)}, v{t+3}, {sr(sW,4)}, s{sT1} offen offset:512")
    a("s_mov_b32 exec_hi, 0")
    a(f"buffer_store_dwordx2 {vr(PA+4,2)}, v{t+3}, {sr(sW,4)}, s{sT1} offen offset:1024")
    a("s_mov_b64 exec, -1")
    a("s_branch L2_fin")
    a.label("L2_fallback")
    for r in (QH[0], QH[0]+1):
        a(f"v_cndmask_b32 v{r}, v{r}, 0, {sr(sHI,2)}")
    vm = P[1]
    SA = S[0]
    a(f"v_mov_b32 v{vm}, 0xff800000")
    a(f"s_mov_b32 s{sT0}, {WS_KV}")
    a.label("L2_fb1")
    a(f"buffer_load_dwordx4 {vr(KL[0],4)}, v{vL16}, {sr(sW,4)}, s{sT0} offen")
    a(f"buffer_load_dwordx2 {vr(KH[0],2)}, v{vL8}, {sr(sW,4)}, s{sT0} offen offset:3072")
    a("s_waitcnt vmcnt(0)")
    a(mf16(SA, KL[0], QL[0], "0"))
    a(mf8(SA, KH[0], QH[0]))
    a("s_nop 11")
    max16(a, SA, vm, False)
    a(f"s_add_u32 s{sT0}, s{sT0}, {KVREC}")
    a(f"s_cmp_lt_u32 s{sT0}, {WS_KV + 64*KVREC}")
    a("s_cbranch_scc1 L2_fb1")
    halves_max(a, vm, vm+1)
    make_qhi(a, QH[0], vm, vm+2)
    for r in range(OA, OA+16):
        a(f"v_mov_b32 v{r}, 0")
    a(f"s_mov_b32 s{sT0}, {WS_KV}")
    a.label("L2_fb2")
    a(f"buffer_load_dwordx4 {vr(KL[0],4)}, v{vL16}, {sr(sW,4)}, s{sT0} offen")
    a(f"buffer_load_dwordx2 {vr(KH[0],2)}, v{vL8}, {sr(sW,4)}, s{sT0} offen offset:3072")
    a(f"buffer_load_dwordx4 {vr(VV[0],4)}, v{vL16}, {sr(sW,4)}, s{sT0} offen offset:1024")
    a(f"buffer_load_dwordx4 {vr(VV[0]+4,4)}, v{vL16}, {sr(sW,4)}, s{sT0} offen offset:2048")
    a("s_waitcnt vmcnt(0)")
    a(mf16(SA, KL[0], QL[0], "0"))
    a(mf8(SA, KH[0], QH[0]))
    a("s_nop 11")
    for i in range(16):
        a(f"v_exp_f32 v{SA+i}, v{SA+i}")
    a("s_nop 0")
    for k in range(8):
        a(f"v_cvt_pk_bf16_f32 v{PA+k}, v{SA+2*k}, v{SA+2*k+1}")
    a("s_nop 1")
    a(mf16(OA, VV[0], PA, OA))
    a(mf16(OA, VV[0]+4, PA+4, OA))
    a(f"s_add_u32 s{sT0}, s{sT0}, {KVREC}")
    a(f"s_cmp_lt_u32 s{sT0}, {WS_KV + 64*KVREC}")
    a("s_nop 11")
    a("s_cbranch_scc1 L2_fb2")
    a("s_branch L2_final")

G0, G1 = 32, 48
FZ = (64, 68, 72, 76)
FW = (80, 88, 96, 104)
ZL = 112
vSPa = 8
vZa = (20, 21, 22)
vS0, vS1 = 4, 5
vFA, vFW, vCNT, vFL = 6, 7, 23, 24

def g_dma(a, slot, part="wz"):
    b = slot * GSLOT
    if "w" in part:
        a(f"s_add_u32 m0, s{sSPD}, {b}")
        a(f"s_add_u32 s{sT0}, s{sSPO}, 65536")
        a(f"buffer_load_dwordx4 v{vS0}, {sr(sSP,4)}, s{sSPO} offen lds")
        a(f"s_add_u32 m0, s{sSPD}, {b+1024}")
        a(f"s_add_u32 s{sT1}, s{sSPO}, 128")
        a(f"buffer_load_dwordx4 v{vS1}, {sr(sSP,4)}, s{sSPO} offen lds")
        a(f"s_add_u32 m0, s{sSPD}, {b+2048}")
        a(f"s_and_b32 s{sT1}, s{sT1}, 0xfff")
        a(f"buffer_load_dwordx4 v{vS0}, {sr(sSP,4)}, s{sT0} offen lds")
        a(f"s_add_u32 m0, s{sSPD}, {b+3072}")
        a(f"s_or_b32 s{sSPO}, s{sSPB}, s{sT1}")
        a(f"buffer_load_dwordx4 v{vS1}, {sr(sSP,4)}, s{sT0} offen lds")
    if "z" in part:
        a(f"s_add_u32 m0, s{sZD}, {b+16384}")
        a(f"s_add_u32 s{sT1}, s{sZO}, 4096")
        a(f"buffer_load_dwordx4 v{vL16}, {sr(sW,4)}, s{sZO} offen lds")
        a(f"s_and_b32 s{sT1}, s{sT1}, 0x1ffff")
        a(f"buffer_load_dwordx4 v{vL16}, {sr(sW,4)}, s{sZO} offen offset:1024 lds")
        a(f"s_or_b32 s{sZO}, s{sZB}, s{sT1}")

_uid = [0]
def soft_barrier(a, sleep=False):
    _uid[0] += 1
    L = f"L2_sb{_uid[0]}"
    a(f"v_add_u32 v{vCNT}, 1, v{vCNT}")
    a(f"ds_write_b32 v{vFW}, v{vCNT}")
    a.label(L)
    if sleep: a("s_sleep 2")
    a(f"ds_read_b32 v{vFL}, v{vFA}")
    a("s_waitcnt lgkmcnt(0)")
    a(f"v_cmp_lt_u32 vcc, v{vFL}, v{vCNT}")
    a("s_nop 0")
    a(f"s_cbranch_vccnz {L}")

def g_step(a, i, issue, wait):
    slot = i % NSL
    a(f"s_waitcnt vmcnt({wait})")
    soft_barrier(a)
    st = slot // 2
    so = (slot % 2) * GSLOT
    def rd(s):
        a(f"ds_read_b64_tr_b16 {vr(FZ[s],2)}, v{vZa[st]} offset:{so + s*1024}")
        a(f"ds_read_b64_tr_b16 {vr(FZ[s]+2,2)}, v{vZa[st]} offset:{so + s*1024 + 256}")
        a(f"ds_read_b128 {vr(FW[s],4)}, v{vSPa + 4*st + s} offset:{so}")
        a(f"ds_read_b128 {vr(FW[s]+4,4)}, v{vSPa + 4*st + s} offset:{so + 4096}")
    b = Asm()
    if issue: g_dma(b, (i + NSL - 1) % NSL)
    groups = [[]]
    for l in b.lines:
        groups[-1].append(l.strip())
        if "buffer_load" in l: groups.append([])
    if 'chain' in EXP:
        k = 0
        for s in range(4):
            rd(s)
            for u in range(2):
                if k < len(groups):
                    for l in groups[k]: a(l)
                k += 1
                a(f"s_waitcnt lgkmcnt({1-u})")
                a(mf16((G0, G1)[u], FZ[s], FW[s]+4*u, (G0, G1)[u]))
        return
    rd(0); rd(1); rd(2)
    k = 0
    for s in range(4):
        for u in range(2):
            if k < len(groups):
                for l in groups[k]: a(l)
            k += 1
            if u == 0:
                if s == 1: rd(3)
                a(f"s_waitcnt lgkmcnt({(8, 8, 4, 0)[s]})")
            if 'nogm' not in EXP: a(mf16((G0, G1)[u], FZ[s], FW[s]+4*u, (G0, G1)[u]))

def gen_gemm(a):
    gw = sT3
    a(f"s_sub_u32 s{gw}, s{sWAVE}, 8")
    if 'p0' not in EXP: a("s_setprio 1")
    a(f"v_lshlrev_b32 v{vL16}, 4, v{vLANE}")
    a(f"s_cmp_ge_u32 s{sJ}, 28")
    a("s_cbranch_scc1 L2_idle")
    a(f"s_cmp_ge_u32 s{sJ}, 14")
    a(f"s_cselect_b32 s{sT0}, 1, 0")
    a(f"s_cselect_b32 s{sT1}, 14, 0")
    a(f"s_lshl_b32 s{sRB}, s{sXC}, 1")
    a(f"s_add_u32 s{sRB}, s{sRB}, s{sT0}")
    a(f"s_sub_u32 s{sCG}, s{sJ}, s{sT1}")
    a(f"s_lshl_b32 s{sSPD}, s{gw}, 12")
    a(f"s_lshl_b32 s{sZD}, s{gw}, 11")
    a(f"s_lshl_b32 s{sSPO}, s{sRB}, 19")
    a(f"s_lshl_b32 s{sT0}, s{gw}, 17")
    a(f"s_add_u32 s{sSPO}, s{sSPO}, s{sT0}")
    a(f"s_lshl_b32 s{sT0}, s{sCG}, 1")
    a(f"s_lshr_b32 s{sT1}, s{gw}, 1")
    a(f"s_add_u32 s{sHEAD}, s{sT0}, s{sT1}")
    a(f"s_lshl_b32 s{sZO}, s{sHEAD}, 17")
    a(f"s_and_b32 s{sKT}, s{gw}, 1")
    a(f"s_lshl_b32 s{sT0}, s{sKT}, 11")
    a(f"s_add_u32 s{sZO}, s{sZO}, s{sT0}")
    a(f"s_add_u32 s{sZO}, s{sZO}, {WS_Z2}")
    assert WS_Z2 % 0x20000 == 0
    a(f"s_mov_b32 s{sSPB}, s{sSPO}")
    a(f"s_andn2_b32 s{sZB}, s{sZO}, 0x1ffff")
    RC, RR, RX = (int(v) for v in os.environ.get("ROT2", "9,0,0").split(","))
    a(f"s_mul_i32 s{sT0}, s{sCG}, {RC}")
    a(f"s_and_b32 s{sT1}, s{sRB}, 1")
    a(f"s_mul_i32 s{sT1}, s{sT1}, {RR}")
    a(f"s_add_u32 s{sT0}, s{sT0}, s{sT1}")
    a(f"s_mul_i32 s{sT1}, s{sXC}, {RX}")
    a(f"s_add_u32 s{sT0}, s{sT0}, s{sT1}")
    a(f"s_bfe_u32 s{sT0}, s{sT0}, 0x50002")
    a(f"s_lshl_b32 s{sT1}, s{sT0}, 7")
    a(f"s_add_u32 s{sSPO}, s{sSPO}, s{sT1}")
    a(f"s_lshl_b32 s{sT1}, s{sT0}, 12")
    a(f"s_add_u32 s{sZO}, s{sZO}, s{sT1}")
    a(f"s_lshl_b32 s{sT0}, s{gw}, 2")
    a(f"s_add_u32 s{sT0}, s{sT0}, {FL}")
    a(f"v_mov_b32 v{vFW}, s{sT0}")
    a(f"v_and_b32 v{vFA}, 3, v{vLANE}")
    a(f"v_lshlrev_b32 v{vFA}, 2, v{vFA}")
    a(f"v_add_u32 v{vFA}, {FL}, v{vFA}")
    a(f"v_mov_b32 v{vCNT}, 0")
    a(f"s_mov_b32 s{sNEED}, 0")
    a(f"ds_write_b32 v{vFW}, v{vCNT}")
    a(f"s_lshl_b32 s{sTG}, s{sRB}, 2")
    a(f"s_lshl_b32 s{sT0}, s{sKT}, 1")
    a(f"s_add_u32 s{sTG}, s{sTG}, s{sT0}")
    a(f"v_and_b32 v64, 31, v{vLANE}")
    a(f"v_lshlrev_b32 v65, 1, v64")
    a(f"s_lshl_b32 s{sT0}, s{sTG}, 6")
    a(f"buffer_load_ushort v28, v65, {sr(sB,4)}, s{sT0} offen")
    a(f"buffer_load_ushort v29, v65, {sr(sB,4)}, s{sT0} offen offset:64")
    a(f"v_lshrrev_b32 v66, 3, v{vLANE}")
    a(f"v_lshlrev_b32 v66, 12, v66")
    a(f"v_lshrrev_b32 v67, 4, v{vLANE}")
    a(f"v_xor_b32 v67, v67, v{vLANE}")
    a(f"v_and_b32 v67, 7, v67")
    a(f"v_lshl_add_u32 v{vS0}, v67, 4, v66")
    a(f"v_xor_b32 v67, 4, v67")
    a(f"v_lshl_add_u32 v{vS1}, v67, 4, v66")
    a(f"v_add_u32 v{vS1}, {8*4096}, v{vS1}")
    a(f"v_lshrrev_b32 v65, 5, v{vLANE}")
    a(f"v_bfe_u32 v66, v64, 1, 3")
    a(f"v_xor_b32 v66, v66, v65")
    a(f"v_lshlrev_b32 v66, 4, v66")
    a(f"v_lshl_add_u32 v66, v64, 7, v66")
    a(f"s_lshl_b32 s{sT0}, s{sKT}, 13")
    for s in range(4):
        a(f"v_xor_b32 v67, {32*s}, v66")
        a(f"v_add_u32 v{vSPa+s}, s{sT0}, v67")
        a(f"v_add_u32 v{vSPa+4+s}, {2*GSLOT}, v{vSPa+s}")
        a(f"v_add_u32 v{vSPa+8+s}, {4*GSLOT}, v{vSPa+s}")
    a(f"v_lshlrev_b32 v66, 9, v65")
    a(f"v_bfe_u32 v67, v{vLANE}, 4, 1")
    a(f"v_lshl_add_u32 v66, v67, 7, v66")
    a(f"v_and_b32 v67, 1, v{vLANE}")
    a(f"v_lshl_add_u32 v66, v67, 6, v66")
    a(f"v_bfe_u32 v67, v{vLANE}, 2, 2")
    a(f"v_lshl_add_u32 v66, v67, 4, v66")
    a(f"v_bfe_u32 v67, v{vLANE}, 1, 1")
    a(f"v_lshl_add_u32 v66, v67, 3, v66")
    a(f"s_lshr_b32 s{sT0}, s{gw}, 1")
    a(f"s_lshl_b32 s{sT0}, s{sT0}, 12")
    a(f"s_add_u32 s{sT0}, s{sT0}, 16384")
    a(f"v_add_u32 v{vZa[0]}, s{sT0}, v66")
    a(f"v_add_u32 v{vZa[1]}, {2*GSLOT}, v{vZa[0]}")
    a(f"v_add_u32 v{vZa[2]}, {4*GSLOT}, v{vZa[0]}")
    NR, NS = 80, 96
    a(f"s_lshl_b32 s{sT0}, s{sRB}, 2")
    a(f"s_add_u32 s{sT0}, s{sT0}, s{gw}")
    a(f"s_lshl_b32 s{sT1}, s{sT0}, 12")
    a(f"s_add_u32 s{sT1}, s{sT1}, {WS_ST}")
    a(f"v_lshlrev_b32 v{vL8}, 3, v{vLANE}")
    for i in range(7):
        a(f"buffer_load_dwordx2 {vr(NS+2*i,2)}, v{vL8}, {sr(sW,4)}, s{sT1} offen offset:{512*i}")
    a(f"s_lshl_b32 s{sKO}, s{sCG}, 18")
    a(f"s_lshl_b32 s{sT0}, s{sT0}, 11")
    a(f"s_add_u32 s{sKO}, s{sKO}, s{sT0}")
    a(f"s_add_u32 s{sT0}, s{sKO}, {WS_ZR}")
    a(f"s_add_u32 s{sT1}, s{sKO}, {WS_ZR + 131072}")
    for b in range(2):
        a(f"buffer_load_dwordx4 {vr(NR+8*b,4)}, v{vL16}, {sr(sW,4)}, s{(sT0, sT1)[b]} offen")
        a(f"buffer_load_dwordx4 {vr(NR+8*b+4,4)}, v{vL16}, {sr(sW,4)}, s{(sT0, sT1)[b]} offen offset:1024")
    a(f"v_lshrrev_b32 v66, 2, v64")
    a(f"v_lshlrev_b32 v66, 8, v66")
    a(f"v_lshl_add_u32 v66, v65, 6, v66")
    a(f"v_and_b32 v67, 3, v64")
    a(f"v_lshl_add_u32 v66, v67, 4, v66")
    a("s_waitcnt lgkmcnt(0)")
    a("s_barrier")
    a("s_barrier")
    if 'gexit' in EXP:
        a("s_branch L2_fin")
    a("s_waitcnt vmcnt(4)")
    for i in (1, 2, 3):
        a(f"v_add_f32 v{NS+2*i}, v{NS+2*i}, v{NS+2*i+6}")
        a(f"v_add_f32 v{NS+2*i+1}, v{NS+2*i+1}, v{NS+2*i+7}")
    for i in (1, 2, 3):
        a(f"v_add_f32 v{NS}, v{NS}, v{NS+2*i}")
        a(f"v_add_f32 v{NS+1}, v{NS+1}, v{NS+2*i+1}")
    a(f"v_lshlrev_b32 v28, 16, v28")
    a(f"v_lshlrev_b32 v29, 16, v29")
    a(f"v_permlane32_swap_b32 v{NS}, v{NS+1}")
    a("s_nop 0")
    a(f"v_add_f32 v{NS}, v{NS}, v{NS+1}")
    a(f"v_mul_f32 v{NS}, {hx(1.0/864)}, v{NS}")
    a(f"v_mov_b32 v{NS+1}, v{NS}")
    a("s_nop 1")
    a(f"v_permlane32_swap_b32 v{NS}, v{NS+1}")
    a("s_nop 0")
    a(f"v_fma_f32 v{NS+1}, -v{NS}, v{NS}, v{NS+1}")
    a(f"v_max_f32 v{NS+1}, 0, v{NS+1}")
    a(f"v_add_f32 v{NS+1}, {hx(1e-5)}, v{NS+1}")
    a(f"v_rsq_f32 v{NS+1}, v{NS+1}")
    a(f"s_add_u32 s{sT0}, s{sKO}, {WS_Z2}")
    a(f"v_mul_f32 v{NS}, -v{NS}, v{NS+1}")
    a(f"s_add_u32 s{sT1}, s{sKO}, {WS_Z2 + 131072}")
    for q in range(4):
        a(f"s_waitcnt vmcnt({3})")
        for k in range(4):
            z = NR + 4*q + k
            a(f"v_lshlrev_b32 v68, 16, v{z}")
            a(f"v_and_b32 v69, 0xffff0000, v{z}")
            a(f"v_fma_f32 v68, v68, v{NS+1}, v{NS}")
            a(f"v_fma_f32 v69, v69, v{NS+1}, v{NS}")
            a(f"v_cvt_pk_bf16_f32 v{z}, v68, v69")
        a(f"buffer_store_dwordx4 {vr(NR+4*q,4)}, v66, {sr(sW,4)}, s{(sT0, sT1)[q>>1]} offen offset:{128*(q&1)} sc0 sc1")
    for r in range(16):
        a(f"v_mov_b32 v{G0+r}, v28")
        a(f"v_mov_b32 v{G1+r}, v29")
    a(f"s_lshl_b32 s{sVO}, s{sCG}, 8")
    a(f"s_add_u32 s{sVO}, s{sVO}, {WS_FL}")
    a(f"s_lshl_b32 s{sT0}, s{sRB}, 4")
    a(f"s_lshl2_add_u32 s{sT0}, s{gw}, s{sT0}")
    a(f"v_mov_b32 v68, s{sT0}")
    a(f"v_mov_b32 v69, 1")
    a(f"v_lshlrev_b32 v70, 2, v{vLANE}")
    a("s_waitcnt vmcnt(0)")
    a("s_mov_b64 exec, 1")
    a(f"buffer_store_dword v69, v68, {sr(sW,4)}, s{sVO} offen sc0 sc1")
    a("s_mov_b64 exec, -1")
    stamp(a, 1)
    for c in range(NSL - 1): g_dma(a, c, "w")
    a(f"s_cmp_lg_u32 s{gw}, 0")
    a("s_cbranch_scc1 L2_gnp")
    a(f"s_mov_b32 s{sT1}, 0x10000")
    a.label("L2_gpoll")
    a(f"buffer_load_dword v69, v70, {sr(sW,4)}, s{sVO} offen sc0 sc1")
    a("s_waitcnt vmcnt(0)")
    a(f"v_cmp_ne_u32 vcc, 1, v69")
    a("s_nop 0")
    a("s_cbranch_vccz L2_ggot")
    a("s_sleep 4")
    a(f"s_sub_u32 s{sT1}, s{sT1}, 1")
    a(f"s_cmp_lg_u32 s{sT1}, 0")
    a("s_cbranch_scc1 L2_gpoll")
    a.label("L2_ggot")
    a("buffer_inv sc1")
    a("s_waitcnt vmcnt(0)")
    a.label("L2_gnp")
    soft_barrier(a, sleep=True)
    for c in range(NSL - 1): g_dma(a, c, "z")
    a("s_waitcnt vmcnt(0)")
    stamp(a, 2); stamp_rt(a, 5)
    a(f"s_mov_b32 s{sLOOP}, 4")
    a.raw(".p2align 6")
    a.label("L2_gloop")
    st = len(a.lines)
    for i in range(NSL):
        g_step(a, i, True, 6 * (NSL - 2))
    a(f"s_sub_u32 s{sLOOP}, s{sLOOP}, 1")
    a(f"s_cmp_lg_u32 s{sLOOP}, 0")
    a("s_cbranch_scc1 L2_gloop")
    for p in check_linear(a.lines[st:] + a.lines[st:], "k2 gemm loop x2"): print("HAZARD", p)
    for i in range(24, 27):
        g_step(a, i, True, 6 * (NSL - 2))
    a(f"s_mul_i32 s{sT0}, s{sTG}, {27*2048}")
    a(f"s_lshl_b32 s{sT1}, s{sHEAD}, 11")
    a(f"s_add_u32 s{sT0}, s{sT0}, s{sT1}")
    a(f"s_add_u32 s{sT0}, s{sT0}, {WS_Z1}")
    a(f"s_add_u32 s{sT1}, s{sT0}, {27*2048}")
    a(f"buffer_load_dwordx4 {vr(ZL,4)}, v{vL16}, {sr(sW,4)}, s{sT0} offen")
    a(f"buffer_load_dwordx4 {vr(ZL+4,4)}, v{vL16}, {sr(sW,4)}, s{sT0} offen offset:1024")
    a(f"buffer_load_dwordx4 {vr(ZL+8,4)}, v{vL16}, {sr(sW,4)}, s{sT1} offen")
    a(f"buffer_load_dwordx4 {vr(ZL+12,4)}, v{vL16}, {sr(sW,4)}, s{sT1} offen offset:1024")
    for i in range(27, 32):
        g_step(a, i, False, 6 * (31 - i) + 4)
    stamp(a, 3); stamp_rt(a, 6)
    a("s_waitcnt vmcnt(0)")
    a(f"s_cmp_ge_u32 s{sHEAD}, 27")
    a("s_cbranch_scc1 L2_fin")
    a("s_nop 8")
    a(f"s_mul_i32 s{sT0}, s{sTG}, {OH_TG}")
    a(f"s_lshl_b32 s{sT1}, s{sHEAD}, 11")
    a(f"s_add_u32 s{sT0}, s{sT0}, s{sT1}")
    a(f"s_add_u32 s{sT0}, s{sT0}, {WS_OH + 40960}")
    for u, G in enumerate((G0, G1)):
        for k in range(8):
            z = ZL + 8*u + k
            a(f"v_lshlrev_b32 v64, 16, v{z}")
            a(f"v_and_b32 v65, 0xffff0000, v{z}")
            a(f"v_mul_f32 v64, v64, v{G+2*k}")
            a(f"v_mul_f32 v65, v65, v{G+2*k+1}")
            a(f"v_cvt_pk_bf16_f32 v{z}, v64, v65")
        a(f"buffer_store_dwordx4 {vr(ZL+8*u,4)}, v{vL16}, {sr(sW,4)}, s{sT0} offen")
        a(f"buffer_store_dwordx4 {vr(ZL+8*u+4,4)}, v{vL16}, {sr(sW,4)}, s{sT0} offen offset:1024")
        a(f"s_add_u32 s{sT0}, s{sT0}, {OH_TG}")
    a("s_branch L2_fin")

    a.label("L2_idle")
    a("s_barrier")
    a("s_barrier")
    a(f"s_lshl_b32 s{sRB}, s{sXC}, 2")
    a(f"s_add_u32 s{sRB}, s{sRB}, s{sJ}")
    a(f"s_sub_u32 s{sRB}, s{sRB}, 28")
    a(f"s_lshl_b32 s{sRB}, s{sRB}, 2")
    a(f"s_add_u32 s{sRB}, s{sRB}, s{gw}")
    a(f"s_lshl_b32 s{sSPD}, s{gw}, 12")
    a(f"v_lshrrev_b32 v16, 3, v{vLANE}")
    a(f"v_mul_u32_u24 v16, 1280, v16")
    a(f"v_and_b32 v17, 7, v{vLANE}")
    a(f"v_lshl_add_u32 v{vS0}, v17, 4, v16")
    a(f"v_bfe_u32 v16, v{vLANE}, 2, 2")
    a(f"v_and_b32 v17, 3, v{vLANE}")
    a(f"v_lshlrev_b32 v17, 3, v17")
    a(f"v_lshl_add_u32 v16, v16, 7, v17")
    a(f"v_add_u32 v16, s{sSPD}, v16")
    a(f"v_lshrrev_b32 v17, 4, v{vLANE}")
    a(f"v_lshl_add_u32 v8, v17, 10, v16")
    a(f"v_add_u32 v9, 512, v8")
    a(f"v_lshrrev_b32 v18, 1, v17")
    a(f"v_lshl_add_u32 v10, v18, 11, v16")
    a(f"v_and_b32 v18, 1, v17")
    a(f"v_lshl_add_u32 v10, v18, 9, v10")
    a(f"v_add_u32 v11, 1024, v10")
    a.label("L2_iloop")
    a(f"s_mul_i32 s{sZO}, s{sRB}, 6554")
    a(f"s_lshr_b32 s{sZO}, s{sZO}, 16")
    a(f"s_mul_i32 s{sT0}, s{sZO}, 10")
    a(f"s_sub_u32 s{sCG}, s{sRB}, s{sT0}")
    a(f"s_lshl_b32 s{sT1}, s{sCG}, 7")
    a(f"s_cmp_ge_u32 s{sZO}, 20")
    a("s_cbranch_scc1 L2_idh")
    a(f"s_mul_i32 s{sT0}, s{sZO}, {32*1280}")
    a(f"s_add_u32 s{sT0}, s{sT0}, s{sT1}")
    for k in range(4):
        a(f"s_add_u32 m0, s{sSPD}, {1024*k}")
        a("s_nop 0")
        a(f"buffer_load_dwordx4 v{vS0}, {sr(sA,4)}, s{sT0} offen lds")
        a(f"s_add_u32 s{sT0}, s{sT0}, {8*1280}")
    a("s_branch L2_itr")
    a.label("L2_idh")
    a(f"s_sub_u32 s{sT0}, s{sZO}, 20")
    a(f"s_mul_i32 s{sT0}, s{sT0}, {32*1280}")
    a(f"s_add_u32 s{sT0}, s{sT0}, s{sT1}")
    for k in range(4):
        a(f"s_add_u32 m0, s{sSPD}, {1024*k}")
        a("s_nop 0")
        a(f"buffer_load_dwordx4 v{vS0}, {sr(sSP,4)}, s{sT0} offen lds")
        a(f"s_add_u32 s{sT0}, s{sT0}, {8*1280}")
    a.label("L2_itr")
    a(f"s_cmp_ge_u32 s{sZO}, 20")
    a(f"s_cselect_b64 vcc, -1, 0")
    a(f"v_cndmask_b32 v12, v8, v10, vcc")
    a(f"v_cndmask_b32 v13, v9, v11, vcc")
    a("s_waitcnt vmcnt(0)")
    for q in range(4):
        a(f"ds_read_b64_tr_b16 {vr(16+4*q,2)}, v12 offset:{32*q}")
        a(f"ds_read_b64_tr_b16 {vr(18+4*q,2)}, v13 offset:{32*q}")
    for q in range(4):
        a(f"s_lshl_b32 s{sT0}, s{sCG}, 2")
        a(f"s_add_u32 s{sT0}, s{sT0}, {q}")
        a(f"s_mul_i32 s{sT1}, s{sT0}, 13108")
        a(f"s_lshr_b32 s{sT1}, s{sT1}, 16")
        a(f"s_mul_i32 s{sT2}, s{sT1}, {47*5 - 5}")
        a(f"s_add_u32 s{sT0}, s{sT0}, s{sT2}")
        a(f"s_mul_i32 s{sT2}, s{sZO}, 5")
        a(f"s_add_u32 s{sT0}, s{sT0}, s{sT2}")
        a(f"s_lshl_b32 s{sT0}, s{sT0}, 10")
        a(f"s_add_u32 s{sT0}, s{sT0}, {WS_WT}")
        a(f"s_waitcnt lgkmcnt({6-2*q})")
        a(f"buffer_store_dwordx4 {vr(16+4*q,4)}, v{vL16}, {sr(sW,4)}, s{sT0} offen")
    a(f"s_add_u32 s{sRB}, s{sRB}, 128")
    a(f"s_cmp_lt_u32 s{sRB}, 470")
    a("s_cbranch_scc1 L2_iloop")
    a("s_branch L2_fin")

def gen_k2(a):
    kernel_header(a, "k2_kernel")
    a("s_cmp_ge_u32 s2, 256")
    a("s_cbranch_scc1 L2_end")
    stamp(a, 0); stamp_rt(a, 7)
    a("s_load_dwordx2 s[18:19], s[0:1], 96")
    a("s_load_dwordx2 s[4:5], s[0:1], 32")
    a("s_load_dwordx4 s[8:11], s[0:1], 56")
    a("s_load_dwordx2 s[6:7], s[0:1], 72")
    a(f"v_and_b32 v{vLANE}, 63, v0")
    a("v_lshrrev_b32 v2, 6, v0")
    a(f"s_and_b32 s{sXC}, s2, 7")
    a(f"v_readfirstlane_b32 s{sWAVE}, v2")
    a(f"s_lshr_b32 s{sJ}, s2, 3")
    a(f"s_mov_b32 s{sHI}, 0")
    a(f"s_mov_b32 s{sHI+1}, -1")
    a(f"s_cmp_ge_u32 s{sWAVE}, 8")
    a("s_cbranch_scc1 L2_G")
    gen_att(a)
    a.label("L2_G")
    a("s_waitcnt lgkmcnt(0)")
    srd(a, sW, 18, WS_END)
    srd(a, sA, 4, 640*1280)
    srd(a, sB, 10, 4096)
    a(f"s_cmp_ge_u32 s{sJ}, 28")
    a(f"s_cselect_b32 s{sSP}, s6, s8")
    a(f"s_cselect_b32 s{sSP+1}, s7, s9")
    a(f"s_mov_b32 s{sT0}, {864*1280}")
    a(f"s_cselect_b32 s{sSP+2}, s{sT0}, {2048*4096}")
    a(f"s_mov_b32 s{sSP+3}, 0x20000")
    gen_gemm(a)
    a.label("L2_fin")
    if STAMP: a("s_waitcnt vmcnt(0)")
    stamp(a, 4)
    stamp_flush(a, 8, 1, sWAVE, 18, 12, 30)
    a.label("L2_end")
    a("s_endpgm")
    return dict(name="k2_kernel", grid=256, block=768, lds=K2_LDS, vgpr=168, sgpr=102 if STAMP else 64, accum=168)
```

```python
from common import *

ROWP = 336
PART = 64 * ROWP
K3_LDS = 4 * PART
sW, sX, sO = 20, 24, 28
sWAVE, sTB, sNG, sAO, sWO, sT0, sT1 = 40, 41, 42, 43, 44, 45, 46
vLANE, vA, vL16 = 1, 2, 3
NST = 6
FR = 32
XR = 8
XO = 18

def loads(a, j):
    b = FR + (j % NST) * 36
    a(f"buffer_load_dwordx4 {vr(b,4)}, v{vA}, {sr(sW,4)}, s{sAO} offen")
    a(f"buffer_load_dwordx4 {vr(b+4,4)}, v{vA}, {sr(sW,4)}, s{sAO} offen offset:256")
    a(f"s_add_u32 s{sT0}, s{sAO}, {OH_TG}")
    a(f"s_add_u32 s{sT1}, s{sWO}, 4096")
    a(f"buffer_load_dwordx4 {vr(b+8,4)}, v{vA}, {sr(sW,4)}, s{sT0} offen")
    a(f"buffer_load_dwordx4 {vr(b+12,4)}, v{vA}, {sr(sW,4)}, s{sT0} offen offset:256")
    for nb in range(4):
        a(f"buffer_load_dwordx4 {vr(b+16+4*nb,4)}, v{vL16}, {sr(sW,4)}, s{sWO} offen offset:{1024*nb}")
    a(f"buffer_load_dwordx4 {vr(b+32,4)}, v{vL16}, {sr(sW,4)}, s{sT1} offen")
    a(f"s_add_u32 s{sAO}, s{sAO}, {4*2048}")
    a(f"s_add_u32 s{sWO}, s{sWO}, {4*5120}")

def mfmas(a, j):
    b = FR + (j % NST) * 36
    for nb in range(5):
        for m in range(4):
            d = (nb * 4 + m) * 4
            c = "0" if j == 0 else ar(d, 4)
            a(f"v_mfma_f32_16x16x32_bf16 {ar(d,4)}, {vr(b+16+4*nb,4)}, {vr(b+4*m,4)}, {c}")

def gen_k3(a):
    kernel_header(a, "k3_kernel")
    a("s_cmp_ge_u32 s2, 256")
    a("s_cbranch_scc1 L3_end")
    stamp(a, 0)
    a("s_load_dwordx2 s[4:5], s[0:1], 0")
    a("s_load_dwordx2 s[6:7], s[0:1], 80")
    a("s_load_dwordx2 s[18:19], s[0:1], 96")
    a(f"v_and_b32 v{vLANE}, 63, v0")
    a("v_lshrrev_b32 v4, 6, v0")
    a(f"s_and_b32 s{sT0}, s2, 7")
    a(f"v_readfirstlane_b32 s{sWAVE}, v4")
    a(f"s_lshr_b32 s{sT1}, s2, 3")
    a(f"s_lshl_b32 s{sTB}, s{sT0}, 2")
    a(f"s_lshr_b32 s{sT0}, s{sT1}, 3")
    a(f"s_add_u32 s{sTB}, s{sTB}, s{sT0}")
    a(f"s_and_b32 s{sNG}, s{sT1}, 7")
    a(f"s_mul_i32 s{sAO}, s{sTB}, {2*OH_TG}")
    a(f"s_lshl_b32 s{sT0}, s{sWAVE}, 11")
    a(f"s_add_u32 s{sAO}, s{sAO}, s{sT0}")
    a(f"s_add_u32 s{sAO}, s{sAO}, {WS_OH}")
    a(f"s_mul_i32 s{sWO}, s{sNG}, {47*5120}")
    a(f"s_mul_i32 s{sT0}, s{sWAVE}, 5120")
    a(f"s_add_u32 s{sWO}, s{sWO}, s{sT0}")
    a(f"s_add_u32 s{sWO}, s{sWO}, {WS_WT}")
    a(f"v_lshlrev_b32 v{vL16}, 4, v{vLANE}")
    a(f"v_lshrrev_b32 v5, 4, v{vLANE}")
    a(f"v_and_b32 v6, 15, v{vLANE}")
    a(f"v_lshlrev_b32 v7, 4, v6")
    a(f"v_lshl_add_u32 v{vA}, v5, 9, v7")
    for r in range(5):
        a(f"v_add_u32 v23, {256*r}, v0")
        a(f"v_mul_u32_u24 v24, 3277, v23")
        a(f"v_lshrrev_b32 v24, 16, v24")
        a(f"v_mul_u32_u24 v25, 20, v24")
        a(f"v_sub_u32 v25, v23, v25")
        a(f"v_mul_u32_u24 v26, 1280, v24")
        a(f"v_lshl_add_u32 v{XO+r}, v25, 3, v26")
        a(f"v_mul_u32_u24 v26, {ROWP}, v24")
        a(f"v_lshl_add_u32 v{27+r}, v25, 4, v26")
    a("s_waitcnt lgkmcnt(0)")
    srd(a, sW, 18, WS_END)
    srd(a, sX, 4, 2048*1280)
    srd(a, sO, 6, 2048*1280)
    stamp(a, 4)
    for j in range(NST):
        loads(a, j)
        if j == 0 and STAMP and os.environ.get("K3W"):
            a("s_waitcnt vmcnt(8)"); stamp(a, 5); a("s_waitcnt vmcnt(0)"); stamp(a, 6)
    a(f"s_mul_i32 s47, s{sTB}, {64*1280}")
    a(f"s_mul_i32 s{sT0}, s{sNG}, 160")
    a(f"s_add_u32 s47, s47, s{sT0}")
    for r in range(5):
        a(f"buffer_load_dwordx2 {vr(XR+2*r,2)}, v{XO+r}, {sr(sX,4)}, s47 offen")
    stamp(a, 1)
    for j in range(12):
        issued = min(j + NST, 12)
        out = (issued - j - 1) * 9 + (5 if j < NST else 0)
        a(f"s_waitcnt vmcnt({out})")
        if j in (0, 2, 5, 8): stamp(a, {0: 7, 2: 8, 5: 9, 8: 10}[j])
        if j == 11:
            a(f"s_cmp_eq_u32 s{sWAVE}, 3")
            a("s_cbranch_scc1 L3_red")
        mfmas(a, j)
        if j + NST < 12:
            loads(a, j + NST)
    a.label("L3_red")
    stamp(a, 2)
    a(f"v_mul_u32_u24 v7, {ROWP}, v6")
    a(f"v_lshl_add_u32 v7, v5, 4, v7")
    a(f"s_mul_i32 s{sT0}, s{sWAVE}, {PART}")
    a(f"v_add_u32 v7, s{sT0}, v7")
    a("s_nop 4")
    for nb in range(5):
        for m in range(4):
            d = (nb * 4 + m) * 4
            a(f"ds_write_b128 v7, {ar(d,4)} offset:{m*16*ROWP + nb*64}")
    a("s_waitcnt lgkmcnt(0)")
    a("s_barrier")
    for r in range(5):
        b = FR + 16 * r
        for w in range(3):
            a(f"ds_read_b128 {vr(b+4*w,4)}, v{27+r} offset:{w*PART}")
        a(f"v_add_u32 v23, {3*PART}, v{27+r}")
        a(f"ds_read_b128 {vr(b+12,4)}, v23")
        if r == 2: a("s_waitcnt lgkmcnt(4)")
    for r in range(5):
        b = FR + 16 * r
        a(f"s_waitcnt lgkmcnt({min(15, (4-r)*4)})")
        a(f"v_lshlrev_b32 v24, 16, v{XR+2*r}")
        a(f"v_and_b32 v25, 0xffff0000, v{XR+2*r}")
        a(f"v_pk_add_f32 {vr(b,2)}, {vr(b,2)}, {vr(b+4,2)}")
        a(f"v_pk_add_f32 {vr(b+8,2)}, {vr(b+8,2)}, {vr(b+12,2)}")
        a(f"v_pk_add_f32 {vr(b,2)}, {vr(b,2)}, v[24:25]")
        a(f"v_lshlrev_b32 v24, 16, v{XR+2*r+1}")
        a(f"v_and_b32 v25, 0xffff0000, v{XR+2*r+1}")
        a(f"v_pk_add_f32 {vr(b+2,2)}, {vr(b+2,2)}, {vr(b+6,2)}")
        a(f"v_pk_add_f32 {vr(b+10,2)}, {vr(b+10,2)}, {vr(b+14,2)}")
        a(f"v_pk_add_f32 {vr(b+2,2)}, {vr(b+2,2)}, v[24:25]")
        a(f"v_pk_add_f32 {vr(b,2)}, {vr(b,2)}, {vr(b+8,2)}")
        a(f"v_pk_add_f32 {vr(b+2,2)}, {vr(b+2,2)}, {vr(b+10,2)}")
        a(f"v_cvt_pk_bf16_f32 v{b+4}, v{b}, v{b+1}")
        a(f"v_cvt_pk_bf16_f32 v{b+5}, v{b+2}, v{b+3}")
        a(f"buffer_store_dwordx2 {vr(b+4,2)}, v{XO+r}, {sr(sO,4)}, s47 offen")
    if STAMP: a("s_waitcnt vmcnt(0)")
    stamp(a, 3)
    stamp_flush(a, 11, 2, sWAVE, 18, 4, 24)
    a.label("L3_end")
    a("s_endpgm")
    return dict(name="k3_kernel", grid=256, block=256, lds=K3_LDS, vgpr=248+80, sgpr=102 if STAMP else 64, accum=248)
```

```python
import sys, importlib
from common import *
import k1

def build(kernels, out):
    hdr = open("cdna_kernels/" + NAME + ".s.ref").read().split("; Override launch")[0]
    a = Asm()
    infos = []
    for gen in kernels:
        start = len(a.lines)
        infos.append(gen(a))
        for p in check_linear(a.lines[start:], infos[-1]["name"]):
            print("HAZARD", p)
    s = hdr
    for i in infos:
        s += f"; @launch kernel={i['name']} grid=({i['grid']},1,1) block=({i['block']},1,1) lds={i['lds']}\n"
    s += '.amdgcn_target "amdgcn-amd-amdhsa--gfx950"\n.text\n'
    s += a.text()
    s += "Lcode_end:\n"
    s += '.section .rodata,"a"\n'
    for i in infos:
        s += kernel_desc(i["name"], i["vgpr"], i["sgpr"], i["accum"])
    open(out, "w").write(s)

if __name__ == "__main__":
    ks = [k1.gen_k1]
    try:
        import k2; ks.append(k2.gen_k2)
        import k3; ks.append(k3.gen_k3)
    except ImportError as e:
        print("missing", e)
    out = sys.argv[1] if len(sys.argv) > 1 else "cdna_kernels/" + NAME + ".s"
    build(ks, out)
```

```python
import math, struct
from asmlib import *

NAME = "parallel_sum__grouped_kv_mqa__mixer_gmlp__prompt"
WS_Q  = 0
WS_Z1 = 0x280000
WS_Z2 = 0x5E0000
WS_KV = 0x960000
WS_OH = 0x9A0000
WS_WT = 0xF80000
WS_ST = 0x1160000
WS_FL = 0x11A0000
WS_ZR = 0x11C0000
WS_END = WS_ZR + 0x380000
OH_TG = 96256
KVREC = 3584

def f2u(f):
    return struct.unpack("<I", struct.pack("<f", f))[0]
def hx(f):
    return "0x%08x" % f2u(f)

LOG2E = math.log2(math.e)
QSCALE = LOG2E / math.sqrt(20.0)
GC0 = -2.0 * math.sqrt(2.0 / math.pi) * LOG2E
GC1 = GC0 * 0.044715

def kernel_header(a, name):
    a.raw(f".globl {name}")
    a.raw(".p2align 8")
    a.raw(f".type {name},@function")
    a.label(name)

def kernel_desc(name, vgpr, sgpr, accum):
    return f""".p2align 6
.amdhsa_kernel {name}
  .amdhsa_next_free_vgpr {vgpr}
  .amdhsa_next_free_sgpr {sgpr}
  .amdhsa_accum_offset {accum}
  .amdhsa_group_segment_fixed_size 0
  .amdhsa_kernarg_size 104
  .amdhsa_user_sgpr_count 2
  .amdhsa_user_sgpr_kernarg_segment_ptr 1
  .amdhsa_system_sgpr_workgroup_id_x 1
.end_amdhsa_kernel
"""

def srd(a, d, base, size):
    a(f"s_mov_b32 s{d}, s{base}")
    a(f"s_mov_b32 s{d+1}, s{base+1}")
    a(f"s_mov_b32 s{d+2}, {size}")
    a(f"s_mov_b32 s{d+3}, 0x20000")

import os
STAMP = bool(os.environ.get("STAMP"))
WS_STAMP = 0x2000000
def stamp(a, i):
    if STAMP:
        a(f"s_memtime s[{64+2*i}:{65+2*i}]")
        a("s_waitcnt lgkmcnt(0)")
def stamp_flush(a, n, kidx, swave, ws_pair, nwaves, vt):
    if not STAMP: return
    a(f"s_memrealtime s[{64+2*n}:{65+2*n}]")
    a("s_waitcnt lgkmcnt(0)")
    a(f"s_mul_i32 s100, s2, {nwaves}")
    a(f"s_add_u32 s100, s100, s{swave}")
    a("s_lshl_b32 s100, s100, 6")
    a(f"s_add_u32 s100, s100, {WS_STAMP + kidx*0x100000}")
    a("s_mov_b64 exec, 1")
    a(f"v_mov_b32 v{vt}, s100")
    for i in range(n + 1):
        a(f"v_mov_b32 v{vt+1}, s{64+2*i}")
        a(f"global_store_dword v{vt}, v{vt+1}, s[{ws_pair}:{ws_pair+1}] offset:{4*i}")

def stamp_rt(a, i):
    if STAMP:
        a(f"s_memrealtime s[{64+2*i}:{65+2*i}]")
        a("s_waitcnt lgkmcnt(0)")

def code_prefetch(a, label, kb_per_wave, vtmp, vwave, vlane, sp=96):
    a(f"s_getpc_b64 s[{sp}:{sp+1}]")
    a.label(f"{label}_pc")
    a(f"s_sub_u32 s{sp}, s{sp}, {label}_pc-{label}")
    a(f"s_subb_u32 s{sp+1}, s{sp+1}, 0")
    a(f"v_lshlrev_b32 v{vtmp}, 7, v{vlane}")
    a(f"v_lshl_add_u32 v{vtmp}, v{vwave}, 13, v{vtmp}")
    a(f"v_min_u32 v{vtmp}, Lcode_end-{label}-4, v{vtmp}")
    a(f"global_load_dword v{vtmp+1}, v{vtmp}, s[{sp}:{sp+1}]")

DIAG = bool(os.environ.get("DIAG"))
WS_DG = 0x3000000
def diag(a, idx, swave, wsel, ws_pair, vt, sbase=90):
    if not DIAG: return
    L = f"Ldg{idx}"
    a(f"s_lshl_b32 s{sbase}, s2, 4")
    a(f"s_add_u32 s{sbase}, s{sbase}, s{swave}")
    a(f"s_cmp_lg_u32 s{sbase}, {wsel}")
    a(f"s_cbranch_scc1 {L}")
    a(f"s_memrealtime s[{sbase+2}:{sbase+3}]")
    a("s_waitcnt lgkmcnt(0)")
    a(f"v_mov_b32 v{vt}, {WS_DG + 4*idx}")
    a(f"v_mov_b32 v{vt+1}, s{sbase+2}")
    a(f"global_store_dword v{vt}, v{vt+1}, s[{ws_pair}:{ws_pair+1}]")
    a.label(L)
```

```python
from common import *

EXP = os.environ.get('EXP', '').split(',')
SLOT = 36864
SCR = 147456
CSR = SCR
STR = SCR + 2560
VTR = SCR + 4096
K1_LDS = VTR + 8192

sX, sA, sB, sC, sW, sPF = 20, 24, 28, 32, 36, 24
sWAVE, sRB, sG, sW4, sROLE, sTG, sLOOP, sSLOT = 40, 41, 42, 43, 44, 45, 46, 47
sXO, sAO, sBO, sCO, sAS, sBS, sCS_, sXD, sWD = 48, 49, 50, 51, 52, 53, 54, 55, 56
sT0, sT1, sT2, sT3 = 57, 58, 59, 60
sROT = 61
sHI = 62
sTY0, sTY1, sB0 = 48, 49, 50
sM = 52
vLANE = 1
vXA = 8; vWA = 12
vL16, vZ2O = 16, 17
vR = 18
vGC = 20
vN = 22
vSEL = 24
vMU = 28
BUF = (32, 44)
vCS = 56
ACC = (64, 80)
vT = 96
vD = 112
vSA = 120
vSQ = 122
vU = 32
vS1, vS2, vS3, vS4 = 124, 125, 126, 127
T_Q, T_Z1, T_Z2 = 0, 1, 2

def reads(a, s, nb):
    if 'xrd' in EXP: return
    buf = BUF[s & 1]
    a(f"ds_read_b128 {vr(buf,4)}, v{vXA+s}")
    for bi in range(nb):
        for h in range(2):
            a(f"ds_read_b64_tr_b16 {vr(buf+4+4*bi+2*h,2)}, v{vWA+s} offset:{bi*4096 + h*256}")

def mfmas(a, s, nb, stats):
    buf = BUF[s & 1]
    for bi in range(nb):
        if 'xmf' not in EXP: a(f"v_mfma_f32_32x32x16_bf16 {vr(ACC[bi],16)}, {vr(buf+4+4*bi,4)}, {vr(buf,4)}, {vr(ACC[bi],16)}")
        if s == 0 and 'xcs' not in EXP:
            a(f"v_mfma_f32_16x16x32_bf16 {vr(vCS+4*bi,4)}, {vr(buf+4+4*bi,4)}, {vr(vSEL,4)}, {vr(vCS+4*bi,4)}")
    if stats and 'xst' not in EXP:
        for r in range(4):
            t = vT + 2*(r & 1)
            a(f"v_lshlrev_b32 v{t}, 16, v{buf+r}")
            a(f"v_and_b32 v{t+1}, v{vT+4}, v{buf+r}")
            a(f"v_add_f32 v{vS1}, v{vS1}, v{t}")
            a(f"v_fmac_f32 v{vS2}, v{t}, v{t}")
            a(f"v_add_f32 v{vS3}, v{vS3}, v{t+1}")
            a(f"v_fmac_f32 v{vS4}, v{t+1}, v{t+1}")

def compute_loop(a, tag, nb, stats):
    nr = 1 + 2*nb
    a("s_barrier")
    stamp(a, 1); stamp_rt(a, 5)
    if tag == "xy": diag(a, 1, sWAVE, 8, 18, 124)
    reads(a, 0, nb)
    a(f"s_mov_b32 s{sLOOP}, 0")
    a.raw(".p2align 6")
    a.label(f"L1_loop{tag}")
    st = len(a.lines)
    for s in range(3):
        reads(a, s+1, nb)
        if s == 2:
            a(f"s_add_u32 s{sLOOP}, s{sLOOP}, 1")
            a(f"s_and_b32 s{sT0}, s{sLOOP}, 3")
            a(f"s_cselect_b32 s{sT0}, s{sT1}, s{sT2}")
            for i in range(4):
                a(f"v_add_u32 v{vXA+i}, s{sT0}, v{vXA+i}")
                a(f"v_add_u32 v{vWA+i}, s{sT0}, v{vWA+i}")
        a(f"s_waitcnt lgkmcnt({nr})")
        mfmas(a, s, nb, stats)
    a("s_waitcnt lgkmcnt(0)")
    a("s_barrier")
    reads(a, 0, nb)
    mfmas(a, 3, nb, stats)
    a(f"s_cmp_lt_u32 s{sLOOP}, 10")
    a(f"s_cbranch_scc1 L1_loop{tag}")
    for p in check_linear(a.lines[st:] + a.lines[st:], "k1 loop x2"): print("HAZARD", p)
    a("s_waitcnt lgkmcnt(0)")
    if tag == "xy": diag(a, 2, sWAVE, 8, 18, 124)
    stamp(a, 2); stamp_rt(a, 6)

def write_colsum(a, nb):
    a(f"v_and_b32 v{vT}, 1, v{vLANE}")
    a(f"v_lshlrev_b32 v{vT}, 8, v{vT}")
    a(f"v_lshrrev_b32 v{vT+1}, 4, v{vLANE}")
    a(f"v_lshl_add_u32 v{vT}, v{vT+1}, 6, v{vT}")
    a(f"s_lshl_b32 s{sT0}, s{sW4}, 2")
    a(f"s_lshl_b32 s{sT3}, s{sROLE}, 10")
    a(f"s_add_u32 s{sT3}, s{sT3}, {CSR}")
    a(f"s_add_u32 s{sT0}, s{sT0}, s{sT3}")
    a(f"v_add_u32 v{vT}, s{sT0}, v{vT}")
    n = 4 * nb
    for k in range(n): a(f"v_cvt_pk_bf16_f32 v{vT+2+k}, v{vCS+k}, v{vCS+k}")
    for k in range(n): a(f"v_lshlrev_b32 v{vT+2+k}, 16, v{vT+2+k}")
    for k in range(n): a(f"v_sub_f32 v{vT+2+k}, v{vCS+k}, v{vT+2+k}")
    for k in range(n): a(f"v_cvt_pk_bf16_f32 v{vT+2+k}, v{vCS+k}, v{vT+2+k}")
    a("s_mov_b32 exec_lo, 0x00030003")
    a("s_mov_b32 exec_hi, 0x00030003")
    for bi in range(nb):
        for r in range(4):
            a(f"ds_write_b32 v{vT}, v{vT+2+4*bi+r} offset:{bi*512 + r*16}")
    a("s_mov_b64 exec, -1")

def stats_addr(a, v):
    a(f"v_and_b32 v{v}, 31, v{vLANE}")
    a(f"v_lshlrev_b32 v{v}, 3, v{v}")
    a(f"s_lshl_b32 s{sT0}, s{sW4}, 8")
    a(f"s_add_u32 s{sT0}, s{sT0}, {STR}")
    a(f"v_add_u32 v{v}, s{sT0}, v{v}")

def correction(a, nb, have_stats):
    a(f"v_and_b32 v{vT}, 0x1f0, v{vL16}")
    a(f"v_add_u32 v{vT}, s{sT3}, v{vT}")
    if not have_stats:
        stats_addr(a, vT+1)
    a("s_waitcnt lgkmcnt(0)")
    a("s_barrier")
    if not have_stats:
        a(f"ds_read_b64 {vr(vT+2,2)}, v{vT+1}")
    for bi in range(nb):
        a(f"ds_read_b128 {vr(BUF[0]+4*bi,4)}, v{vT} offset:{bi*512}")
    if not have_stats:
        a(f"s_waitcnt lgkmcnt({nb})")
    a(f"v_cndmask_b32 v{vMU}, v{vT+2}, 0, {sr(sHI,2)}")
    a(f"v_mov_b32 v{vR}, v{vT+3}")
    for i in range(1, 4):
        a(f"v_mov_b32 v{vMU+i}, v{vMU}")
    a(f"v_mul_f32 v{vR+1}, {hx(QSCALE)}, v{vT+3}")
    a("s_waitcnt lgkmcnt(0)")
    for bi in reversed(range(nb)):
        a(f"v_mfma_f32_32x32x16_bf16 {vr(ACC[bi],16)}, {vr(BUF[0]+4*bi,4)}, {vr(vMU,4)}, {vr(ACC[bi],16)}")
    a("s_nop 11")
    stamp(a, 3)

def scale(a, acc, hi):
    sel = "op_sel:[0,1] op_sel_hi:[1,1]" if hi else "op_sel_hi:[1,0]"
    for i in range(8):
        a(f"v_pk_mul_f32 {vr(acc+2*i,2)}, {vr(acc+2*i,2)}, {vr(vR,2)} {sel}")

def gelu(a, acc):
    scale(a, acc, False)
    for i in range(8):
        a(f"v_pk_mul_f32 {vr(vT+2*i,2)}, {vr(acc+2*i,2)}, {vr(acc+2*i,2)}")
    for i in range(8):
        a(f"v_pk_fma_f32 {vr(vT+2*i,2)}, {vr(vT+2*i,2)}, {vr(vGC,2)}, {vr(vGC,2)} op_sel:[0,0,1] op_sel_hi:[1,0,1]")
    for i in range(8):
        a(f"v_pk_mul_f32 {vr(vT+2*i,2)}, {vr(vT+2*i,2)}, {vr(acc+2*i,2)}")
    for i in range(16):
        a(f"v_exp_f32 v{vT+i}, v{vT+i}")
    for i in range(8):
        a(f"v_pk_add_f32 {vr(vT+2*i,2)}, {vr(vT+2*i,2)}, 1.0 op_sel_hi:[1,0]")
    for i in range(16):
        a(f"v_rcp_f32 v{vT+i}, v{vT+i}")
    for i in range(8):
        a(f"v_pk_mul_f32 {vr(acc+2*i,2)}, {vr(acc+2*i,2)}, {vr(vT+2*i,2)}")

def pack(a, acc, d=vD):
    for i in range(8):
        a(f"v_cvt_pk_bf16_f32 v{d+i}, v{acc+2*i}, v{acc+2*i+1}")

def swaps(a, d=vD, n=2):
    a("s_nop 1")
    for i in range(n):
        a(f"v_permlane32_swap_b32 v{d+4*i}, v{d+4*i+2}")
        a(f"v_permlane32_swap_b32 v{d+4*i+1}, v{d+4*i+3}")

def store_lin(a, soff, d=vD):
    fx = os.environ.get("ST1", "")
    a(f"buffer_store_dwordx4 {vr(d,4)}, v{vL16}, {sr(sW,4)}, s{soff} offen {fx}")
    a(f"buffer_store_dwordx4 {vr(d+4,4)}, v{vL16}, {sr(sW,4)}, s{soff} offen offset:1024 {fx}")
    a("s_nop 1")

def epi_q(a, acc, sblk):
    scale(a, acc, True)
    pack(a, acc)
    swaps(a)
    a(f"s_mul_i32 s{sT0}, s{sTG}, 40960")
    a(f"s_lshl_b32 s{sT1}, s{sblk}, 11")
    a(f"s_add_u32 s{sT0}, s{sT0}, s{sT1}")
    if WS_Q: a(f"s_add_u32 s{sT0}, s{sT0}, {WS_Q}")
    store_lin(a, sT0)

def store_z1(a, acc, sblk):
    pack(a, acc)
    a(f"s_mul_i32 s{sT0}, s{sTG}, {27*2048}")
    a(f"s_lshl_b32 s{sT1}, s{sblk}, 11")
    a(f"s_add_u32 s{sT0}, s{sT0}, s{sT1}")
    a(f"s_add_u32 s{sT0}, s{sT0}, {WS_Z1}")
    store_lin(a, sT0)

def z2stats(a, acc):
    for i in range(8):
        a(f"v_pk_add_f32 {vr(vSA,2)}, {vr(vSA,2)}, {vr(acc+2*i,2)}")
        a(f"v_pk_fma_f32 {vr(vSQ,2)}, {vr(acc+2*i,2)}, {vr(acc+2*i,2)}, {vr(vSQ,2)}")

def store_z2(a, acc, sblk):
    pack(a, acc)
    a(f"s_lshl_b32 s{sT0}, s{sblk}, 17")
    a(f"s_lshl_b32 s{sT1}, s{sTG}, 11")
    a(f"s_add_u32 s{sT0}, s{sT0}, s{sT1}")
    a(f"s_add_u32 s{sT0}, s{sT0}, {WS_ZR - 27*131072}")
    store_lin(a, sT0)

def epi_c(a):
    acc = ACC[0]
    u = vT
    a(f"s_cmp_eq_u32 s{sG}, 0")
    a(f"s_cbranch_scc1 L1_ck")
    a(f"s_cmp_eq_u32 s{sG}, 1")
    a(f"s_cbranch_scc1 L1_cv")
    a(f"s_add_u32 s{sB0}, s{sG}, 8")
    a(f"s_cmp_lt_u32 s{sG}, 10")
    a(f"s_cbranch_scc1 L1_q0")
    a(f"s_add_u32 s{sB0}, s{sG}, 4")
    a(f"s_cmp_lt_u32 s{sG}, 14")
    a(f"s_cbranch_scc1 L1_fin")
    a(f"s_branch L1_q0")
    a.label(f"L1_ck")
    scale(a, acc, False)
    pack(a, acc)
    a(f"v_mov_b32 v{u}, 0x3f803f80")
    a(f"v_mov_b32 v{u+1}, 0x00003f80")
    a(f"v_cndmask_b32 v{vD+4}, v{vD+4}, v{u}, {sr(sHI,2)}")
    a(f"v_cndmask_b32 v{vD+5}, v{vD+5}, v{u+1}, {sr(sHI,2)}")
    swaps(a, n=1)
    a(f"s_mul_i32 s{sT0}, s{sTG}, {KVREC}")
    a(f"s_add_u32 s{sT0}, s{sT0}, {WS_KV}")
    a(f"v_lshlrev_b32 v{u+2}, 3, v{vLANE}")
    a(f"buffer_store_dwordx4 {vr(vD,4)}, v{vL16}, {sr(sW,4)}, s{sT0} offen")
    a(f"buffer_store_dwordx2 {vr(vD+4,2)}, v{u+2}, {sr(sW,4)}, s{sT0} offen offset:3072")
    a(f"s_branch L1_fin")
    a.label(f"L1_cv")
    scale(a, acc, False)
    pack(a, acc)
    a(f"v_mov_b32 v{u}, 0x00003f80")
    a(f"v_cndmask_b32 v{vD+4}, v{vD+4}, v{u}, {sr(sHI,2)}")
    a(f"v_cndmask_b32 v{vD+5}, v{vD+5}, 0, {sr(sHI,2)}")
    a(f"v_cndmask_b32 v{vD+6}, v{u}, 0, {sr(sHI,2)}")
    a(f"v_mov_b32 v{vD+7}, 0")
    a(f"v_and_b32 v{u+1}, 31, v{vLANE}")
    a(f"v_lshlrev_b32 v{u+1}, 6, v{u+1}")
    a(f"v_lshrrev_b32 v{u+2}, 5, v{vLANE}")
    a(f"v_lshl_add_u32 v{u+1}, v{u+2}, 3, v{u+1}")
    a(f"s_lshl_b32 s{sT0}, s{sW4}, 11")
    a(f"s_add_u32 s{sT0}, s{sT0}, {VTR}")
    a(f"v_add_u32 v{u+1}, s{sT0}, v{u+1}")
    for k in range(4):
        a(f"ds_write_b64 v{u+1}, {vr(vD+2*k,2)} offset:{16*k}")
    a(f"v_bfe_u32 v{u+3}, v{vLANE}, 2, 2")
    a(f"v_lshl_add_u32 v{u+3}, v{u+2}, 2, v{u+3}")
    a(f"v_lshlrev_b32 v{u+3}, 6, v{u+3}")
    a(f"v_bfe_u32 v{u+4}, v{vLANE}, 4, 1")
    a(f"v_lshl_add_u32 v{u+3}, v{u+4}, 5, v{u+3}")
    a(f"v_and_b32 v{u+4}, 3, v{vLANE}")
    a(f"v_lshl_add_u32 v{u+3}, v{u+4}, 3, v{u+3}")
    a(f"v_add_u32 v{u+3}, s{sT0}, v{u+3}")
    a("s_waitcnt lgkmcnt(0)")
    for k in range(4):
        a(f"ds_read_b64_tr_b16 {vr(vD+2*k,2)}, v{u+3} offset:{512*k}")
    a(f"s_mul_i32 s{sT0}, s{sTG}, {KVREC}")
    a(f"s_add_u32 s{sT0}, s{sT0}, {WS_KV + 1024}")
    a("s_waitcnt lgkmcnt(0)")
    store_lin(a, sT0)
    a(f"s_branch L1_fin")

zX0, zX1, zA, zB, zC, zPF, zZERO, zNL = 8, 9, 10, 11, 12, 13, 14, 16

def z_issue(a):
    a0 = a
    FL = os.environ.get("DMAF", "")
    class A2:
        def __call__(self, t): a0(t.replace(" lds", f" {FL} lds") if FL else t)
        def label(self, l): a0.label(l)
    a = A2()
    a(f"s_add_u32 s{sT0}, s{sXD}, s{sSLOT}")
    a(f"s_add_u32 s{sT1}, s{sWD}, s{sSLOT}")
    a(f"s_mov_b32 m0, s{sT0}")
    a(f"s_add_u32 s{sT2}, s{sXO}, {16*1280}")
    a(f"buffer_load_dwordx4 v{zX0}, {sr(sX,4)}, s{sXO} offen lds")
    a(f"s_add_u32 m0, s{sT0}, 1024")
    a(f"s_add_u32 s{sSLOT}, s{sSLOT}, {SLOT}")
    a(f"buffer_load_dwordx4 v{zX1}, {sr(sX,4)}, s{sXO} offen lds")
    a(f"s_add_u32 m0, s{sT0}, 2048")
    a(f"s_add_u32 s{sXO}, s{sXO}, 128")
    a(f"buffer_load_dwordx4 v{zX0}, {sr(sX,4)}, s{sT2} offen lds")
    a(f"s_add_u32 m0, s{sT0}, 3072")
    a(f"s_cmp_eq_u32 s{sSLOT}, {4*SLOT}")
    a(f"buffer_load_dwordx4 v{zX1}, {sr(sX,4)}, s{sT2} offen lds")
    a(f"s_cselect_b32 s{sSLOT}, 0, s{sSLOT}")
    a(f"s_mov_b32 m0, s{sT1}")
    a("s_nop 0")
    a(f"buffer_load_dwordx4 v{zA}, {sr(sA,4)}, s{sAO} offen lds")
    a(f"s_add_u32 m0, s{sT1}, {4096-64}")
    a("s_nop 0")
    a(f"buffer_load_dwordx4 v{zA}, {sr(sA,4)}, s{sAO} offen offset:64 lds")
    a(f"s_add_u32 m0, s{sT1}, 8192")
    a(f"s_add_u32 s{sAO}, s{sAO}, s{sAS}")
    a(f"buffer_load_dwordx4 v{zB}, {sr(sB,4)}, s{sBO} offen lds")
    a(f"s_add_u32 m0, s{sT1}, {12288-64}")
    a("s_nop 0")
    a(f"buffer_load_dwordx4 v{zB}, {sr(sB,4)}, s{sBO} offen offset:64 lds")
    a(f"s_add_u32 m0, s{sT1}, 16384")
    a(f"s_add_u32 s{sBO}, s{sBO}, s{sBS}")
    a(f"buffer_load_dwordx4 v{zC}, {sr(sC,4)}, s{sCO} offen lds")
    a(f"s_add_u32 s{sCO}, s{sCO}, s{sCS_}")
    a(f"s_add_u32 s{sROT}, s{sROT}, 1")
    a(f"s_cmp_lg_u32 s{sROT}, 10")
    a("s_cbranch_scc1 L1_nowrap")
    a(f"s_sub_u32 s{sXO}, s{sXO}, 1280")
    for o, st in ((sAO, sAS), (sBO, sBS), (sCO, sCS_)):
        a(f"s_mul_i32 s{sT0}, s{st}, 10")
        a(f"s_sub_u32 s{o}, s{o}, s{sT0}")
    a.label("L1_nowrap")

def gen_loader(a):
    a(f"v_lshrrev_b32 v3, 3, v{vLANE}")
    a(f"v_mul_u32_u24 v3, 1280, v3")
    a(f"v_lshrrev_b32 v4, 4, v{vLANE}")
    a(f"v_xor_b32 v4, v4, v{vLANE}")
    a(f"v_and_b32 v4, 7, v4")
    a(f"v_lshl_add_u32 v{zX0}, v4, 4, v3")
    a(f"v_xor_b32 v4, 4, v4")
    a(f"v_lshl_add_u32 v{zX1}, v4, 4, v3")
    a(f"v_add_u32 v{zX1}, {8*1280}, v{zX1}")
    a(f"v_lshrrev_b32 v6, 2, v{vLANE}")
    a(f"s_lshl_b32 s{sT0}, s{sW4}, 4")
    a(f"v_add_u32 v6, s{sT0}, v6")
    a(f"v_and_b32 v7, 3, v{vLANE}")
    a(f"v_lshlrev_b32 v7, 4, v7")
    a(f"v_mov_b32 v{zZERO}, 0")
    a(f"v_lshlrev_b32 v{zPF}, 7, v{vLANE}")
    a(f"s_lshl_b32 s{sXD}, s{sW4}, 12")
    a(f"s_lshl_b32 s{sWD}, s{sW4}, 10")
    a(f"s_add_u32 s{sWD}, s{sWD}, 16384")
    a(f"s_mul_i32 s{sXO}, s{sTG}, {32*1280}")
    a(f"s_mov_b32 s{sSLOT}, 0")
    def pitch_col(cmp, colA, colB, sO, sStep, vdst):
        a(f"s_add_i32 s{sT0}, s{sG}, {colA}")
        a(f"s_add_i32 s{sT1}, s{sG}, {colB}")
        a(cmp)
        a(f"s_cselect_b32 s{sT2}, 27, 10")
        a(f"s_cselect_b32 s{sO}, s{sT0}, s{sT1}")
        a(f"s_lshl_b32 s{sT2}, s{sT2}, 7")
        a(f"s_lshl_b32 s{sStep}, s{sT2}, 6")
        a(f"s_lshl_b32 s{sO}, s{sO}, 7")
        a(f"v_mad_u32_u24 v{vdst}, v6, s{sT2}, v7")
    pitch_col(f"s_cmp_le_u32 s{sG}, 13", 13, -14, sAO, sAS, zA)
    a(f"s_mul_i32 s{sA+2}, s{sT2}, 640")
    pitch_col(f"s_cmp_ge_u32 s{sG}, 3", -3, 2, sBO, sBS, zB)
    a(f"s_mul_i32 s{sB+2}, s{sT2}, 640")
    a(f"s_add_u32 s{sT0}, s{sG}, 8")
    a(f"s_add_u32 s{sT1}, s{sG}, 4")
    a(f"s_cmp_lt_u32 s{sG}, 10")
    a(f"s_cselect_b32 s{sT0}, s{sT0}, s{sT1}")
    a(f"s_lshl_b32 s{sT0}, s{sT0}, 6")
    a(f"s_movk_i32 s{sT1}, 1280")
    a(f"s_cmp_le_u32 s{sG}, 1")
    a(f"s_cselect_b32 s{sT2}, 40, s{sT1}")
    a(f"s_cselect_b32 s{sCO}, 0, s{sT0}")
    a(f"s_mul_i32 s{sC+2}, s{sT2}, 640")
    a(f"s_sub_u32 s{sT1}, s{sG}, 10")
    a(f"s_cmp_lt_u32 s{sT1}, 4")
    a(f"s_cselect_b32 s{sC+2}, 0, s{sC+2}")
    a(f"s_lshl_b32 s{sCS_}, s{sT2}, 6")
    a(f"v_mad_u32_u24 v{zC}, v6, s{sT2}, v7")
    RG, RR = (int(v) for v in os.environ.get("ROT1", "5,10").split(","))
    a(f"s_and_b32 s{sT0}, s{sG}, 7")
    a(f"s_mul_i32 s{sT0}, s{sT0}, {RG}")
    a(f"s_and_b32 s{sT1}, s{sRB}, 3")
    a(f"s_mul_i32 s{sT1}, s{sT1}, {RR}")
    a(f"s_add_u32 s{sT0}, s{sT0}, s{sT1}")
    a(f"s_lshr_b32 s{sROT}, s{sT0}, 2")
    a(f"s_sub_u32 s{sT0}, s{sROT}, 10")
    a(f"s_cselect_b32 s{sROT}, s{sROT}, s{sT0}")
    a(f"s_lshl_b32 s{sT0}, s{sROT}, 7")
    a(f"s_add_u32 s{sXO}, s{sXO}, s{sT0}")
    for o, st in ((sAO, sAS), (sBO, sBS), (sCO, sCS_)):
        a(f"s_mul_i32 s{sT0}, s{st}, s{sROT}")
        a(f"s_add_u32 s{o}, s{o}, s{sT0}")
    for r in (sX+3, sA+3, sB+3, sC+3, sW+3):
        a(f"s_mov_b32 s{r}, 0x20000")
    a(f"s_mov_b32 s{sX+2}, {2048*1280}")
    a(f"s_mov_b32 s{sW+2}, {WS_END}")
    a("s_waitcnt lgkmcnt(0)")
    stamp(a, 8)
    a(f"s_mov_b64 {sr(sX,2)}, s[4:5]")
    a(f"s_mov_b64 {sr(sW,2)}, s[18:19]")
    a(f"s_cmp_le_u32 s{sG}, 13")
    a(f"s_cselect_b64 {sr(sA,2)}, s[12:13], s[6:7]")
    a(f"s_cmp_ge_u32 s{sG}, 3")
    a(f"s_cselect_b64 {sr(sB,2)}, s[12:13], s[6:7]")
    a(f"s_cmp_eq_u32 s{sG}, 0")
    a(f"s_cselect_b64 {sr(sC,2)}, s[8:9], s[10:11]")
    a(f"s_cmp_le_u32 s{sG}, 1")
    a(f"s_cselect_b64 {sr(sC,2)}, {sr(sC,2)}, s[6:7]")
    if 'nox' in EXP: a(f"s_mov_b32 s{sX+2}, 0")
    if 'noab' in EXP:
        a(f"s_mov_b32 s{sA+2}, 0"); a(f"s_mov_b32 s{sB+2}, 0")
    if 'noc' in EXP: a(f"s_mov_b32 s{sC+2}, 0")
    a(f"s_mov_b32 s{sLOOP}, 0")
    a.label("L1_zloop")
    if 'xdma' not in EXP: z_issue(a)
    a(f"s_add_u32 s{sLOOP}, s{sLOOP}, 1")
    NPRO = int(os.environ.get("NPRO", "2"))
    a(f"s_cmp_eq_u32 s{sLOOP}, {NPRO}")
    a("s_cbranch_scc1 L1_zfirst")
    a(f"s_cmp_lt_u32 s{sLOOP}, 4")
    a("s_cbranch_scc1 L1_zloop")
    a(f"s_cmp_eq_u32 s{sLOOP}, 10")
    a("s_cbranch_scc1 L1_ztail")
    a(f"s_waitcnt vmcnt({54 if 'deep' in EXP else 18})")
    a("s_barrier")
    a("s_branch L1_zloop")
    a.label("L1_zfirst")
    stamp(a, 9)
    a(f"s_waitcnt vmcnt({9*(NPRO-1)})")
    a("s_barrier")
    stamp(a, 1)
    a("s_branch L1_zloop")
    a.label("L1_ztail")
    a("s_waitcnt vmcnt(18)")
    a("s_barrier")
    a("s_load_dwordx2 s[4:5], s[0:1], 56")
    a("s_load_dwordx2 s[6:7], s[0:1], 32")
    a("s_load_dwordx2 s[8:9], s[0:1], 72")
    a(f"s_and_b32 s{sT0}, s2, 7")
    a(f"s_lshl_b32 s{sT0}, s{sT0}, 7")
    a(f"s_lshr_b32 s{sT1}, s2, 3")
    a(f"s_lshl_b32 s{sT1}, s{sT1}, 2")
    a(f"s_add_u32 s{sT0}, s{sT0}, s{sT1}")
    a(f"s_add_u32 s{sT0}, s{sT0}, s{sW4}")
    a(f"s_lshl_b32 s{sT1}, s{sT0}, 13")
    a(f"s_lshl1_add_u32 s{sAO}, s2, s{sW4}")
    a(f"s_mul_i32 s{sBO}, s{sAO}, 6554")
    a(f"s_lshr_b32 s{sBO}, s{sBO}, 16")
    a(f"s_mul_i32 s{sT0}, s{sBO}, 10")
    a(f"s_sub_u32 s{sCO}, s{sAO}, s{sT0}")
    a(f"s_sub_u32 s{sT0}, s{sBO}, 20")
    a(f"s_cselect_b32 s{sT0}, s{sBO}, s{sT0}")
    a(f"s_mul_i32 s{sT2}, s{sT0}, {32*1280}")
    a(f"s_lshl_b32 s{sT0}, s{sCO}, 7")
    a(f"s_add_u32 s{sT2}, s{sT2}, s{sT0}")
    a(f"s_add_u32 s{sXD}, s{sXD}, {2*SLOT}")
    a(f"v_lshrrev_b32 v16, 3, v{vLANE}")
    a(f"v_mul_u32_u24 v16, 1280, v16")
    a(f"v_and_b32 v17, 7, v{vLANE}")
    a(f"v_lshl_add_u32 v{zA}, v17, 4, v16")
    a("s_waitcnt lgkmcnt(0)")
    srd(a, sA, 4, 2048*4096)
    a(f"s_cmp_lt_u32 s{sBO}, 20")
    a(f"s_cselect_b64 {sr(sB,2)}, s[6:7], s[8:9]")
    a(f"s_mov_b32 s{sT0}, {640*1280}")
    a(f"s_cselect_b32 s{sB+2}, s{sT0}, {864*1280}")
    a(f"s_cmp_lt_u32 s{sW4}, 2")
    a(f"s_cselect_b32 s{sAO}, s{sAO}, 470")
    a(f"s_cmp_ge_u32 s{sAO}, 470")
    a("s_cbranch_scc1 L1_notr")
    for k in range(4):
        a(f"s_add_u32 m0, s{sXD}, {1024*k}")
        a("s_nop 0")
        a(f"buffer_load_dwordx4 v{zA}, {sr(sB,4)}, s{sT2} offen lds")
        a(f"s_add_u32 s{sT2}, s{sT2}, {8*1280}")
    a(f"buffer_load_dword v20, v{zPF}, {sr(sA,4)}, s{sT1} offen")
    a(f"s_waitcnt vmcnt(14)")
    a("s_barrier")
    a(f"s_waitcnt vmcnt(5)")
    a("s_barrier")
    a("s_barrier")
    a("s_barrier")
    a(f"v_bfe_u32 v16, v{vLANE}, 2, 2")
    a(f"v_and_b32 v17, 3, v{vLANE}")
    a(f"v_lshlrev_b32 v17, 3, v17")
    a(f"v_lshl_add_u32 v16, v16, 7, v17")
    a(f"v_add_u32 v16, s{sXD}, v16")
    a(f"v_lshrrev_b32 v17, 4, v{vLANE}")
    a(f"v_lshl_add_u32 v8, v17, 10, v16")
    a(f"v_add_u32 v9, 512, v8")
    a(f"v_lshrrev_b32 v18, 1, v17")
    a(f"v_lshl_add_u32 v10, v18, 11, v16")
    a(f"v_and_b32 v18, 1, v17")
    a(f"v_lshl_add_u32 v10, v18, 9, v10")
    a(f"v_add_u32 v11, 1024, v10")
    a(f"s_cmp_ge_u32 s{sBO}, 20")
    a(f"s_cselect_b64 vcc, -1, 0")
    a(f"v_cndmask_b32 v12, v8, v10, vcc")
    a(f"v_cndmask_b32 v13, v9, v11, vcc")
    a(f"v_lshlrev_b32 v14, 4, v{vLANE}")
    a("s_waitcnt vmcnt(1)")
    for q in range(4):
        a(f"ds_read_b64_tr_b16 {vr(24+4*q,2)}, v12 offset:{32*q}")
        a(f"ds_read_b64_tr_b16 {vr(26+4*q,2)}, v13 offset:{32*q}")
    for q in range(4):
        a(f"s_lshl2_add_u32 s{sT0}, s{sCO}, {q}")
        a(f"s_mul_i32 s{sT1}, s{sT0}, 13108")
        a(f"s_lshr_b32 s{sT1}, s{sT1}, 16")
        a(f"s_mul_i32 s{sT2}, s{sT1}, {47*5 - 5}")
        a(f"s_add_u32 s{sT0}, s{sT0}, s{sT2}")
        a(f"s_mul_i32 s{sT2}, s{sBO}, 5")
        a(f"s_add_u32 s{sT0}, s{sT0}, s{sT2}")
        a(f"s_lshl_b32 s{sT0}, s{sT0}, 10")
        a(f"s_add_u32 s{sT0}, s{sT0}, {WS_WT}")
        a(f"s_waitcnt lgkmcnt({6-2*q})")
        a(f"buffer_store_dwordx4 {vr(24+4*q,4)}, v14, {sr(sW,4)}, s{sT0} offen")
    a("s_branch L1_fin")
    a.label("L1_notr")
    a(f"buffer_load_dword v20, v{zPF}, {sr(sA,4)}, s{sT1} offen")
    a(f"s_waitcnt vmcnt(10)")
    a("s_barrier")
    a(f"s_waitcnt vmcnt(1)")
    a("s_barrier")
    a("s_barrier")
    a("s_barrier")
    a("s_branch L1_fin")

def gen_k1(a):
    kernel_header(a, "k1_kernel")
    a("s_cmp_ge_u32 s2, 256")
    a("s_cbranch_scc1 L1_end")
    if DIAG: a('s_memrealtime s[92:93]')
    stamp(a, 0); stamp_rt(a, 10)
    a("s_load_dwordx8 s[4:11], s[0:1], 0")
    a("s_load_dwordx2 s[12:13], s[0:1], 48")
    a("s_load_dwordx4 s[16:19], s[0:1], 88")
    a(f"v_and_b32 v{vLANE}, 63, v0")
    a("v_lshrrev_b32 v2, 6, v0")
    a(f"s_and_b32 s{sT0}, s2, 7")
    a(f"v_readfirstlane_b32 s{sWAVE}, v2")
    a(f"s_lshr_b32 s{sT1}, s2, 3")
    a(f"s_lshr_b32 s{sRB}, s{sT0}, 1")
    a(f"s_lshl_b32 s{sRB}, s{sRB}, 2")
    a(f"s_lshr_b32 s{sT2}, s{sT1}, 3")
    a(f"s_add_u32 s{sRB}, s{sRB}, s{sT2}")
    a(f"s_and_b32 s{sG}, s{sT0}, 1")
    a(f"s_lshl_b32 s{sG}, s{sG}, 3")
    a(f"s_and_b32 s{sT2}, s{sT1}, 7")
    a(f"s_add_u32 s{sG}, s{sG}, s{sT2}")
    a(f"s_and_b32 s{sW4}, s{sWAVE}, 3")
    a(f"s_lshl_b32 s{sTG}, s{sRB}, 2")
    a(f"s_add_u32 s{sTG}, s{sTG}, s{sW4}")
    a(f"s_lshr_b32 s{sROLE}, s{sWAVE}, 2")
    a(f"s_sub_u32 s{sROLE}, s{sROLE}, 1")
    a("s_cbranch_scc0 L1_comp")
    gen_loader(a)

    a.label("L1_comp")
    if 'nocpf' not in EXP:
        a("v_subrev_u32 v2, 4, v2")
        code_prefetch(a, "k1_kernel", 8, 126, 2, vLANE, sp=60)
    a(f"v_lshlrev_b32 v{vL16}, 4, v{vLANE}")
    a(f"s_mov_b32 s{sHI}, 0")
    a(f"s_mov_b32 s{sHI+1}, -1")
    a(f"v_and_b32 v3, 31, v{vLANE}")
    a(f"v_lshrrev_b32 v4, 5, v{vLANE}")
    a(f"v_mov_b32 v5, s{sW4}")
    a(f"v_lshl_add_u32 v6, v5, 5, v3")
    a(f"v_lshl_add_u32 v7, v5, 1, v4")
    a(f"v_bfe_u32 v{vXA+1}, v3, 1, 3")
    a(f"v_xor_b32 v7, v7, v{vXA+1}")
    a(f"v_lshlrev_b32 v7, 4, v7")
    a(f"v_lshl_add_u32 v{vXA}, v6, 7, v7")
    for s in range(1, 4):
        a(f"v_xor_b32 v{vXA+s}, {32*s}, v{vXA}")
    a(f"v_lshlrev_b32 v6, 10, v5")
    a(f"v_lshl_add_u32 v6, v4, 9, v6")
    a(f"v_bfe_u32 v7, v{vLANE}, 2, 2")
    a(f"v_lshl_add_u32 v6, v7, 6, v6")
    a(f"v_bfe_u32 v7, v{vLANE}, 4, 1")
    a(f"v_lshl_add_u32 v6, v7, 5, v6")
    a(f"v_and_b32 v7, 3, v{vLANE}")
    a(f"v_lshl_add_u32 v6, v7, 3, v6")
    a(f"s_lshl_b32 s{sT0}, s{sROLE}, 13")
    a(f"s_add_u32 s{sT0}, s{sT0}, 16384")
    a(f"v_add_u32 v{vWA}, s{sT0}, v6")
    for s in range(1, 4):
        a(f"v_xor_b32 v{vWA+s}, {1024*s}, v{vWA}")
    a(f"v_lshlrev_b32 v6, 3, v3")
    a(f"v_lshl_add_u32 v{vZ2O}, v4, 2, v6")
    a(f"v_bfe_u32 v{vSEL}, v{vLANE}, 4, 1")
    a(f"v_and_b32 v{vSEL+1}, 15, v{vLANE}")
    a(f"v_cmp_eq_u32 vcc, v{vSEL}, v{vSEL+1}")
    a(f"v_mov_b32 v{vSEL+1}, 0x3f803f80")
    a(f"v_mov_b32 v{vGC}, {hx(GC1)}")
    a(f"v_cndmask_b32 v{vSEL}, 0, v{vSEL+1}, vcc")
    a(f"v_mov_b32 v{vGC+1}, {hx(GC0)}")
    for i in range(1, 4):
        a(f"v_mov_b32 v{vSEL+i}, v{vSEL}")
    for r in list(range(vCS, vCS+8+32)) + list(range(vSA, vSA+4)):
        a(f"v_mov_b32 v{r}, 0")
    a(f"s_mov_b32 s{sT1}, {SLOT}")
    a(f"s_mov_b32 s{sT2}, {-3*SLOT}")
    a("s_waitcnt lgkmcnt(0)")
    srd(a, sW, 18, WS_END)
    diag(a, 0, sWAVE, 8, 18, 124, pre=True)
    a(f"s_cmp_eq_u32 s{sROLE}, 2")
    a("s_cbranch_scc1 L1_S")

    compute_loop(a, "xy", 2, False)
    write_colsum(a, 2)
    a(f"s_cmp_eq_u32 s{sROLE}, 0")
    a(f"s_cselect_b32 s{sT0}, 13, -3")
    a(f"s_cselect_b32 s{sT1}, -14, 2")
    a(f"s_add_i32 s{sT0}, s{sT0}, s{sG}")
    a(f"s_add_i32 s{sT1}, s{sT1}, s{sG}")
    a(f"s_cmp_lt_u32 s{sT0}, 27")
    a(f"s_cselect_b32 s{sB0}, s{sT0}, s{sT1}")
    a(f"s_cselect_b32 s{sTY0}, 1, 0")
    a(f"s_lshl_b32 s{sB0}, s{sB0}, 1")
    correction(a, 2, False)
    a(f"s_add_u32 s{sT2}, s{sB0}, 1")
    a(f"s_cmp_eq_u32 s{sTY0}, 1")
    a("s_cbranch_scc1 L1_g")
    epi_q(a, ACC[1], sT2)
    a.label("L1_q0")
    epi_q(a, ACC[0], sB0)
    a("s_branch L1_fin")
    a.label("L1_g")
    gelu(a, ACC[1])
    a(f"s_cmp_ge_u32 s{sT2}, 27")
    a("s_cbranch_scc1 L1_g1s")
    store_z1(a, ACC[1], sT2)
    a("s_branch L1_g0")
    a.label("L1_g1s")
    store_z2(a, ACC[1], sT2)
    z2stats(a, ACC[1])
    a.label("L1_g0")
    gelu(a, ACC[0])
    a(f"s_cmp_ge_u32 s{sB0}, 27")
    a("s_cbranch_scc1 L1_g0s")
    store_z1(a, ACC[0], sB0)
    a(f"s_cmp_ge_u32 s{sT2}, 27")
    a("s_cbranch_scc0 L1_fin")
    a("s_branch L1_pub")
    a.label("L1_g0s")
    store_z2(a, ACC[0], sB0)
    z2stats(a, ACC[0])
    a.label("L1_pub")
    stamp(a, 4)
    a(f"v_add_f32 v{vSA}, v{vSA}, v{vSA+1}")
    a(f"v_add_f32 v{vSQ}, v{vSQ}, v{vSQ+1}")
    a(f"s_lshl_b32 s{sT3}, s{sTG}, 12")
    a(f"s_add_u32 s{sT3}, s{sT3}, {WS_ST}")
    a(f"v_permlane32_swap_b32 v{vSA}, v{vSQ}")
    a(f"s_lshl_b32 s{sT0}, s{sG}, 8")
    a(f"s_add_u32 s{sT0}, s{sT0}, s{sT3}")
    a(f"v_add_f32 v{vSA}, v{vSA}, v{vSQ}")
    a(f"buffer_store_dword v{vSA}, v{vZ2O}, {sr(sW,4)}, s{sT0} offen")
    a("s_branch L1_fin")

    a.label("L1_S")
    a(f"s_lshl_b32 s{sT0}, s{sW4}, 8")
    a(f"s_or_b32 s{sT0}, s{sT0}, s2")
    a(f"s_cmp_ge_u32 s{sT0}, 14")
    a("s_cbranch_scc1 L1_nolead")
    a(f"s_lshl_b32 s{sT0}, s2, 8")
    a(f"s_add_u32 s{sT0}, s{sT0}, {WS_FL}")
    a(f"buffer_store_dword v{vSA}, v{vZ2O}, {sr(sW,4)}, s{sT0} offen")
    a.label("L1_nolead")
    a("s_waitcnt vmcnt(0)")
    for r in (vS1, vS2, vS3, vS4):
        a(f"v_mov_b32 v{r}, 0")
    a(f"v_mov_b32 v{vT+4}, 0xffff0000")
    a("s_setprio 1")
    compute_loop(a, "s", 1, True)
    a("s_setprio 3")
    a(f"v_add_f32 v{vS1}, v{vS1}, v{vS3}")
    a(f"v_add_f32 v{vS2}, v{vS2}, v{vS4}")
    stats_addr(a, vS3)
    a(f"v_permlane32_swap_b32 v{vS1}, v{vS2}")
    a("s_nop 0")
    a(f"v_add_f32 v{vS1}, v{vS1}, v{vS2}")
    a(f"v_mul_f32 v{vS1}, {hx(1.0/640)}, v{vS1}")
    a(f"v_mov_b32 v{vS2}, v{vS1}")
    a("s_nop 1")
    a(f"v_permlane32_swap_b32 v{vS1}, v{vS2}")
    a("s_nop 0")
    a(f"v_cvt_pk_bf16_f32 v{vD}, -v{vS1}, -v{vS1}")
    a(f"v_fma_f32 v{vS2}, -v{vS1}, v{vS1}, v{vS2}")
    a(f"v_max_f32 v{vS2}, 0, v{vS2}")
    a(f"v_add_f32 v{vS2}, {hx(1e-5)}, v{vS2}")
    a(f"v_rsq_f32 v{vD+1}, v{vS2}")
    a("s_nop 0")
    a(f"ds_write_b64 v{vS3}, {vr(vD,2)}")
    write_colsum(a, 1)
    a(f"v_mov_b32 v{vT+2}, v{vD}")
    a(f"v_mov_b32 v{vT+3}, v{vD+1}")
    a("s_setprio 0")
    correction(a, 1, True)
    epi_c(a)

    a.label("L1_fin")
    diag(a, 3, sWAVE, 8, 18, 124)
    if STAMP: a("s_waitcnt vmcnt(0)")
    stamp(a, 7)
    stamp_flush(a, 12, 0, sWAVE, 18, 16, 100)
    a.label("L1_end")
    a("s_endpgm")
    return dict(name="k1_kernel", grid=256, block=1024, lds=K1_LDS, vgpr=128, sgpr=102 if (STAMP or DIAG) else 64, accum=128)
```

```python
from common import *

NSL = 6
GSLOT = 24576
MX = NSL * GSLOT
FL = MX + 4096
K2_LDS = FL + 3072
MARGIN = float(os.environ.get('MARGIN', '90'))
EXP = os.environ.get('EXP', '').split(',')

sW, sSP, sA, sB = 20, 24, 28, 32
sWAVE, sXC, sJ, sTG, sHEAD, sKT, sLOOP = 40, 41, 42, 43, 44, 45, 46
sT0, sT1, sT2, sT3 = 47, 48, 49, 50
sKO, sSPO, sZO, sVO, sNEED, sSPD, sZD, sRB, sCG = 51, 52, 53, 54, 55, 56, 57, 58, 59
sSPB, sZB = 60, 61
sHI = 62
vLANE = 1
vL16, vL8 = 2, 3
S = (4, 20)
P = (36, 44)
O = (52, 68, 84, 100)
QL = (116, 120, 124, 128)
QH = (132, 134, 136, 138)
KL = (140, 144)
KH = (148, 150)
VV = (152, 160)

def mf16(d, a_, b, c):
    cc = c if isinstance(c, str) else vr(c, 16)
    return f"v_mfma_f32_32x32x16_bf16 {vr(d,16)}, {vr(a_,4)}, {vr(b,4)}, {cc}"
def mf8(d, a_, b):
    return f"v_mfma_f32_32x32x8bf16_1k {vr(d,16)}, {vr(a_,2)}, {vr(b,2)}, {vr(d,16)}"

def phase(a, Sx, Px, mf, x0=(), x2=(), x3=()):
    E = lambda i: f"v_exp_f32 v{Sx+i}, v{Sx+i}"
    C = lambda k: f"v_cvt_pk_bf16_f32 v{Px+k}, v{Sx+2*k}, v{Sx+2*k+1}"
    mf = list(mf)
    if 'nopv' in EXP: mf[2] = mf[3] = "s_nop 0"
    if 'noqh' in EXP: mf[1] = "s_nop 0"
    if 'noql' in EXP: mf[0] = "s_nop 0"
    if 'noexp' in EXP: E = lambda i: f"v_mov_b32 v{Sx+i}, v{Sx+i}"
    for x in x0: a(x)
    a(mf[0])
    a(E(0)); a(E(1)); a(E(2)); a(E(3)); a(E(4)); a(C(0))
    a(mf[1])
    a(E(5)); a(E(6)); a(C(1)); a(E(7)); a(E(8)); a(C(2))
    for x in x2: a(x)
    a(mf[2])
    a(E(9)); a(C(3)); a(E(10)); a(E(11)); a(C(4)); a(E(12))
    a(mf[3])
    a(E(13))
    for x in x3: a(x)
    a(C(5)); a(E(14)); a(E(15)); a(C(6)); a(C(7))

def ldK(b):
    return [f"buffer_load_dwordx4 {vr(KL[b],4)}, v{vL16}, {sr(sW,4)}, s{sKO} offen",
            f"buffer_load_dwordx2 {vr(KH[b],2)}, v{vL8}, {sr(sW,4)}, s{sKO} offen offset:3072",
            f"s_add_u32 s{sKO}, s{sKO}, {4*KVREC}"]
def ldV(b):
    return [f"buffer_load_dwordx4 {vr(VV[b],4)}, v{vL16}, {sr(sW,4)}, s{sVO} offen offset:1024",
            f"buffer_load_dwordx4 {vr(VV[b]+4,4)}, v{vL16}, {sr(sW,4)}, s{sVO} offen offset:2048",
            f"s_add_u32 s{sVO}, s{sVO}, {4*KVREC}"]

def att_tile(a, c):
    n = c ^ 1
    def qk(j, kb): return [mf16(S[j & 1], KL[kb], QL[j], "0"), mf8(S[j & 1], KH[kb], QH[j])]
    def pv(j, vb): return [mf16(O[j], VV[vb], P[j & 1], O[j]), mf16(O[j], VV[vb]+4, P[j & 1]+4, O[j])]
    phase(a, S[0], P[0], qk(1, c) + pv(3, n))
    phase(a, S[1], P[1], qk(2, c) + pv(0, c), x2=["s_waitcnt vmcnt(2)"], x3=ldV(n))
    phase(a, S[0], P[0], qk(3, c) + pv(1, c))
    phase(a, S[1], P[1], qk(0, n) + pv(2, c), x0=["s_waitcnt vmcnt(2)"], x3=ldK(c))

def make_qhi(a, Q, vm, t):
    a(f"v_cvt_pk_bf16_f32 v{t}, -v{vm}, -v{vm}")
    a(f"v_lshlrev_b32 v{t}, 16, v{t}")
    a(f"v_add_f32 v{t+1}, v{vm}, v{t}")
    a(f"v_cvt_pk_bf16_f32 v{t+2}, v{t}, -v{t+1}")
    a(f"v_and_b32 v{t}, 0xffff0000, v{t+2}")
    a(f"v_add_f32 v{t+1}, v{t+1}, v{t}")
    a(f"v_cvt_pk_bf16_f32 v{t+3}, -v{t+1}, 0")
    a(f"v_cndmask_b32 v{Q}, v{Q}, v{t+2}, {sr(sHI,2)}")
    a(f"v_cndmask_b32 v{Q+1}, v{Q+1}, v{t+3}, {sr(sHI,2)}")

def max16(a, Sx, vm, first):
    k = 0
    if first:
        a(f"v_max3_f32 v{vm}, v{Sx}, v{Sx+1}, v{Sx+2}")
        a(f"v_max_f32 v{vm}, v{vm}, v{Sx+3}")
        k = 4
    for i in range(k, 16, 2):
        a(f"v_max3_f32 v{vm}, v{vm}, v{Sx+i}, v{Sx+i+1}")

def halves_max(a, vm, t):
    a(f"v_mov_b32 v{t}, v{vm}")
    a("s_nop 1")
    a(f"v_permlane32_swap_b32 v{t}, v{vm}")
    a("s_nop 0")
    a(f"v_max_f32 v{vm}, v{vm}, v{t}")

QB = 5 * GSLOT
KB = QB + 10240

def read_q(a, j, t):
    if j: a(f"s_xor_b32 s{sT0}, s{sWAVE}, {j}")
    a(f"s_mul_i32 s{sT0}, s{sT0 if j else sWAVE}, 5")
    for k in range(3):
        if k == 1: a(f"s_add_u32 s{sT0}, s{sT0}, 1")
        if k == 2: a(f"s_add_u32 s{sT0}, s{sT0}, 3")
        a(f"s_lshr_b32 s{sT1}, s{sT0}, 1")
        a(f"s_lshl_b32 s{sT1}, s{sT1}, 9")
        a(f"s_and_b32 s{sT2}, s{sT0}, 1")
        a(f"s_lshl3_add_u32 s{sT1}, s{sT2}, s{sT1}")
        a(f"v_add_u32 v{O[2]+3*j+k}, s{sT1}, v{t if k < 2 else t+1}")

def gen_att(a):
    a(f"s_and_b32 s{sKT}, s{sWAVE}, 3")
    a(f"s_lshl_b32 s{sTG}, s{sXC}, 3")
    a(f"s_lshr_b32 s{sT0}, s{sJ}, 2")
    a(f"s_add_u32 s{sTG}, s{sTG}, s{sT0}")
    a(f"s_and_b32 s{sT0}, s{sJ}, 3")
    a(f"s_mul_i32 s{sT3}, s{sT0}, 10240")
    a(f"s_lshl_b32 s{sT0}, s{sT0}, 3")
    a(f"s_add_u32 s{sHEAD}, s{sT0}, s{sWAVE}")
    a(f"v_lshlrev_b32 v{vL16}, 4, v{vLANE}")
    a(f"v_lshlrev_b32 v{vL8}, 3, v{vLANE}")
    a(f"s_mul_i32 s{sT0}, s{sTG}, 40960")
    a(f"s_add_u32 s{sT3}, s{sT3}, s{sT0}")
    if WS_Q: a(f"s_add_u32 s{sT3}, s{sT3}, {WS_Q}")
    a(f"s_lshl_b32 s{sT0}, s{sWAVE}, 10")
    a(f"s_add_u32 s{sT3}, s{sT3}, s{sT0}")
    a(f"s_mul_i32 s{sKO}, s{sKT}, {KVREC}")
    a(f"s_add_u32 s{sKO}, s{sKO}, {WS_KV}")
    a(f"s_mov_b32 s{sVO}, s{sKO}")
    a(f"s_lshr_b32 s{sT1}, s{sWAVE}, 2")
    a(f"s_mul_i32 s{sT1}, s{sT1}, 3072")
    a(f"s_add_u32 s{sT1}, s{sT1}, s{sKO}")
    a("s_waitcnt lgkmcnt(0)")
    srd(a, sW, 18, WS_END)
    diag(a, 4, sWAVE, 4, 18, 4, pre=True)
    a(f"s_add_u32 m0, s{sT0}, {QB}")
    a(f"s_cmp_ge_u32 s{sWAVE}, 2")
    a(f"buffer_load_dwordx4 v{vL16}, {sr(sW,4)}, s{sT3} offen lds")
    a("s_cbranch_scc1 L2_q8")
    a(f"s_add_u32 m0, s{sT0}, {QB + 8192}")
    a(f"s_add_u32 s{sT3}, s{sT3}, 8192")
    a(f"buffer_load_dwordx4 v{vL16}, {sr(sW,4)}, s{sT3} offen lds")
    a.label("L2_q8")
    a(f"s_add_u32 m0, s{sT0}, {KB}")
    a("s_nop 0")
    a(f"buffer_load_dwordx4 v{vL16}, {sr(sW,4)}, s{sT1} offen lds")
    a(f"s_add_u32 s{sKO}, s{sKO}, {4*KVREC}")
    tq = P[0]
    a(f"v_add_u32 v{tq}, {QB}, v{vL16}")
    a(f"v_and_b32 v{tq+1}, 0x1f0, v{vL16}")
    a(f"v_add_u32 v{tq+1}, {QB}, v{tq+1}")
    for j in range(4): read_q(a, j, tq)
    a(f"v_add_u32 v{tq+1}, {KB + 4096}, v{vL8}")
    for r in list(range(O[3], O[3]+16)) + list(range(P[1], P[1]+8)) + list(range(VV[1], VV[1]+8)):
        a(f"v_mov_b32 v{r}, 0")
    a(f"s_lshl_b32 s{sT0}, s{sWAVE}, 8")
    a(f"s_add_u32 s{sT0}, s{sT0}, {FL + 1024}")
    a(f"v_lshl_add_u32 v{O[2]+14}, v{vLANE}, 2, s{sT0}")
    a(f"ds_write_b32 v{O[2]+14}, v{P[1]}")
    a(f"s_lshl_b32 s{sT0}, s{sKT}, 10")
    a(f"v_add_u32 v{O[2]+12}, s{sT0}, v{tq}")
    a(f"v_add_u32 v{O[2]+13}, s{sT0}, v{tq+1}")
    a("s_waitcnt vmcnt(0) lgkmcnt(0)")
    a("s_barrier")
    stamp(a, 13)
    kb = [(O[0], O[0]+4), (O[0]+8, O[0]+12), (O[1], O[1]+4), (O[1]+8, O[1]+12)]
    def rq(j):
        for k in range(3):
            dst = vr(QL[j] + 2*k, 2) if k < 2 else vr(QH[j], 2)
            a(f"ds_read_b64 {dst}, v{O[2]+3*j+k}")
    rq(0)
    for t in range(4):
        a(f"ds_read_b128 {vr(kb[t][0],4)}, v{tq} offset:{KB - QB + 1024*t}")
        a(f"ds_read_b64 {vr(kb[t][1],2)}, v{tq+1} offset:{1024*t}")
    a("s_waitcnt lgkmcnt(8)")
    for r in (QH[0], QH[0]+1):
        a(f"v_cndmask_b32 v{r}, v{r}, 0, {sr(sHI,2)}")
    vm = P[0] + 2
    for t in range(4):
        Sx = S[t & 1]
        a(f"s_waitcnt lgkmcnt({6-2*t})")
        if t == 0: a("s_nop 0")
        a(mf16(Sx, kb[t][0], QL[0], "0"))
        a(mf8(Sx, kb[t][1], QH[0]))
        if t >= 1:
            if t == 1: a("s_nop 8")
            if t == 3:
                a(f"ds_read_b128 {vr(KL[0],4)}, v{O[2]+12} offset:{KB - QB}")
                a(f"ds_read_b64 {vr(KH[0],2)}, v{O[2]+13}")
                for j in (1, 2, 3): rq(j)
            max16(a, S[(t-1) & 1], vm, t == 1)
            a("s_nop 1")
    a("s_nop 1")
    max16(a, S[1], vm, False)
    halves_max(a, vm, vm+1)
    a(f"v_add_f32 v{vm}, {hx(MARGIN)}, v{vm}")
    make_qhi(a, QH[0], vm, vm+2)
    va = S[1]
    a(f"s_lshl_b32 s{sT0}, s{sWAVE}, 9")
    a(f"s_add_u32 s{sT0}, s{sT0}, {MX}")
    a(f"v_add_u32 v{va}, s{sT0}, v{vL8}")
    a(f"ds_write_b64 v{va}, {vr(vm+4,2)}")
    for j in range(1, 4):
        a(f"v_xor_b32 v{va+j}, {512*j}, v{va}")
    a("s_waitcnt lgkmcnt(0)")
    a(mf16(S[0], KL[0], QL[0], "0"))
    a(mf8(S[0], KH[0], QH[0]))
    stamp(a, 1)
    a("s_barrier")
    for x in ldV(0) + ldK(1): a(x)
    for j in range(1, 4):
        a(f"ds_read_b64 {vr(va+4+2*j,2)}, v{va+j}")
    for r in range(O[0], O[0]+48):
        a(f"v_mov_b32 v{r}, 0")
    a("s_waitcnt lgkmcnt(0)")
    for j in range(1, 4):
        a(f"v_cndmask_b32 v{QH[j]}, v{QH[j]}, v{va+4+2*j}, {sr(sHI,2)}")
        a(f"v_cndmask_b32 v{QH[j]+1}, v{QH[j]+1}, v{va+5+2*j}, {sr(sHI,2)}")
    stamp(a, 2); stamp_rt(a, 5)
    diag(a, 5, sWAVE, 4, 18, 36)
    a(f"s_mov_b32 s{sLOOP}, 8")
    PS = [int(v) for v in os.environ.get("PSTEP", "3,1").split(",")]
    if PS[0]: a("s_setprio 2")
    a.raw(".p2align 6")
    a.label("L2_aloop")
    st = len(a.lines)
    att_tile(a, 0)
    att_tile(a, 1)
    a(f"s_sub_u32 s{sLOOP}, s{sLOOP}, 1")
    if STAMP:
        for k, idx in ((7, 9), (6, 10), (5, 11), (4, 12)):
            a(f"s_cmp_eq_u32 s{sLOOP}, {k}")
            a(f"s_cbranch_scc0 L2_st{k}")
            stamp(a, idx)
            a.label(f"L2_st{k}")
    if PS[0]:
        a(f"s_cmp_gt_u32 s{sLOOP}, {PS[0]}")
        a("s_cbranch_scc1 L2_aloop")
        a("s_setprio 1")
        a(f"s_cmp_gt_u32 s{sLOOP}, {PS[1]}")
        a("s_cbranch_scc1 L2_aloop")
        a("s_setprio 0")
    a(f"s_cmp_lg_u32 s{sLOOP}, 0")
    a("s_cbranch_scc1 L2_aloop")
    for p in check_linear(a.lines[st:] + a.lines[st:], "k2 att loop x2"): print("HAZARD", p)
    a(mf16(O[3], VV[1], P[1], O[3]))
    a(mf16(O[3], VV[1]+4, P[1]+4, O[3]))
    stamp(a, 3); stamp_rt(a, 6)
    diag(a, 6, sWAVE, 4, 18, 36)
    va = S[0]
    def spin(tag, vaddr, need):
        a.label(f"L2_sp{tag}")
        a(f"ds_read_b32 v{va+8}, v{vaddr}")
        a("s_waitcnt lgkmcnt(0)")
        a(f"v_cmp_gt_u32 vcc, {need}, v{va+8}")
        a("s_nop 0")
        a(f"s_cbranch_vccz L2_sp{tag}d")
        a("s_sleep 1")
        a(f"s_branch L2_sp{tag}")
        a.label(f"L2_sp{tag}d")
    a("s_setprio 2")
    a(f"v_and_b32 v{va+5}, 3, v{vLANE}")
    a(f"v_lshlrev_b32 v{va+5}, 8, v{va+5}")
    a(f"v_add_u32 v{va+5}, {FL}, v{va+5}")
    a(f"s_lshr_b32 s{sT2}, s{sWAVE}, 2")
    a(f"s_lshl_b32 s{sT0}, s{sT2}, 10")
    a(f"s_add_u32 s{sT0}, s{sT0}, 1024")
    a(f"v_add_u32 v{va+6}, s{sT0}, v{va+5}")
    a(f"s_lshl_b32 s{sT0}, s{sWAVE}, 8")
    a(f"s_add_u32 s{sT0}, s{sT0}, {FL + 1024}")
    a(f"v_lshl_add_u32 v{va+7}, v{vLANE}, 2, s{sT0}")
    a(f"v_mov_b32 v{va+9}, 1")
    a(f"s_add_u32 s{sT2}, s{sT2}, 30")
    for j in range(4):
        if j: a(f"s_xor_b32 s{sT0}, s{sWAVE}, {j}")
        a(f"s_mul_i32 s{sT0}, s{sT0 if j else sWAVE}, 9216")
        a(f"s_add_u32 s{sT0}, s{sT0}, {2*GSLOT}")
        a(f"v_add_u32 v{va+j}, s{sT0}, v{vL16}")
    spin("g", va+5, f"s{sT2}")
    for j in range(1, 4):
        for k in range(3):
            a(f"ds_write_b128 v{va+j}, {vr(O[j]+4*k,4)} offset:{(j-1)*3072 + 1024*k}")
    a("s_waitcnt lgkmcnt(0)")
    a(f"ds_write_b32 v{va+7}, v{va+9}")
    t = S[1]
    a(f"s_mul_i32 s{sT0}, s{sHEAD}, 5")
    a(f"v_lshrrev_b32 v{t+5}, 5, v{vLANE}")
    a(f"v_add_u32 v{t+5}, s{sT0}, v{t+5}")
    a(f"v_and_b32 v{t+2}, 0x1f0, v{vL16}")
    a(f"v_lshrrev_b32 v{t+3}, 1, v{t+5}")
    a(f"v_lshl_add_u32 v{t+3}, v{t+3}, 9, v{t+2}")
    a(f"v_and_b32 v{t+5}, 1, v{t+5}")
    a(f"v_lshl_add_u32 v{t+3}, v{t+5}, 3, v{t+3}")
    a(f"s_mul_i32 s{sVO}, s{sTG}, {OH_TG}")
    a(f"s_add_u32 s{sVO}, s{sVO}, {WS_OH}")
    spin("a", va+6, "1")
    for j in range(1, 4):
        for k in range(3):
            a(f"ds_read_b128 {vr(O[j]+4*k,4)}, v{va} offset:{(j-1)*3072 + 1024*k}")
    OA = O[0]
    for j in range(1, 4):
        a(f"s_waitcnt lgkmcnt({9-3*j})")
        for k in range(12):
            a(f"v_add_f32 v{OA+k}, v{OA+k}, v{O[j]+k}")
    def get_l():
        a(f"v_mov_b32 v{t}, v{OA+8}")
        a(f"v_mov_b32 v{t+4}, v{OA+8}")
        a("s_nop 1")
        a(f"v_permlane32_swap_b32 v{t+4}, v{t}")
    get_l()
    a(f"v_add_f32 v{t+1}, |v{OA}|, |v{OA+1}|")
    for k in range(2, 8):
        a(f"v_add_f32 v{t+1}, v{t+1}, |v{OA+k}|")
    a(f"v_add_f32 v{t+2}, v{t+1}, |v{OA+8}|")
    for k in range(9, 12):
        a(f"v_add_f32 v{t+2}, v{t+2}, |v{OA+k}|")
    a(f"s_mov_b32 s{sT0}, {hx(2.0**120)}")
    a(f"s_mov_b32 s{sT1}, {hx(2.0**-100)}")
    a(f"s_mov_b32 s{sT2}, {hx(2.0**126)}")
    a(f"v_cmp_gt_f32 s[36:37], s{sT0}, v{t}")
    a(f"v_cmp_le_f32 s[38:39], s{sT1}, v{t+1}")
    a(f"v_cmp_gt_f32 vcc, s{sT2}, v{t+2}")
    a("s_nop 1")
    a("s_and_b64 s[36:37], s[36:37], s[38:39]")
    a("s_and_b64 s[36:37], s[36:37], vcc")
    a("s_cmp_eq_u64 s[36:37], -1")
    if not any(e.startswith('no') for e in EXP): a("s_cbranch_scc0 L2_fallback")
    a.label("L2_final")
    a(f"v_rcp_f32 v{t}, v{t}")
    a("s_nop 0")
    for k in range(12):
        a(f"v_mul_f32 v{OA+k}, v{OA+k}, v{t}")
    PA = P[0]
    for k in range(6):
        a(f"v_cvt_pk_bf16_f32 v{PA+k}, v{OA+2*k}, v{OA+2*k+1}")
    a(f"buffer_store_dwordx2 {vr(PA,2)}, v{t+3}, {sr(sW,4)}, s{sVO} offen")
    a(f"buffer_store_dwordx2 {vr(PA+2,2)}, v{t+3}, {sr(sW,4)}, s{sVO} offen offset:512")
    a("s_mov_b32 exec_hi, 0")
    a(f"buffer_store_dwordx2 {vr(PA+4,2)}, v{t+3}, {sr(sW,4)}, s{sVO} offen offset:1024")
    a("s_mov_b64 exec, -1")
    a("s_branch L2_fin")
    a.label("L2_fallback")
    a("s_waitcnt vmcnt(0)")
    for r in (QH[0], QH[0]+1):
        a(f"v_cndmask_b32 v{r}, v{r}, 0, {sr(sHI,2)}")
    vm = P[1]
    SA = S[0]
    a(f"v_mov_b32 v{vm}, 0xff800000")
    a(f"s_mov_b32 s{sT0}, {WS_KV}")
    a.label("L2_fb1")
    a(f"buffer_load_dwordx4 {vr(KL[0],4)}, v{vL16}, {sr(sW,4)}, s{sT0} offen")
    a(f"buffer_load_dwordx2 {vr(KH[0],2)}, v{vL8}, {sr(sW,4)}, s{sT0} offen offset:3072")
    a("s_waitcnt vmcnt(0)")
    a(mf16(SA, KL[0], QL[0], "0"))
    a(mf8(SA, KH[0], QH[0]))
    a("s_nop 11")
    max16(a, SA, vm, False)
    a(f"s_add_u32 s{sT0}, s{sT0}, {KVREC}")
    a(f"s_cmp_lt_u32 s{sT0}, {WS_KV + 64*KVREC}")
    a("s_cbranch_scc1 L2_fb1")
    halves_max(a, vm, vm+1)
    make_qhi(a, QH[0], vm, vm+2)
    for r in range(OA, OA+16):
        a(f"v_mov_b32 v{r}, 0")
    a(f"s_mov_b32 s{sT0}, {WS_KV}")
    a.label("L2_fb2")
    a(f"buffer_load_dwordx4 {vr(KL[0],4)}, v{vL16}, {sr(sW,4)}, s{sT0} offen")
    a(f"buffer_load_dwordx2 {vr(KH[0],2)}, v{vL8}, {sr(sW,4)}, s{sT0} offen offset:3072")
    a(f"buffer_load_dwordx4 {vr(VV[0],4)}, v{vL16}, {sr(sW,4)}, s{sT0} offen offset:1024")
    a(f"buffer_load_dwordx4 {vr(VV[0]+4,4)}, v{vL16}, {sr(sW,4)}, s{sT0} offen offset:2048")
    a("s_waitcnt vmcnt(0)")
    a(mf16(SA, KL[0], QL[0], "0"))
    a(mf8(SA, KH[0], QH[0]))
    a("s_nop 11")
    for i in range(16):
        a(f"v_exp_f32 v{SA+i}, v{SA+i}")
    a("s_nop 0")
    for k in range(8):
        a(f"v_cvt_pk_bf16_f32 v{PA+k}, v{SA+2*k}, v{SA+2*k+1}")
    a("s_nop 1")
    a(mf16(OA, VV[0], PA, OA))
    a(mf16(OA, VV[0]+4, PA+4, OA))
    a(f"s_add_u32 s{sT0}, s{sT0}, {KVREC}")
    a(f"s_cmp_lt_u32 s{sT0}, {WS_KV + 64*KVREC}")
    a("s_nop 11")
    a("s_cbranch_scc1 L2_fb2")
    get_l()
    a("s_branch L2_final")

GA = ((32, 48), (64, 80))
FB = (96, 112)
ZL = 128
vWa = 8
vZa = 14
vS0, vS1 = 4, 5
vFA, vFW, vONE, vFL = 6, 7, 20, 21
PFD = 4

def g_dma_groups(slot, part="wz"):
    b = slot * GSLOT
    g = []
    if "w" in part:
        g += [[f"s_add_u32 m0, s{sSPD}, {b}", f"s_add_u32 s{sT0}, s{sSPO}, 65536",
               f"buffer_load_dwordx4 v{vS0}, {sr(sSP,4)}, s{sSPO} offen lds"],
              [f"s_add_u32 m0, s{sSPD}, {b+1024}", f"s_add_u32 s{sT1}, s{sSPO}, 128",
               f"buffer_load_dwordx4 v{vS1}, {sr(sSP,4)}, s{sSPO} offen lds"],
              [f"s_add_u32 m0, s{sSPD}, {b+2048}", f"s_and_b32 s{sT1}, s{sT1}, 0xfff",
               f"buffer_load_dwordx4 v{vS0}, {sr(sSP,4)}, s{sT0} offen lds"],
              [f"s_add_u32 m0, s{sSPD}, {b+3072}", f"s_or_b32 s{sSPO}, s{sSPB}, s{sT1}",
               f"buffer_load_dwordx4 v{vS1}, {sr(sSP,4)}, s{sT0} offen lds"]]
    if "z" in part:
        g += [[f"s_add_u32 m0, s{sZD}, {b+16384}", f"s_add_u32 s{sT1}, s{sZO}, 4096",
               f"buffer_load_dwordx4 v{vL16}, {sr(sW,4)}, s{sZO} offen sc1 lds"],
              [f"s_and_b32 s{sT1}, s{sT1}, 0x1ffff",
               f"buffer_load_dwordx4 v{vL16}, {sr(sW,4)}, s{sZO} offen offset:1024 sc1 lds",
               f"s_or_b32 s{sZO}, s{sZB}, s{sT1}"]]
    return g
def g_dma(a, slot, part="wz"):
    for g in g_dma_groups(slot, part):
        for x in g: a(x)

_uid = [0]
def arrive(a):
    a(f"ds_add_u32 v{vFW}, v{vONE}")
def flag_read(a):
    a(f"ds_read_b32 v{vFL}, v{vFA}")
def flag_check(a, lgkm=0, sleep=False, low=True):
    _uid[0] += 1
    L = f"L2_sb{_uid[0]}"
    if low: a("s_setprio 3")
    a(f"s_waitcnt lgkmcnt({lgkm})")
    a(f"v_cmp_gt_u32 vcc, s{sNEED}, v{vFL}")
    a("s_nop 0")
    a(f"s_cbranch_vccz {L}d")
    a.label(L)
    if sleep: a("s_sleep 2")
    flag_read(a)
    a("s_waitcnt lgkmcnt(0)")
    a(f"v_cmp_gt_u32 vcc, s{sNEED}, v{vFL}")
    a("s_nop 0")
    a(f"s_cbranch_vccnz {L}")
    a.label(L + "d")
    if low: a(f"s_setprio {os.environ.get('GLOW', '0')}")

def g_reads(i, ks):
    slot = i % NSL
    st, so = slot // 2, (slot % 2) * GSLOT
    f = FB[ks]
    return [f"ds_read_b128 {vr(f,4)}, v{vWa+2*st+ks} offset:{so}",
            f"ds_read_b128 {vr(f+8,4)}, v{vZa+2*st} offset:{so + ks*1024}",
            f"ds_read_b128 {vr(f+4,4)}, v{vWa+2*st+ks} offset:{so + 4096}",
            f"ds_read_b128 {vr(f+12,4)}, v{vZa+2*st+1} offset:{so + ks*1024}"]

def g_step(a, i, issue, wait, last=False):
    def M(ks, u, v):
        f = FB[ks]
        a(mf16(GA[u][v], f+8+4*v, f+4*u, GA[u][v]))
    D = g_dma_groups((i + PFD) % NSL) if issue else [[]] * 6
    def dma(k):
        for x in D[k]: a(x)
    r1 = g_reads(i, 1)
    r0 = g_reads(i + 1, 0)
    a("s_waitcnt lgkmcnt(2)")
    M(0, 0, 0)
    a(r1[0]); a(r1[1])
    a("s_waitcnt lgkmcnt(3)")
    M(0, 1, 0)
    a(r1[2]); a(r1[3])
    a("s_waitcnt lgkmcnt(4)")
    M(0, 0, 1)
    dma(0)
    flag_read(a)
    M(0, 1, 1)
    dma(1)
    a(f"s_add_u32 s{sNEED}, s{sNEED}, 1")
    flag_check(a)
    M(1, 0, 0)
    a(f"s_waitcnt vmcnt({wait})")
    arrive(a)
    if not last: a(r0[0]); a(r0[1])
    M(1, 1, 0)
    if not last: a(r0[2]); a(r0[3])
    dma(2)
    M(1, 0, 1)
    dma(3); dma(4)
    M(1, 1, 1)
    dma(5)

def gen_gemm(a):
    gw = sT3
    NR, NS = 128, 144
    a(f"s_sub_u32 s{gw}, s{sWAVE}, 8")
    a(f"v_lshlrev_b32 v{vL16}, 4, v{vLANE}")
    a(f"s_lshl_b32 s{sNEED}, s{gw}, 8")
    a(f"s_add_u32 s{sNEED}, s{sNEED}, {FL}")
    a(f"v_lshl_add_u32 v{vFW}, v{vLANE}, 2, s{sNEED}")
    a(f"s_cmp_ge_u32 s{sJ}, 28")
    a(f"s_cselect_b32 s{sT0}, 64, 0")
    a(f"v_mov_b32 v{vONE}, s{sT0}")
    a(f"ds_write_b32 v{vFW}, v{vONE}")
    a("s_cbranch_scc1 L2_idle")
    a(f"v_and_b32 v{vFA}, 3, v{vLANE}")
    a(f"v_lshlrev_b32 v{vFA}, 8, v{vFA}")
    a(f"v_add_u32 v{vFA}, {FL}, v{vFA}")
    a(f"s_cmp_ge_u32 s{sJ}, 14")
    a(f"s_cselect_b32 s{sT0}, 1, 0")
    a(f"s_cselect_b32 s{sT1}, 14, 0")
    a(f"s_lshl1_add_u32 s{sRB}, s{sXC}, s{sT0}")
    a(f"s_sub_u32 s{sCG}, s{sJ}, s{sT1}")
    a(f"v_lshlrev_b32 v{vL8}, 3, v{vLANE}")
    a(f"v_and_b32 v96, 31, v{vLANE}")
    a(f"v_lshrrev_b32 v97, 5, v{vLANE}")
    a(f"s_lshl_b32 s{sSPD}, s{gw}, 12")
    a(f"s_add_u32 s{sT2}, s{sSPD}, {4*GSLOT}")
    a(f"v_lshlrev_b32 v22, 6, v96")
    a(f"v_lshl_add_u32 v22, v97, 3, v22")
    a(f"v_add_u32 v22, s{sT2}, v22")
    a(f"v_bfe_u32 v23, v{vLANE}, 2, 2")
    a(f"v_lshl_add_u32 v23, v97, 3, v23")
    a(f"v_lshlrev_b32 v23, 6, v23")
    a(f"v_bfe_u32 v99, v{vLANE}, 4, 1")
    a(f"v_lshl_add_u32 v23, v99, 5, v23")
    a(f"v_and_b32 v99, 3, v{vLANE}")
    a(f"v_lshl_add_u32 v23, v99, 3, v23")
    a(f"v_add_u32 v23, s{sT2}, v23")
    a(f"s_lshl_b32 s{sZD}, s{gw}, 11")
    a(f"s_lshl_b32 s{sSPO}, s{sRB}, 19")
    a(f"s_lshl_b32 s{sT0}, s{gw}, 17")
    a(f"s_add_u32 s{sSPO}, s{sSPO}, s{sT0}")
    a(f"s_lshr_b32 s{sT2}, s{gw}, 1")
    a(f"s_lshl1_add_u32 s{sHEAD}, s{sCG}, s{sT2}")
    a(f"s_lshl_b32 s{sZB}, s{sHEAD}, 17")
    a(f"s_add_u32 s{sZB}, s{sZB}, {WS_Z2}")
    a(f"s_and_b32 s{sKT}, s{gw}, 1")
    a(f"s_lshl_b32 s{sT0}, s{sKT}, 11")
    a(f"s_add_u32 s{sZO}, s{sZB}, s{sT0}")
    assert WS_Z2 % 0x20000 == 0
    a(f"s_mov_b32 s{sSPB}, s{sSPO}")
    RC = int(os.environ.get("ROT2", "9"))
    a(f"s_mul_i32 s{sT0}, s{sCG}, {RC}")
    a(f"s_bfe_u32 s{sT0}, s{sT0}, 0x50002")
    a(f"s_lshl_b32 s{sT1}, s{sT0}, 7")
    a(f"s_add_u32 s{sSPO}, s{sSPO}, s{sT1}")
    a(f"s_lshl_b32 s{sT1}, s{sT0}, 12")
    a(f"s_add_u32 s{sZO}, s{sZO}, s{sT1}")
    a(f"s_lshl_b32 s{sVO}, s{sCG}, 8")
    a(f"s_add_u32 s{sVO}, s{sVO}, {WS_FL}")
    a(f"s_lshl_b32 s{sT0}, s{sRB}, 4")
    a(f"s_lshl2_add_u32 s{sT0}, s{gw}, s{sT0}")
    a(f"v_mov_b32 v27, s{sT0}")
    a(f"v_lshlrev_b32 v30, 2, v{vLANE}")
    a(f"v_lshrrev_b32 v98, 3, v{vLANE}")
    a(f"v_lshlrev_b32 v98, 12, v98")
    a(f"v_lshrrev_b32 v99, 4, v{vLANE}")
    a(f"v_xor_b32 v99, v99, v{vLANE}")
    a(f"v_and_b32 v99, 7, v99")
    a(f"v_lshl_add_u32 v{vS0}, v99, 4, v98")
    a(f"v_xor_b32 v99, 4, v99")
    a(f"v_lshl_add_u32 v{vS1}, v99, 4, v98")
    a(f"v_add_u32 v{vS1}, {8*4096}, v{vS1}")
    a(f"v_bfe_u32 v98, v96, 1, 3")
    a(f"v_xor_b32 v98, v98, v97")
    a(f"s_lshl_b32 s{sT1}, s{sT2}, 2")
    a(f"v_xor_b32 v98, s{sT1}, v98")
    a(f"v_lshlrev_b32 v98, 4, v98")
    a(f"v_lshl_add_u32 v98, v96, 7, v98")
    a(f"s_lshl_b32 s{sT0}, s{sKT}, 13")
    a(f"v_add_u32 v{vWa}, s{sT0}, v98")
    a(f"v_xor_b32 v{vWa+1}, 32, v{vWa}")
    a(f"s_mul_i32 s{sT0}, s{sT2}, {4096+2048}")
    a(f"s_add_u32 s{sT0}, s{sT0}, 16384")
    a(f"v_add_u32 v{vZa}, s{sT0}, v{vL16}")
    a(f"v_xor_b32 v{vZa+1}, 4096, v{vZa}")
    for st in (1, 2):
        for k in range(2):
            a(f"v_add_u32 v{vWa+2*st+k}, {2*GSLOT*st}, v{vWa+k}")
            a(f"v_add_u32 v{vZa+2*st+k}, {2*GSLOT*st}, v{vZa+k}")
    a(f"s_lshl_b32 s{sTG}, s{sRB}, 2")
    a(f"s_lshl1_add_u32 s{sTG}, s{sKT}, s{sTG}")
    a(f"v_lshlrev_b32 v98, 1, v96")
    a(f"v_mov_b32 v{vONE}, 1")
    a(f"v_mov_b32 v26, 0xffff0000")
    a(f"s_lshl2_add_u32 s{sT0}, s{sRB}, s{gw}")
    a(f"s_lshl_b32 s{sT2}, s{sT0}, 12")
    a(f"s_add_u32 s{sT2}, s{sT2}, {WS_ST}")
    a(f"s_lshl_b32 s{sKO}, s{sCG}, 18")
    a(f"s_lshl_b32 s{sT0}, s{sT0}, 11")
    a(f"s_add_u32 s{sKO}, s{sKO}, s{sT0}")
    a(f"s_add_u32 s{sT0}, s{sKO}, {WS_ZR}")
    a(f"s_add_u32 s{sT1}, s{sKO}, {WS_ZR + 131072}")
    a(f"s_lshl_b32 s{sLOOP}, s{sTG}, 6")
    a("s_waitcnt lgkmcnt(0)")
    srd(a, sW, 18, WS_END)
    srd(a, sB, 10, 4096)
    srd(a, sSP, 8, 2048*4096)
    if 'b0first' in EXP: a("s_barrier")
    for i in range(7):
        a(f"buffer_load_dwordx2 {vr(NS+2*i,2)}, v{vL8}, {sr(sW,4)}, s{sT2} offen offset:{512*i}")
    for b in range(2):
        a(f"buffer_load_dwordx4 {vr(NR+8*b,4)}, v{vL16}, {sr(sW,4)}, s{(sT0, sT1)[b]} offen")
        a(f"buffer_load_dwordx4 {vr(NR+8*b+4,4)}, v{vL16}, {sr(sW,4)}, s{(sT0, sT1)[b]} offen offset:1024")
    a(f"buffer_load_ushort v28, v98, {sr(sB,4)}, s{sLOOP} offen")
    a(f"buffer_load_ushort v29, v98, {sr(sB,4)}, s{sLOOP} offen offset:64")
    for r in range(16):
        a(f"v_mov_b32 v{GA[0][1]+r}, 0")
        a(f"v_mov_b32 v{GA[1][1]+r}, 0")
    a("s_setprio 3")
    if 'b0first' not in EXP: a("s_barrier")
    if 'b1early' in EXP: a("s_barrier")
    a("s_branch L2_G2")

def gen_gemm2(a):
    gw = sT3
    NR, NS = 128, 144
    NW0 = 2
    a.label("L2_G2")
    if 'gexit' in EXP:
        a(f"v_mov_b32 v{vONE}, 64")
        a(f"ds_write_b32 v{vFW}, v{vONE}")
        a("s_barrier")
        a("s_branch L2_fin")
    a("s_waitcnt vmcnt(6)")
    for i in (1, 2, 3):
        a(f"v_add_f32 v{NS+2*i}, v{NS+2*i}, v{NS+2*i+6}")
        a(f"v_add_f32 v{NS+2*i+1}, v{NS+2*i+1}, v{NS+2*i+7}")
    for i in (1, 2, 3):
        a(f"v_add_f32 v{NS}, v{NS}, v{NS+2*i}")
        a(f"v_add_f32 v{NS+1}, v{NS+1}, v{NS+2*i+1}")
    a(f"s_add_u32 s{sT0}, s{sKO}, {WS_Z2}")
    a(f"s_add_u32 s{sT1}, s{sKO}, {WS_Z2 + 131072}")
    a(f"v_permlane32_swap_b32 v{NS}, v{NS+1}")
    a("s_nop 0")
    a(f"v_add_f32 v{NS}, v{NS}, v{NS+1}")
    a(f"v_mul_f32 v{NS}, {hx(1.0/864)}, v{NS}")
    a(f"v_mov_b32 v{NS+1}, v{NS}")
    a("s_nop 1")
    a(f"v_permlane32_swap_b32 v{NS}, v{NS+1}")
    a("s_nop 0")
    a(f"v_fma_f32 v{NS+1}, -v{NS}, v{NS}, v{NS+1}")
    a(f"v_max_f32 v{NS+1}, 0, v{NS+1}")
    a(f"v_add_f32 v{NS+1}, {hx(1e-5)}, v{NS+1}")
    a(f"v_rsq_f32 v{NS+1}, v{NS+1}")
    a("s_nop 0")
    a(f"v_mul_f32 v{NS}, -v{NS}, v{NS+1}")
    for q in range(4):
        a(f"s_waitcnt vmcnt({5-q})")
        for k in range(4):
            z = NR + 4*q + k
            a(f"v_lshlrev_b32 v24, 16, v{z}")
            a(f"v_and_b32 v25, v26, v{z}")
            a(f"v_fma_f32 v24, v24, v{NS+1}, v{NS}")
            a(f"v_fma_f32 v25, v25, v{NS+1}, v{NS}")
            a(f"v_cvt_pk_bf16_f32 v{z}, v24, v25")
        for k in range(2):
            a(f"ds_write_b64 v22, {vr(NR+4*q+2*k,2)} offset:{(q>>1)*2048 + (q&1)*32 + 16*k}")
    a("s_waitcnt lgkmcnt(0)")
    for q in range(4):
        for k in range(2):
            a(f"ds_read_b64_tr_b16 {vr(NR+4*q+2*k,2)}, v23 offset:{q*1024 + k*256}")
    for q in range(4):
        a(f"s_waitcnt lgkmcnt({6-2*q})")
        a(f"buffer_store_dwordx4 {vr(NR+4*q,4)}, v{vL16}, {sr(sW,4)}, s{(sT0, sT1)[q>>1]} offen offset:{1024*(q&1)} sc0 sc1")
    if 'b1early' not in EXP: a("s_barrier")
    for c in range(NW0): g_dma(a, c, "w")
    a(f"s_waitcnt vmcnt({4 + 4*NW0})")
    a(f"v_lshlrev_b32 v28, 16, v28")
    a(f"v_lshlrev_b32 v29, 16, v29")
    for r in range(16):
        a(f"v_mov_b32 v{GA[0][0]+r}, v28")
        a(f"v_mov_b32 v{GA[1][0]+r}, v29")
    a(f"s_waitcnt vmcnt({4*NW0})")
    a("s_mov_b64 exec, 1")
    a(f"buffer_store_dword v{vONE}, v27, {sr(sW,4)}, s{sVO} offen sc0 sc1")
    a("s_mov_b64 exec, -1")
    stamp(a, 1)
    stamp(a, 9)
    a(f"s_cmp_lg_u32 s{gw}, 0")
    a("s_cbranch_scc1 L2_gnp")
    a(f"s_mov_b32 s{sT1}, 0x10000")
    a.label("L2_gpoll")
    a(f"buffer_load_dword v31, v30, {sr(sW,4)}, s{sVO} offen sc0 sc1")
    a("s_waitcnt vmcnt(0)")
    a(f"v_cmp_ne_u32 vcc, 1, v31")
    a("s_nop 0")
    a("s_cbranch_vccz L2_gnp")
    a("s_sleep 2")
    a(f"s_sub_u32 s{sT1}, s{sT1}, 1")
    a(f"s_cmp_lg_u32 s{sT1}, 0")
    a("s_cbranch_scc1 L2_gpoll")
    a.label("L2_gnp")
    stamp(a, 11)
    arrive(a); flag_read(a)
    a(f"s_mov_b32 s{sNEED}, 1")
    flag_check(a, sleep=True, low=False)
    for c in range(PFD): g_dma(a, c, "z" if c < NW0 else "wz")
    a(f"s_waitcnt vmcnt({6*(PFD-2)})")
    arrive(a); flag_read(a)
    a(f"s_mov_b32 s{sNEED}, 2")
    flag_check(a)
    a(f"s_mov_b32 s{sNEED}, 1")
    for x in g_reads(0, 0): a(x)
    stamp(a, 2); stamp_rt(a, 5)
    diag(a, 12, sWAVE, 8, 18, 24)
    a(f"s_mov_b32 s{sLOOP}, 4")
    a.raw(".p2align 6")
    a.label("L2_gloop")
    st = len(a.lines)
    WS = 6 * (PFD - 3) + 2
    for i in range(NSL):
        g_step(a, i, True, WS)
    a(f"s_sub_u32 s{sLOOP}, s{sLOOP}, 1")
    a(f"s_cmp_lg_u32 s{sLOOP}, 0")
    a("s_cbranch_scc1 L2_gloop")
    for p in check_linear(a.lines[st:] + a.lines[st:], "k2 gemm loop x2"): print("HAZARD", p)
    for i in range(24, 32 - PFD):
        g_step(a, i, True, WS)
    a(f"s_mul_i32 s{sT0}, s{sTG}, {27*2048}")
    a(f"s_lshl_b32 s{sT1}, s{sHEAD}, 11")
    a(f"s_add_u32 s{sT0}, s{sT0}, s{sT1}")
    a(f"s_add_u32 s{sT0}, s{sT0}, {WS_Z1}")
    a(f"s_add_u32 s{sT1}, s{sT0}, {27*2048}")
    a(f"buffer_load_dwordx4 {vr(ZL,4)}, v{vL16}, {sr(sW,4)}, s{sT0} offen")
    a(f"buffer_load_dwordx4 {vr(ZL+4,4)}, v{vL16}, {sr(sW,4)}, s{sT0} offen offset:1024")
    a(f"buffer_load_dwordx4 {vr(ZL+8,4)}, v{vL16}, {sr(sW,4)}, s{sT1} offen")
    a(f"buffer_load_dwordx4 {vr(ZL+12,4)}, v{vL16}, {sr(sW,4)}, s{sT1} offen offset:1024")
    for i in range(32 - PFD, 32):
        g_step(a, i, False, 6 * max(0, 31 - (i + 2)) + 4, last=(i == 31))
    stamp(a, 3); stamp_rt(a, 6)
    a("s_setprio 3")
    a(f"s_lshl_b32 s{sT0}, s{sKT}, 13")
    a(f"s_add_u32 s{sT1}, s{sT0}, {5*GSLOT}")
    a(f"s_cmp_lt_u32 s{gw}, 2")
    a(f"s_cselect_b32 s{sT2}, s{sT1}, s{sT0}")
    a(f"s_cselect_b32 s{sT0}, s{sT0}, s{sT1}")
    a(f"v_add_u32 v22, s{sT2}, v{vL16}")
    a(f"v_add_u32 v23, s{sT0}, v{vL16}")
    a("s_nop 4")
    for u in range(2):
        for k in range(4):
            a(f"ds_write_b128 v22, {vr(GA[u][1]+4*k,4)} offset:{u*4096 + k*1024}")
    a("s_waitcnt lgkmcnt(0)")
    arrive(a); flag_read(a)
    a(f"s_add_u32 s{sNEED}, s{sNEED}, 2")
    flag_check(a, low=False)
    a(f"s_cmp_ge_u32 s{sHEAD}, 27")
    a("s_cbranch_scc1 L2_touch")
    for u in range(2):
        for k in range(4):
            a(f"ds_read_b128 {vr(GA[u][1]+4*k,4)}, v23 offset:{u*4096 + k*1024}")
    a(f"s_mul_i32 s{sT0}, s{sTG}, {OH_TG}")
    a(f"s_lshl_b32 s{sT1}, s{sHEAD}, 11")
    a(f"s_add_u32 s{sT0}, s{sT0}, s{sT1}")
    a(f"s_add_u32 s{sT0}, s{sT0}, {WS_OH + 40960}")
    a("s_waitcnt vmcnt(0)")
    for u in range(2):
        G, H = GA[u]
        a(f"s_waitcnt lgkmcnt({4-4*u})")
        for k in range(8):
            z = ZL + 8*u + k
            a(f"v_add_f32 v{G+2*k}, v{G+2*k}, v{H+2*k}")
            a(f"v_add_f32 v{G+2*k+1}, v{G+2*k+1}, v{H+2*k+1}")
            a(f"v_lshlrev_b32 v24, 16, v{z}")
            a(f"v_and_b32 v25, v26, v{z}")
            a(f"v_mul_f32 v24, v24, v{G+2*k}")
            a(f"v_mul_f32 v25, v25, v{G+2*k+1}")
            a(f"v_cvt_pk_bf16_f32 v{z}, v24, v25")
        a(f"buffer_store_dwordx4 {vr(ZL+8*u,4)}, v{vL16}, {sr(sW,4)}, s{sT0} offen")
        a(f"buffer_store_dwordx4 {vr(ZL+8*u+4,4)}, v{vL16}, {sr(sW,4)}, s{sT0} offen offset:1024")
        a(f"s_add_u32 s{sT0}, s{sT0}, {OH_TG}")
    a.label("L2_touch")
    if 'touch' in EXP:
        a(f"s_lshl2_add_u32 s{sT0}, s{sJ}, s{gw}")
        a(f"s_mul_i32 s{sT0}, s{sT0}, {17408}")
        a(f"s_add_u32 s{sT0}, s{sT0}, {WS_WT}")
        a(f"v_lshlrev_b32 v24, 7, v{vLANE}")
        a(f"buffer_load_dword v25, v24, {sr(sW,4)}, s{sT0} offen")
        a(f"s_add_u32 s{sT0}, s{sT0}, 8192")
        a(f"buffer_load_dword v25, v24, {sr(sW,4)}, s{sT0} offen")
        a(f"s_add_u32 s{sT0}, s{sT0}, 8192")
        a("s_mov_b64 exec, 0xff")
        a(f"buffer_load_dword v25, v24, {sr(sW,4)}, s{sT0} offen")
        a("s_mov_b64 exec, -1")
    a("s_branch L2_fin")

    a.label("L2_idle")
    a("s_waitcnt lgkmcnt(0)")
    a("s_barrier")
    a("s_barrier")
    a("s_branch L2_fin")

def gen_k2(a):
    kernel_header(a, "k2_kernel")
    a("s_cmp_ge_u32 s2, 256")
    a("s_cbranch_scc1 L2_end")
    if DIAG: a('s_memrealtime s[92:93]')
    stamp(a, 0); stamp_rt(a, 7)
    a("s_load_dwordx2 s[18:19], s[0:1], 96")
    a("s_load_dwordx4 s[8:11], s[0:1], 56")
    a(f"v_and_b32 v{vLANE}, 63, v0")
    a("v_lshrrev_b32 v2, 6, v0")
    a(f"s_and_b32 s{sXC}, s2, 7")
    a(f"v_readfirstlane_b32 s{sWAVE}, v2")
    a(f"s_lshr_b32 s{sJ}, s2, 3")
    a(f"s_mov_b32 s{sHI}, 0")
    a(f"s_mov_b32 s{sHI+1}, -1")
    a(f"s_cmp_lt_u32 s{sWAVE}, 8")
    a("s_cbranch_scc1 L2_A")
    gen_gemm(a)
    a.label("L2_A")
    gen_att(a)
    gen_gemm2(a)
    a.label("L2_fin")
    diag(a, 7, sWAVE, 4, 18, 36)
    diag(a, 8, sWAVE, 8, 18, 36)
    if STAMP: a("s_waitcnt vmcnt(0)")
    stamp(a, 4)
    stamp_rt(a, 8); stamp_flush(a, 14, 1, sWAVE, 18, 12, 30)
    a.label("L2_end")
    a("s_endpgm")
    return dict(name="k2_kernel", grid=256, block=768, lds=K2_LDS, vgpr=168, sgpr=102 if (STAMP or DIAG) else 64, accum=168)
```

```python
from common import *
EXP = os.environ.get('EXP', '').split(',')

ROWP = 336
PART = 64 * ROWP
K3_LDS = 4 * PART
sW, sX, sO = 20, 24, 28
sWAVE, sTB, sNG, sAO, sWO, sT0, sT1, sT2, sT3, sLOOP, sOO = 40, 41, 42, 43, 44, 45, 46, 47, 48, 51, 52
vLANE, vA, vL16 = 1, 2, 3
NST = 3
FR = 36
XR = 8
XO = 20
LO = 23

def load_list(j):
    b = FR + (j % NST) * 36
    pre = [f"s_add_u32 s{sT1}, s{sAO}, {OH_TG}", f"s_add_u32 s{sT3}, s{sWO}, 4096"]
    ld = [f"buffer_load_dwordx4 {vr(b+16,4)}, v{vL16}, {sr(sW,4)}, s{sWO} offen",
          f"buffer_load_dwordx4 {vr(b,4)}, v{vA}, {sr(sW,4)}, s{sAO} offen",
          f"buffer_load_dwordx4 {vr(b+4,4)}, v{vA}, {sr(sW,4)}, s{sAO} offen offset:256",
          f"buffer_load_dwordx4 {vr(b+8,4)}, v{vA}, {sr(sW,4)}, s{sT1} offen",
          f"buffer_load_dwordx4 {vr(b+12,4)}, v{vA}, {sr(sW,4)}, s{sT1} offen offset:256"]
    for nb in range(1, 4):
        ld.append(f"buffer_load_dwordx4 {vr(b+16+4*nb,4)}, v{vL16}, {sr(sW,4)}, s{sWO} offen offset:{1024*nb}")
    ld.append(f"buffer_load_dwordx4 {vr(b+32,4)}, v{vL16}, {sr(sW,4)}, s{sT3} offen")
    post = [f"s_add_u32 s{sAO}, s{sAO}, {0 if 'afix' in EXP else 4*2048}", f"s_add_u32 s{sWO}, s{sWO}, {0 if 'wfix3' in EXP else 4*5120}"]
    return pre, ld, post

def step(a, j, issue, wait, extra=()):
    b = FR + (j % NST) * 36
    pre, ld, post = load_list(j + NST - 1) if issue else ([], [], [])
    ld = ld + list(extra)
    a(f"s_waitcnt vmcnt({wait})")
    k = 0
    for nb in range(5):
        for m in range(4):
            d = (nb * 4 + m) * 4
            a(f"v_mfma_f32_16x16x32_bf16 {ar(d,4)}, {vr(b+16+4*nb,4)}, {vr(b+4*m,4)}, {ar(d,4)}")
            if k == 0:
                for x in pre: a(x)
            if (k % 2 == 0 or len(ld) > 8) and ld: a(ld.pop(0))
            k += 1
    assert not ld
    for x in post: a(x)

def gen_k3(a):
    kernel_header(a, "k3_kernel")
    a("s_cmp_ge_u32 s2, 256")
    a("s_cbranch_scc1 L3_end")
    stamp(a, 0)
    a("s_load_dwordx2 s[18:19], s[0:1], 96")
    a("s_load_dwordx2 s[4:5], s[0:1], 0")
    a("s_load_dwordx2 s[6:7], s[0:1], 80")
    a(f"v_and_b32 v{vLANE}, 63, v0")
    a("v_lshrrev_b32 v5, 6, v0")
    a(f"s_and_b32 s{sT0}, s2, 7")
    a(f"v_readfirstlane_b32 s{sWAVE}, v5")
    a(f"s_lshr_b32 s{sT1}, s2, 3")
    a(f"s_lshl_b32 s{sTB}, s{sT0}, 2")
    a(f"s_lshr_b32 s{sT0}, s{sT1}, 3")
    a(f"s_add_u32 s{sTB}, s{sTB}, s{sT0}")
    a(f"s_and_b32 s{sNG}, s{sT1}, 7")
    a(f"s_mul_i32 s{sAO}, s{sTB}, {2*OH_TG}")
    a(f"s_lshl_b32 s{sT0}, s{sWAVE}, 11")
    a(f"s_add_u32 s{sAO}, s{sAO}, s{sT0}")
    a(f"s_add_u32 s{sAO}, s{sAO}, {WS_OH}")
    a(f"s_mul_i32 s{sWO}, s{sNG}, {47*5120}")
    a(f"s_mul_i32 s{sT0}, s{sWAVE}, 5120")
    a(f"s_add_u32 s{sWO}, s{sWO}, s{sT0}")
    a(f"s_add_u32 s{sWO}, s{sWO}, {WS_WT}")
    a(f"v_lshlrev_b32 v{vL16}, 4, v{vLANE}")
    a(f"v_lshrrev_b32 v5, 4, v{vLANE}")
    a(f"v_and_b32 v6, 15, v{vLANE}")
    a(f"v_lshlrev_b32 v7, 4, v6")
    a(f"v_lshl_add_u32 v{vA}, v5, 9, v7")
    a(f"s_mov_b32 s{sW+2}, {WS_END}")
    a(f"s_mov_b32 s{sW+3}, 0x20000")
    a("s_waitcnt lgkmcnt(0)")
    a(f"s_mov_b64 {sr(sW,2)}, s[18:19]")
    stamp(a, 4)
    diag(a, 9, sWAVE, 0, 18, 26)
    for j in range(NST - 1):
        pre, ld, post = load_list(j)
        for x in pre + ld + post: a(x)
    srd(a, sX, 4, 2048*1280)
    srd(a, sO, 6, 2048*1280)
    a(f"s_mul_i32 s{sOO}, s{sTB}, {64*1280}")
    a(f"s_mul_i32 s{sT0}, s{sNG}, 160")
    a(f"s_add_u32 s{sOO}, s{sOO}, s{sT0}")
    for r in range(80):
        a(f"v_accvgpr_write_b32 a{r}, 0")
    for r in range(3):
        a(f"v_add_u32 v26, {256*r}, v0")
        a(f"v_mul_u32_u24 v27, 6554, v26")
        a(f"v_lshrrev_b32 v27, 16, v27")
        a(f"v_mul_u32_u24 v28, 10, v27")
        a(f"v_sub_u32 v28, v26, v28")
        a(f"v_mul_u32_u24 v29, 1280, v27")
        a(f"v_lshl_add_u32 v{XO+r}, v28, 4, v29")
        a(f"v_mul_u32_u24 v29, {ROWP}, v27")
        a(f"v_lshl_add_u32 v{LO+r}, v28, 5, v29")
    a(f"v_mul_u32_u24 v7, {ROWP}, v6")
    a(f"v_lshl_add_u32 v7, v5, 4, v7")
    a(f"s_mul_i32 s{sT0}, s{sWAVE}, {PART}")
    a(f"v_add_u32 v7, s{sT0}, v7")
    a(f"s_mov_b32 s{sLOOP}, 3")
    stamp(a, 1)
    a.raw(".p2align 6")
    a.label("L3_loop")
    st = len(a.lines)
    for j in range(NST):
        step(a, j, True, 9)
    a(f"s_sub_u32 s{sLOOP}, s{sLOOP}, 1")
    a(f"s_cmp_lg_u32 s{sLOOP}, 0")
    a("s_cbranch_scc1 L3_loop")
    for p in check_linear(a.lines[st:] + a.lines[st:], "k3 loop x2"): print("HAZARD", p)
    a(f"s_cmp_eq_u32 s{sWAVE}, 3")
    a(f"s_cselect_b32 s{sW+2}, 0, s{sW+2}")
    xl = [f"buffer_load_dwordx4 {vr(XR+4*r,4)}, v{XO+r}, {sr(sX,4)}, s{sOO} offen" for r in range(3)]
    step(a, 9, True, 9, xl)
    step(a, 10, False, 12)
    step(a, 11, False, 3)
    stamp(a, 2)
    diag(a, 10, sWAVE, 0, 18, 26)
    a("s_nop 3")
    for nb in range(5):
        for m in range(4):
            d = (nb * 4 + m) * 4
            a(f"ds_write_b128 v7, {ar(d,4)} offset:{m*16*ROWP + nb*64}")
    a("s_waitcnt lgkmcnt(0)")
    a("s_barrier")
    def rd(r):
        b = FR + 32 * r
        for w in range(4):
            a(f"ds_read_b128 {vr(b+8*w,4)}, v{LO+r} offset:{w*PART}")
            a(f"ds_read_b128 {vr(b+8*w+4,4)}, v{LO+r} offset:{w*PART+16}")
    def fin(r):
        b = FR + 32 * r
        for i in range(4):
            a(f"v_lshlrev_b32 v{26+2*i}, 16, v{XR+4*r+i}")
            a(f"v_and_b32 v{27+2*i}, 0xffff0000, v{XR+4*r+i}")
        for i in range(4):
            a(f"v_pk_add_f32 {vr(b+2*i,2)}, {vr(b+2*i,2)}, {vr(b+8+2*i,2)}")
            a(f"v_pk_add_f32 {vr(b+16+2*i,2)}, {vr(b+16+2*i,2)}, {vr(b+24+2*i,2)}")
        for i in range(4):
            a(f"v_pk_add_f32 {vr(b+2*i,2)}, {vr(b+2*i,2)}, {vr(26+2*i,2)}")
        for i in range(4):
            a(f"v_pk_add_f32 {vr(b+2*i,2)}, {vr(b+2*i,2)}, {vr(b+16+2*i,2)}")
        for i in range(4):
            a(f"v_cvt_pk_bf16_f32 v{b+8+i}, v{b+2*i}, v{b+2*i+1}")
        a(f"buffer_store_dwordx4 {vr(b+8,4)}, v{XO+r}, {sr(sO,4)}, s{sOO} offen {os.environ.get('ST3', '')}")
    rd(0)
    a("s_waitcnt lgkmcnt(4)")
    rd(1)
    a("s_waitcnt lgkmcnt(8) vmcnt(0)")
    fin(0)
    a(f"s_cmp_ge_u32 s{sWAVE}, 2")
    a("s_cbranch_scc1 L3_two")
    a("s_waitcnt lgkmcnt(4)")
    rd(2)
    a("s_waitcnt lgkmcnt(0)")
    fin(2)
    a.label("L3_two")
    a("s_waitcnt lgkmcnt(0)")
    fin(1)
    diag(a, 11, sWAVE, 0, 18, 26)
    if DIAG:
        a("s_cmp_lg_u32 s90, 0")
        a("s_cbranch_scc1 L3_end")
        a("s_load_dwordx2 s[16:17], s[0:1], 88")
        a("s_waitcnt vmcnt(0) lgkmcnt(0)")
        a(f"v_lshlrev_b32 v26, 2, v{vLANE}")
        a(f"v_add_u32 v27, {WS_DG}, v26")
        a("global_load_dword v28, v27, s[18:19] sc0 sc1")
        a("s_waitcnt vmcnt(0)")
        a("global_store_dword v26, v28, s[16:17]")
    if STAMP: a("s_waitcnt vmcnt(0)")
    stamp(a, 3)
    stamp_flush(a, 11, 2, sWAVE, 18, 4, 24)
    a.label("L3_end")
    a("s_endpgm")
    nv = FR + NST*36
    return dict(name="k3_kernel", grid=256, block=256, lds=K3_LDS, vgpr=nv+80, sgpr=102 if (STAMP or DIAG) else 64, accum=nv)
```

```python
import math, struct
from asmlib import *

NAME = "parallel_sum__grouped_kv_mqa__mixer_gmlp__prompt"
WS_Q  = 0
WS_Z1 = 0x280000
WS_Z2 = 0x5E0000
WS_KV = 0x960000
WS_OH = 0x9A0000
WS_WT = 0xF80000
WS_ST = 0x1160000
WS_FL = 0x11A0000
WS_ZR = 0x11C0000
WS_END = WS_ZR + 0x380000
OH_TG = 96256
KVREC = 3584

def f2u(f):
    return struct.unpack("<I", struct.pack("<f", f))[0]
def hx(f):
    return "0x%08x" % f2u(f)

LOG2E = math.log2(math.e)
QSCALE = LOG2E / math.sqrt(20.0)
GC0 = -2.0 * math.sqrt(2.0 / math.pi) * LOG2E
GC1 = GC0 * 0.044715

def kernel_header(a, name):
    a.raw(f".globl {name}")
    a.raw(".p2align 8")
    a.raw(f".type {name},@function")
    a.label(name)

def kernel_desc(name, vgpr, sgpr, accum):
    return f""".p2align 6
.amdhsa_kernel {name}
  .amdhsa_next_free_vgpr {vgpr}
  .amdhsa_next_free_sgpr {sgpr}
  .amdhsa_accum_offset {accum}
  .amdhsa_group_segment_fixed_size 0
  .amdhsa_kernarg_size 104
  .amdhsa_user_sgpr_count 2
  .amdhsa_user_sgpr_kernarg_segment_ptr 1
  .amdhsa_system_sgpr_workgroup_id_x 1
.end_amdhsa_kernel
"""

def srd(a, d, base, size):
    a(f"s_mov_b32 s{d}, s{base}")
    a(f"s_mov_b32 s{d+1}, s{base+1}")
    a(f"s_mov_b32 s{d+2}, {size}")
    a(f"s_mov_b32 s{d+3}, 0x20000")

import os
STAMP = bool(os.environ.get("STAMP"))
WS_STAMP = 0x2000000
def stamp(a, i):
    if STAMP:
        a(f"s_memtime s[{64+2*i}:{65+2*i}]")
        a("s_waitcnt lgkmcnt(0)")
def stamp_flush(a, n, kidx, swave, ws_pair, nwaves, vt):
    if not STAMP: return
    a(f"s_memrealtime s[{64+2*n}:{65+2*n}]")
    a("s_waitcnt lgkmcnt(0)")
    a(f"s_mul_i32 s100, s2, {nwaves}")
    a(f"s_add_u32 s100, s100, s{swave}")
    a("s_lshl_b32 s100, s100, 6")
    a(f"s_add_u32 s100, s100, {WS_STAMP + kidx*0x100000}")
    a("s_mov_b64 exec, 1")
    a(f"v_mov_b32 v{vt}, s100")
    for i in range(n + 1):
        a(f"v_mov_b32 v{vt+1}, s{64+2*i}")
        a(f"global_store_dword v{vt}, v{vt+1}, s[{ws_pair}:{ws_pair+1}] offset:{4*i}")

def stamp_rt(a, i):
    if STAMP:
        a(f"s_memrealtime s[{64+2*i}:{65+2*i}]")
        a("s_waitcnt lgkmcnt(0)")

def code_prefetch(a, label, kb_per_wave, vtmp, vwave, vlane, sp=96):
    a(f"s_getpc_b64 s[{sp}:{sp+1}]")
    a.label(f"{label}_pc")
    a(f"s_sub_u32 s{sp}, s{sp}, {label}_pc-{label}")
    a(f"s_subb_u32 s{sp+1}, s{sp+1}, 0")
    a(f"v_lshlrev_b32 v{vtmp}, 7, v{vlane}")
    a(f"v_lshl_add_u32 v{vtmp}, v{vwave}, 13, v{vtmp}")
    a(f"v_min_u32 v{vtmp}, Lcode_end-{label}-4, v{vtmp}")
    a(f"global_load_dword v{vtmp+1}, v{vtmp}, s[{sp}:{sp+1}]")

DIAG = bool(os.environ.get("DIAG"))
WS_DG = 0x3000000
def diag(a, idx, swave, wsel, ws_pair, vt, sbase=90, pre=False):
    if not DIAG: return
    L = f"Ldg{idx}"
    a(f"s_lshl_b32 s{sbase}, s2, 4")
    a(f"s_add_u32 s{sbase}, s{sbase}, s{swave}")
    a(f"s_cmp_lg_u32 s{sbase}, {wsel + 16*int(os.environ.get('DWG', '43'))}")
    a(f"s_cbranch_scc1 {L}")
    if not pre: a(f"s_memrealtime s[{sbase+2}:{sbase+3}]")
    a("s_waitcnt lgkmcnt(0)")
    a(f"v_mov_b32 v{vt}, {WS_DG + 4*idx}")
    a(f"v_mov_b32 v{vt+1}, s{sbase+2}")
    a(f"global_store_dword v{vt}, v{vt+1}, s[{ws_pair}:{ws_pair+1}]")
    a.label(L)
```

```python
from common import *
EXP = os.environ.get('EXP', '').split(',')

ROWP = 336
PART = 64 * ROWP
K3_LDS = 4 * PART
sW, sX, sO = 20, 24, 28
sWAVE, sTB, sNG, sAO, sWO, sT0, sT1, sT2, sT3, sLOOP, sOO = 40, 41, 42, 43, 44, 45, 46, 47, 48, 51, 52
vLANE, vA, vL16 = 1, 2, 3
NST = 3
FR = 36
XR = 8
XO = 20
LO = 23

def load_list(j):
    b = FR + (j % NST) * 36
    pre = [f"s_add_u32 s{sT1}, s{sAO}, {OH_TG}", f"s_add_u32 s{sT3}, s{sWO}, 4096"]
    ld = [f"buffer_load_dwordx4 {vr(b+16,4)}, v{vL16}, {sr(sW,4)}, s{sWO} offen",
          f"buffer_load_dwordx4 {vr(b,4)}, v{vA}, {sr(sW,4)}, s{sAO} offen",
          f"buffer_load_dwordx4 {vr(b+4,4)}, v{vA}, {sr(sW,4)}, s{sAO} offen offset:256",
          f"buffer_load_dwordx4 {vr(b+8,4)}, v{vA}, {sr(sW,4)}, s{sT1} offen",
          f"buffer_load_dwordx4 {vr(b+12,4)}, v{vA}, {sr(sW,4)}, s{sT1} offen offset:256"]
    for nb in range(1, 4):
        ld.append(f"buffer_load_dwordx4 {vr(b+16+4*nb,4)}, v{vL16}, {sr(sW,4)}, s{sWO} offen offset:{1024*nb}")
    ld.append(f"buffer_load_dwordx4 {vr(b+32,4)}, v{vL16}, {sr(sW,4)}, s{sT3} offen")
    post = [f"s_add_u32 s{sAO}, s{sAO}, {0 if 'afix' in EXP else 4*2048}", f"s_add_u32 s{sWO}, s{sWO}, {0 if 'wfix3' in EXP else 4*5120}"]
    return pre, ld, post

def step(a, j, issue, wait, extra=()):
    b = FR + (j % NST) * 36
    pre, ld, post = load_list(j + NST - 1) if issue else ([], [], [])
    ld = ld + list(extra)
    a(f"s_waitcnt vmcnt({wait})")
    k = 0
    for nb in range(5):
        for m in range(4):
            d = (nb * 4 + m) * 4
            a(f"v_mfma_f32_16x16x32_bf16 {ar(d,4)}, {vr(b+16+4*nb,4)}, {vr(b+4*m,4)}, {ar(d,4)}")
            if k == 0:
                for x in pre: a(x)
            if (k % 2 == 0 or len(ld) > 8) and ld: a(ld.pop(0))
            k += 1
    assert not ld
    for x in post: a(x)

def gen_k3(a):
    kernel_header(a, "k3_kernel")
    a("s_cmp_ge_u32 s2, 256")
    a("s_cbranch_scc1 L3_end")
    if DIAG: a('s_memrealtime s[92:93]')
    stamp(a, 0); stamp_rt(a, 7)
    a("s_load_dwordx2 s[18:19], s[0:1], 96")
    a("s_load_dwordx2 s[4:5], s[0:1], 0")
    a("s_load_dwordx2 s[6:7], s[0:1], 80")
    a(f"v_and_b32 v{vLANE}, 63, v0")
    a("v_lshrrev_b32 v5, 6, v0")
    a(f"s_and_b32 s{sT0}, s2, 7")
    a(f"v_readfirstlane_b32 s{sWAVE}, v5")
    a(f"s_lshr_b32 s{sT1}, s2, 3")
    a(f"s_lshl_b32 s{sTB}, s{sT0}, 2")
    a(f"s_lshr_b32 s{sT0}, s{sT1}, 3")
    a(f"s_add_u32 s{sTB}, s{sTB}, s{sT0}")
    a(f"s_and_b32 s{sNG}, s{sT1}, 7")
    a(f"s_mul_i32 s{sAO}, s{sTB}, {2*OH_TG}")
    a(f"s_lshl_b32 s{sT0}, s{sWAVE}, 11")
    a(f"s_add_u32 s{sAO}, s{sAO}, s{sT0}")
    a(f"s_add_u32 s{sAO}, s{sAO}, {WS_OH}")
    a(f"s_mul_i32 s{sWO}, s{sNG}, {47*5120}")
    a(f"s_mul_i32 s{sT0}, s{sWAVE}, 5120")
    a(f"s_add_u32 s{sWO}, s{sWO}, s{sT0}")
    a(f"s_add_u32 s{sWO}, s{sWO}, {WS_WT}")
    a(f"v_lshlrev_b32 v{vL16}, 4, v{vLANE}")
    a(f"v_lshrrev_b32 v5, 4, v{vLANE}")
    a(f"v_and_b32 v6, 15, v{vLANE}")
    a(f"v_lshlrev_b32 v7, 4, v6")
    a(f"v_lshl_add_u32 v{vA}, v5, 9, v7")
    a(f"s_mov_b32 s{sW+2}, {WS_END}")
    a(f"s_mov_b32 s{sW+3}, 0x20000")
    a("s_waitcnt lgkmcnt(0)")
    a(f"s_mov_b64 {sr(sW,2)}, s[18:19]")
    stamp(a, 4)
    diag(a, 9, sWAVE, 0, 18, 26, pre=True)
    for j in range(NST - 1):
        pre, ld, post = load_list(j)
        for x in pre + ld + post: a(x)
    srd(a, sX, 4, 2048*1280)
    srd(a, sO, 6, 2048*1280)
    a(f"s_mul_i32 s{sOO}, s{sTB}, {64*1280}")
    a(f"s_mul_i32 s{sT0}, s{sNG}, 160")
    a(f"s_add_u32 s{sOO}, s{sOO}, s{sT0}")
    for r in range(80):
        a(f"v_accvgpr_write_b32 a{r}, 0")
    for r in range(3):
        a(f"v_add_u32 v26, {256*r}, v0")
        a(f"v_mul_u32_u24 v27, 6554, v26")
        a(f"v_lshrrev_b32 v27, 16, v27")
        a(f"v_mul_u32_u24 v28, 10, v27")
        a(f"v_sub_u32 v28, v26, v28")
        a(f"v_mul_u32_u24 v29, 1280, v27")
        a(f"v_lshl_add_u32 v{XO+r}, v28, 4, v29")
        a(f"v_mul_u32_u24 v29, {ROWP}, v27")
        a(f"v_lshl_add_u32 v{LO+r}, v28, 5, v29")
    a(f"v_mul_u32_u24 v7, {ROWP}, v6")
    a(f"v_lshl_add_u32 v7, v5, 4, v7")
    a(f"s_mul_i32 s{sT0}, s{sWAVE}, {PART}")
    a(f"v_add_u32 v7, s{sT0}, v7")
    a(f"s_mov_b32 s{sLOOP}, 3")
    stamp(a, 1); stamp_rt(a, 5)
    a.raw(".p2align 6")
    a.label("L3_loop")
    st = len(a.lines)
    for j in range(NST):
        step(a, j, True, 9)
    a(f"s_sub_u32 s{sLOOP}, s{sLOOP}, 1")
    a(f"s_cmp_lg_u32 s{sLOOP}, 0")
    a("s_cbranch_scc1 L3_loop")
    for p in check_linear(a.lines[st:] + a.lines[st:], "k3 loop x2"): print("HAZARD", p)
    a(f"s_cmp_eq_u32 s{sWAVE}, 3")
    a(f"s_cselect_b32 s{sW+2}, 0, s{sW+2}")
    xl = [f"buffer_load_dwordx4 {vr(XR+4*r,4)}, v{XO+r}, {sr(sX,4)}, s{sOO} offen" for r in range(3)]
    step(a, 9, True, 9, xl)
    step(a, 10, False, 12)
    step(a, 11, False, 3)
    stamp(a, 2); stamp_rt(a, 6)
    diag(a, 10, sWAVE, 0, 18, 26)
    a("s_nop 3")
    for nb in range(5):
        for m in range(4):
            d = (nb * 4 + m) * 4
            a(f"ds_write_b128 v7, {ar(d,4)} offset:{m*16*ROWP + nb*64}")
    a("s_waitcnt lgkmcnt(0)")
    a("s_barrier")
    def rd(r):
        b = FR + 32 * r
        for w in range(4):
            a(f"ds_read_b128 {vr(b+8*w,4)}, v{LO+r} offset:{w*PART}")
            a(f"ds_read_b128 {vr(b+8*w+4,4)}, v{LO+r} offset:{w*PART+16}")
    def fin(r):
        b = FR + 32 * r
        for i in range(4):
            a(f"v_lshlrev_b32 v{26+2*i}, 16, v{XR+4*r+i}")
            a(f"v_and_b32 v{27+2*i}, 0xffff0000, v{XR+4*r+i}")
        for i in range(4):
            a(f"v_pk_add_f32 {vr(b+2*i,2)}, {vr(b+2*i,2)}, {vr(b+8+2*i,2)}")
            a(f"v_pk_add_f32 {vr(b+16+2*i,2)}, {vr(b+16+2*i,2)}, {vr(b+24+2*i,2)}")
        for i in range(4):
            a(f"v_pk_add_f32 {vr(b+2*i,2)}, {vr(b+2*i,2)}, {vr(26+2*i,2)}")
        for i in range(4):
            a(f"v_pk_add_f32 {vr(b+2*i,2)}, {vr(b+2*i,2)}, {vr(b+16+2*i,2)}")
        for i in range(4):
            a(f"v_cvt_pk_bf16_f32 v{b+8+i}, v{b+2*i}, v{b+2*i+1}")
        a(f"buffer_store_dwordx4 {vr(b+8,4)}, v{XO+r}, {sr(sO,4)}, s{sOO} offen {os.environ.get('ST3', '')}")
    rd(0)
    a("s_waitcnt lgkmcnt(4)")
    rd(1)
    a("s_waitcnt lgkmcnt(8) vmcnt(0)")
    fin(0)
    a(f"s_cmp_ge_u32 s{sWAVE}, 2")
    a("s_cbranch_scc1 L3_two")
    a("s_waitcnt lgkmcnt(4)")
    rd(2)
    a("s_waitcnt lgkmcnt(0)")
    fin(2)
    a.label("L3_two")
    a("s_waitcnt lgkmcnt(0)")
    fin(1)
    diag(a, 11, sWAVE, 0, 18, 26)
    if DIAG:
        a(f"s_cmp_lg_u32 s90, {16*int(os.environ.get('DWG', '43'))}")
        a("s_cbranch_scc1 L3_end")
        a("s_load_dwordx2 s[16:17], s[0:1], 88")
        a("s_waitcnt vmcnt(0) lgkmcnt(0)")
        a(f"v_lshlrev_b32 v26, 2, v{vLANE}")
        a(f"v_add_u32 v27, {WS_DG}, v26")
        a("global_load_dword v28, v27, s[18:19] sc0 sc1")
        a("s_waitcnt vmcnt(0)")
        a("global_store_dword v26, v28, s[16:17]")
        if os.environ.get("SPIN"):
            i0, i1, mul = (int(v) for v in os.environ["SPIN"].split(","))
            a(f"v_readlane_b32 s94, v28, {i0}")
            a(f"v_readlane_b32 s95, v28, {i1}")
            a("s_nop 3")
            a("s_sub_u32 s94, s95, s94")
            a("s_min_u32 s94, s94, 20000")
            a(f"s_mul_i32 s94, s94, {mul}")
            a("s_memrealtime s[96:97]")
            a("s_waitcnt lgkmcnt(0)")
            a.label("L3_spin")
            a("s_memrealtime s[98:99]")
            a("s_waitcnt lgkmcnt(0)")
            a("s_sub_u32 s95, s98, s96")
            a("s_cmp_lt_u32 s95, s94")
            a("s_cbranch_scc1 L3_spin")
    if STAMP: a("s_waitcnt vmcnt(0)")
    stamp(a, 3)
    stamp_flush(a, 11, 2, sWAVE, 18, 4, 24)
    a.label("L3_end")
    a("s_endpgm")
    nv = FR + NST*36
    return dict(name="k3_kernel", grid=256, block=256, lds=K3_LDS, vgpr=nv+80, sgpr=102 if (STAMP or DIAG) else 64, accum=nv)
```

```python
import math, struct
from asmlib import *

NAME = "parallel_sum__grouped_kv_mqa__mixer_gmlp__prompt"
WS_Q  = 0
WS_Z1 = 0x280000
WS_Z2 = 0x5E0000
WS_KV = 0x960000
WS_OH = 0x9A0000
WS_WT = 0xF80000
WS_ST = 0x1160000
WS_FL = 0x1200000
CPS = 0x10000
F_Q  = WS_FL
F_Z1 = WS_FL + 0x4000
F_Z2 = WS_FL + 0x8000
F_KV = WS_FL + 0xC000
F_ST = WS_FL + 0xD000
WS_EP = WS_FL + 0xF000
WS_ZR = 0x1300000
WS_END = WS_ZR + 0x380000
OH_TG = 96256
KVREC = 3584

def f2u(f):
    return struct.unpack("<I", struct.pack("<f", f))[0]
def hx(f):
    return "0x%08x" % f2u(f)

LOG2E = math.log2(math.e)
QSCALE = LOG2E / math.sqrt(20.0)
GC0 = -2.0 * math.sqrt(2.0 / math.pi) * LOG2E
GC1 = GC0 * 0.044715

def kernel_header(a, name):
    a.raw(f".globl {name}")
    a.raw(".p2align 8")
    a.raw(f".type {name},@function")
    a.label(name)

def kernel_desc(name, vgpr, sgpr, accum):
    return f""".p2align 6
.amdhsa_kernel {name}
  .amdhsa_next_free_vgpr {vgpr}
  .amdhsa_next_free_sgpr {sgpr}
  .amdhsa_accum_offset {accum}
  .amdhsa_group_segment_fixed_size 0
  .amdhsa_kernarg_size 104
  .amdhsa_user_sgpr_count 2
  .amdhsa_user_sgpr_kernarg_segment_ptr 1
  .amdhsa_system_sgpr_workgroup_id_x 1
.end_amdhsa_kernel
"""

def srd(a, d, base, size):
    a(f"s_mov_b32 s{d}, s{base}")
    a(f"s_mov_b32 s{d+1}, s{base+1}")
    a(f"s_mov_b32 s{d+2}, {size}")
    a(f"s_mov_b32 s{d+3}, 0x20000")

import os
STAMP = bool(os.environ.get("STAMP"))
WS_STAMP = 0x2000000
def stamp(a, i):
    if STAMP:
        a(f"s_memtime s[{64+2*i}:{65+2*i}]")
        a("s_waitcnt lgkmcnt(0)")
def stamp_flush(a, n, kidx, swave, ws_pair, nwaves, vt):
    if not STAMP: return
    a(f"s_memrealtime s[{64+2*n}:{65+2*n}]")
    a("s_waitcnt lgkmcnt(0)")
    a(f"s_mul_i32 s100, s2, {nwaves}")
    a(f"s_add_u32 s100, s100, s{swave}")
    a("s_lshl_b32 s100, s100, 6")
    a(f"s_add_u32 s100, s100, {WS_STAMP + kidx*0x100000}")
    a("s_mov_b64 exec, 1")
    a(f"v_mov_b32 v{vt}, s100")
    for i in range(n + 1):
        a(f"v_mov_b32 v{vt+1}, s{64+2*i}")
        a(f"global_store_dword v{vt}, v{vt+1}, s[{ws_pair}:{ws_pair+1}] offset:{4*i}")

def stamp_rt(a, i):
    if STAMP:
        a(f"s_memrealtime s[{64+2*i}:{65+2*i}]")
        a("s_waitcnt lgkmcnt(0)")

def code_prefetch(a, label, kb_per_wave, vtmp, vwave, vlane, sp=96):
    a(f"s_getpc_b64 s[{sp}:{sp+1}]")
    a.label(f"{label}_pc")
    a(f"s_sub_u32 s{sp}, s{sp}, {label}_pc-{label}")
    a(f"s_subb_u32 s{sp+1}, s{sp+1}, 0")
    a(f"v_lshlrev_b32 v{vtmp}, 7, v{vlane}")
    a(f"v_lshl_add_u32 v{vtmp}, v{vwave}, 13, v{vtmp}")
    a(f"v_min_u32 v{vtmp}, Lcode_end-{label}-4, v{vtmp}")
    a(f"global_load_dword v{vtmp+1}, v{vtmp}, s[{sp}:{sp+1}]")

DIAG = bool(os.environ.get("DIAG"))
WS_DG = 0x3000000
def diag(a, idx, swave, wsel, ws_pair, vt, sbase=90, pre=False):
    if not DIAG: return
    L = f"Ldg{idx}"
    a(f"s_lshl_b32 s{sbase}, s2, 4")
    a(f"s_add_u32 s{sbase}, s{sbase}, s{swave}")
    a(f"s_cmp_lg_u32 s{sbase}, {wsel + 16*int(os.environ.get('DWG', '43'))}")
    a(f"s_cbranch_scc1 {L}")
    if not pre: a(f"s_memrealtime s[{sbase+2}:{sbase+3}]")
    a("s_waitcnt lgkmcnt(0)")
    a(f"v_mov_b32 v{vt}, {WS_DG + 4*idx}")
    a(f"v_mov_b32 v{vt+1}, s{sbase+2}")
    a(f"global_store_dword v{vt}, v{vt+1}, s[{ws_pair}:{ws_pair+1}]")
    a.label(L)
```

```python
from common import *
EXP = os.environ.get('EXP', '').split(',')
MARGIN = float(os.environ.get('MARGIN', '90'))
WT = "sc0 sc1"
RD = "sc1"
PL = os.environ.get("PL", "sc0 sc1")
NCP = int(os.environ.get("NCP", "2"))
SL1, SL2, SL3 = (int(v) for v in os.environ.get("SLP", "8,6,8").split(","))

SLOT = 36864
NSL, GSLOT = 6, 24576
CSR = 147456
STR = CSR + 2560
NON = STR + 1024
MX = NON + 512
FL = MX + 4096
KF_LDS = FL + 3072
QB = 5 * GSLOT
KB = QB + 10240
ZP = 2 * GSLOT
VTR = 3 * GSLOT
Z1P = VTR + 8192
NSC = 4 * GSLOT
assert MX % 4096 == 0

sX, sA, sB, sC, sW = 20, 24, 28, 32, 36
sSP, sBI = 24, 28
sWAVE, sRB, sG, sW4, sXC, sJ, sLOOP, sTG = 40, 41, 42, 43, 44, 45, 46, 47
sT0, sT1, sT2, sT3 = 48, 49, 50, 51
sHI = 52
sM = 54
sXO, sAO, sBO, sCO, sAS, sBS, sCS_, sXD, sWD, sSLOT, sROT = 56, 57, 58, 59, 60, 61, 62, 63, 14, 15, 3
sSPO, sZO, sSPD, sZD, sSPB, sZB, sNEED, sCG, sFB, sTH, sRB2 = 56, 57, 58, 59, 60, 61, 62, 63, 14, 15, 3
sB0, sTY, sU, sCSB, sKO, sVO, sHEAD, sKT, sF1 = 56, 57, 58, 59, 60, 61, 62, 63, 14

vLANE, vL16, vL8 = 1, 2, 3
vROW, vGRP = 4, 5
vSTO = 6
vXA, vWA, vSEL, vMU, vR, vGC, vN = 8, 12, 16, 20, 24, 28, 30
BUF = (32, 48)
ACC = (64, 80, 96, 112)
vCS, vT, vD, vSA = 128, 136, 152, 160
vSQ = vSA + 2
vS1, vS2, vS3, vS4 = 164, 165, 166, 167

def mf16(d, a_, b, c):
    cc = c if isinstance(c, str) else vr(c, 16)
    return f"v_mfma_f32_32x32x16_bf16 {vr(d,16)}, {vr(a_,4)}, {vr(b,4)}, {cc}"
def mf8(d, a_, b):
    return f"v_mfma_f32_32x32x8bf16_1k {vr(d,16)}, {vr(a_,2)}, {vr(b,2)}, {vr(d,16)}"

_uid = [0]
def uid(p):
    _uid[0] += 1
    return f"LF_{p}{_uid[0]}"

def spin_lds(a, vaddr, need, vt, sleep=1):
    L = uid("sp")
    a.label(L)
    a(f"ds_read_b32 v{vt}, v{vaddr}")
    a("s_waitcnt lgkmcnt(0)")
    a(f"v_cmp_gt_u32 vcc, {need}, v{vt}")
    a("s_nop 0")
    a(f"s_cbranch_vccz {L}d")
    a(f"s_sleep {sleep}")
    a(f"s_branch {L}")
    a.label(L + "d")

def poll_tags(a, loads, vn, scnt, sleep=2, adv=()):
    L = uid("pl")
    a(f"s_mov_b32 s{scnt}, 0x20000")
    a.label(L)
    for ins, _ in loads: a(ins)
    n = len(loads)
    first = True
    for i, (_, ts) in enumerate(loads):
        a(f"s_waitcnt vmcnt({n-1-i})")
        for t in (ts if isinstance(ts, tuple) else (ts,)):
            a(f"v_cmp_ne_u64 {'vcc' if first else sr(sM,2)}, {vr(t,2)}, {vr(vn,2)}")
            a("s_nop 0")
            if not first: a(f"s_or_b64 vcc, vcc, {sr(sM,2)}")
            first = False
    a(f"s_cbranch_vccz {L}d")
    if adv:
        a(f"s_cmp_gt_u32 s{scnt}, {0x20000 - (NCP-1)}")
        a(f"s_cselect_b32 s{sM}, {CPS}, 0")
        for r in adv: a(f"s_add_u32 s{r}, s{r}, s{sM}")
    a(f"s_sleep {sleep}")
    a(f"s_sub_u32 s{scnt}, s{scnt}, 1")
    a(f"s_cbranch_scc0 {L}")
    a.label(L + "d")

def put_flags(a, soff, vn, vt, lb=0, ls=0, ncp=None, wait=True):
    ncp = NCP if ncp is None else ncp
    a(f"v_lshrrev_b32 v{vt}, {lb}, v{vLANE}")
    a(f"v_lshlrev_b32 v{vt}, 16, v{vt}")
    if lb:
        a(f"v_and_b32 v{vt+1}, {(1 << lb) - 1}, v{vLANE}")
        if isinstance(ls, str): a(f"v_mad_u32_u24 v{vt}, v{vt+1}, {ls}, v{vt}")
        else: a(f"v_lshl_add_u32 v{vt}, v{vt+1}, {ls}, v{vt}")
    if wait: a("s_waitcnt vmcnt(0)")
    n = ncp << lb
    assert n <= 32
    a("s_mov_b32 exec_hi, 0")
    a(f"s_mov_b32 exec_lo, {hex((1 << n) - 1)}")
    a(f"buffer_store_dwordx2 {vr(vn,2)}, v{vt}, {sr(sW,4)}, s{soff} offen {WT}")
    a("s_mov_b64 exec, -1")

def reads(a, s, n):
    buf = BUF[s & 1]
    for u in range(n):
        a(f"ds_read_b128 {vr(buf+4*u,4)}, v{vXA+s} offset:{u*4096}")
        for h in range(2):
            a(f"ds_read_b64_tr_b16 {vr(buf+8+4*u+2*h,2)}, v{vWA+s} offset:{u*8192 + h*256}")

def mfmas(a, s, n):
    buf = BUF[s & 1]
    for (u, b) in ((0, 0), (1, 0), (0, 1), (1, 1)):
        if u < n and b < n:
            a(mf16(ACC[2*b+u], buf+8+4*b, buf+4*u, ACC[2*b+u]))
            if u == n - 1 and s < n:
                a(f"v_mfma_f32_16x16x32_bf16 {vr(vCS+4*b,4)}, {vr(buf+8+4*b,4)}, {vr(vSEL,4)}, {vr(vCS+4*b,4)}")
    if n == 1:
        for r in range(4):
            t = vT + 2*(r & 1)
            a(f"v_lshlrev_b32 v{t}, 16, v{buf+r}")
            a(f"v_and_b32 v{t+1}, v{vT+4}, v{buf+r}")
            a(f"v_add_f32 v{vS1}, v{vS1}, v{t}")
            a(f"v_fmac_f32 v{vS2}, v{t}, v{t}")
            a(f"v_add_f32 v{vS3}, v{vS3}, v{t+1}")
            a(f"v_fmac_f32 v{vS4}, v{t+1}, v{t+1}")

def compute_loop(a, tag, n):
    nr = 3 * n
    a("s_barrier")
    stamp(a, 1)
    reads(a, 0, n)
    a(f"s_mov_b32 s{sLOOP}, 0")
    a.raw(".p2align 6")
    a.label(f"LF_loop{tag}")
    st = len(a.lines)
    for s in range(3):
        reads(a, s+1, n)
        if s == 2:
            a(f"s_add_u32 s{sLOOP}, s{sLOOP}, 1")
            a(f"s_and_b32 s{sT0}, s{sLOOP}, 3")
            a(f"s_cselect_b32 s{sT0}, s{sT1}, s{sT2}")
            for i in range(4):
                a(f"v_add_u32 v{vXA+i}, s{sT0}, v{vXA+i}")
                a(f"v_add_u32 v{vWA+i}, s{sT0}, v{vWA+i}")
        a(f"s_waitcnt lgkmcnt({nr})")
        mfmas(a, s, n)
    a("s_waitcnt lgkmcnt(0)")
    a("s_barrier")
    reads(a, 0, n)
    mfmas(a, 3, n)
    a(f"s_cmp_lt_u32 s{sLOOP}, 10")
    a(f"s_cbranch_scc1 LF_loop{tag}")
    for p in check_linear(a.lines[st:] + a.lines[st:], "kf loop x2"): print("HAZARD", p)
    a("s_waitcnt lgkmcnt(0)")
    stamp(a, 2)

def write_colsum(a, n, sslot):
    a(f"v_and_b32 v{vT}, 1, v{vLANE}")
    a(f"v_lshlrev_b32 v{vT}, 8, v{vT}")
    a(f"v_lshrrev_b32 v{vT+1}, 4, v{vLANE}")
    a(f"v_lshl_add_u32 v{vT}, v{vT+1}, 6, v{vT}")
    a(f"s_lshl2_add_u32 s{sT0}, s{sslot}, s{sCSB}")
    a(f"v_add_u32 v{vT}, s{sT0}, v{vT}")
    m = 4 * n
    for k in range(m): a(f"v_cvt_pk_bf16_f32 v{vT+2+k}, v{vCS+k}, v{vCS+k}")
    for k in range(m): a(f"v_lshlrev_b32 v{vT+2+k}, 16, v{vT+2+k}")
    for k in range(m): a(f"v_sub_f32 v{vT+2+k}, v{vCS+k}, v{vT+2+k}")
    for k in range(m): a(f"v_cvt_pk_bf16_f32 v{vT+2+k}, v{vCS+k}, v{vT+2+k}")
    a("s_mov_b32 exec_lo, 0x00030003")
    a("s_mov_b32 exec_hi, 0x00030003")
    for b in range(n):
        for r in range(4):
            a(f"ds_write_b32 v{vT}, v{vT+2+4*b+r} offset:{b*1024 + r*16}")
    a("s_mov_b64 exec, -1")

def scale(a, acc, hi, r=vR):
    sel = "op_sel:[0,1] op_sel_hi:[1,1]" if hi else "op_sel_hi:[1,0]"
    for i in range(8):
        a(f"v_pk_mul_f32 {vr(acc+2*i,2)}, {vr(acc+2*i,2)}, {vr(r,2)} {sel}")

def gelu(a, acc, r):
    scale(a, acc, False, r)
    for i in range(8):
        a(f"v_pk_mul_f32 {vr(vT+2*i,2)}, {vr(acc+2*i,2)}, {vr(acc+2*i,2)}")
    for i in range(8):
        a(f"v_pk_fma_f32 {vr(vT+2*i,2)}, {vr(vT+2*i,2)}, {vr(vGC,2)}, {vr(vGC,2)} op_sel:[0,0,1] op_sel_hi:[1,0,1]")
    for i in range(8):
        a(f"v_pk_mul_f32 {vr(vT+2*i,2)}, {vr(vT+2*i,2)}, {vr(acc+2*i,2)}")
    for i in range(16):
        a(f"v_exp_f32 v{vT+i}, v{vT+i}")
    for i in range(8):
        a(f"v_pk_add_f32 {vr(vT+2*i,2)}, {vr(vT+2*i,2)}, 1.0 op_sel_hi:[1,0]")
    for i in range(16):
        a(f"v_rcp_f32 v{vT+i}, v{vT+i}")
    for i in range(8):
        a(f"v_pk_mul_f32 {vr(acc+2*i,2)}, {vr(acc+2*i,2)}, {vr(vT+2*i,2)}")

def pack(a, acc, d=vD):
    for i in range(8):
        a(f"v_cvt_pk_bf16_f32 v{d+i}, v{acc+2*i}, v{acc+2*i+1}")

def swaps(a, d=vD, n=2):
    a("s_nop 1")
    for i in range(n):
        a(f"v_permlane32_swap_b32 v{d+4*i}, v{d+4*i+2}")
        a(f"v_permlane32_swap_b32 v{d+4*i+1}, v{d+4*i+3}")

def store_lin(a, soff, d=vD):
    a(f"buffer_store_dwordx4 {vr(d,4)}, v{vL16}, {sr(sW,4)}, s{soff} offen {WT}")
    a(f"buffer_store_dwordx4 {vr(d+4,4)}, v{vL16}, {sr(sW,4)}, s{soff} offen offset:1024 {WT}")
    a("s_nop 1")

def epi_q(a, acc, sblk, u=0):
    scale(a, acc, True, vR + 2*u)
    pack(a, acc)
    swaps(a)
    if u == 0:
        a(f"s_mul_i32 s{sT0}, s{sTG}, 40960")
        a(f"s_lshl_b32 s{sT1}, s{sblk}, 11")
        a(f"s_add_u32 s{sT0}, s{sT0}, s{sT1}")
        if WS_Q: a(f"s_add_u32 s{sT0}, s{sT0}, {WS_Q}")
    else:
        a(f"s_add_u32 s{sT0}, s{sT0}, 40960")
    store_lin(a, sT0)

def epi_z(a, u):
    acc = ACC[u]
    gelu(a, acc, vR + 2*u)
    pack(a, acc)
    if u == 0:
        a(f"s_cmp_eq_u32 s{sU}, 2")
        a("s_cbranch_scc0 LF_pq")
        put_flags(a, sF1, vN, vT, 1, 8)
        a.label("LF_pq")
    a(f"ds_write_b128 v{vSTO+1}, {vr(vD,4)} offset:{u*4096}")
    a(f"ds_write_b128 v{vSTO+1}, {vr(vD+4,4)} offset:{u*4096 + 1024}")

def gen_P(a):
    sB1, sTY1 = sKO, sVO
    compute_loop(a, "p", 2)
    a(f"s_and_b32 s{sT3}, s{sWAVE}, 1")
    write_colsum(a, 2, sT3)
    a(f"s_lshr_b32 s{sT2}, s{sWAVE}, 1")
    a(f"s_cmp_le_u32 s{sG}, 2")
    a(f"s_cselect_b32 s{sB0}, 2, 13")
    a(f"s_cselect_b32 s{sB1}, 13, -3")
    a(f"s_cselect_b32 s{sTY}, 0, 1")
    a(f"s_cmp_ge_u32 s{sG}, 14")
    a(f"s_cselect_b32 s{sB0}, -14, s{sB0}")
    a(f"s_cselect_b32 s{sTY}, 0, s{sTY}")
    a(f"s_add_i32 s{sB0}, s{sB0}, s{sG}")
    a(f"s_add_i32 s{sB1}, s{sB1}, s{sG}")
    a(f"s_lshl1_add_u32 s{sB0}, s{sB0}, s{sT2}")
    a(f"s_lshl1_add_u32 s{sB1}, s{sB1}, s{sT2}")
    a(f"s_lshl_b32 s{sTG}, s{sRB}, 2")
    a(f"s_lshl1_add_u32 s{sTG}, s{sT3}, s{sTG}")
    a(f"v_and_b32 v{vT}, 0x1f0, v{vL16}")
    a(f"v_add_u32 v{vT}, s{sCSB}, v{vT}")
    a(f"v_and_b32 v{vT+1}, 0xf8, v{vL8}")
    a(f"s_lshl_b32 s{sT0}, s{sT3}, 9")
    a(f"s_add_u32 s{sT0}, s{sT0}, {STR}")
    a(f"v_add_u32 v{vT+1}, s{sT0}, v{vT+1}")
    a(f"v_mov_b32 v{vT+6}, {NON}")
    a(f"s_lshl_b32 s{sT0}, s{sT3}, 13")
    a(f"s_lshl_b32 s{sT1}, s{sT2}, 11")
    a(f"s_add_u32 s{sT0}, s{sT0}, s{sT1}")
    a(f"s_add_u32 s{sT0}, s{sT0}, {ZP}")
    a(f"v_add_u32 v{vSTO}, s{sT0}, v{vL16}")
    a(f"v_mov_b32 v{vSA}, 1")
    a("s_setprio 2")
    a("s_waitcnt lgkmcnt(0)")
    a("s_barrier")
    a(f"ds_read_b64 {vr(vT+2,2)}, v{vT+1}")
    a(f"ds_read_b64 {vr(vT+4,2)}, v{vT+1} offset:256")
    for b in range(2):
        a(f"ds_read_b64 {vr(BUF[0]+4*b,2)}, v{vT} offset:{b*1024}")
        a(f"v_mov_b32 v{BUF[0]+4*b+2}, 0")
        a(f"v_mov_b32 v{BUF[0]+4*b+3}, 0")
    a(f"ds_read_b64 {vr(vN,2)}, v{vT+6}")
    a("s_waitcnt lgkmcnt(3)")
    MU = (vMU, BUF[1])
    for u in range(2):
        a(f"v_cndmask_b32 v{MU[u]}, v{vT+2+2*u}, 0, {sr(sHI,2)}")
        a(f"v_mov_b32 v{vR+2*u}, v{vT+3+2*u}")
        for i in range(1, 4):
            a(f"v_mov_b32 v{MU[u]+i}, v{MU[u]}")
        a(f"v_mul_f32 v{vR+2*u+1}, {hx(QSCALE)}, v{vT+3+2*u}")
    a("s_waitcnt lgkmcnt(0)")
    for b in range(2):
        for u in range(2):
            a(mf16(ACC[2*b+u], BUF[0]+4*b, MU[u], ACC[2*b+u]))
    a(f"s_mov_b32 s{sU}, 0")
    a("s_nop 7")
    stamp(a, 3)
    a(f"s_cmp_eq_u32 s{sTY}, 1")
    a("s_cbranch_scc1 LF_pg")
    epi_q(a, ACC[0], sB0, 0)
    epi_q(a, ACC[1], sB0, 1)
    a(f"s_lshl_b32 s{sF1}, s{sTG}, 8")
    a(f"s_lshl3_add_u32 s{sF1}, s{sB0}, s{sF1}")
    a(f"s_add_u32 s{sF1}, s{sF1}, {F_Q}")
    a("s_branch LF_pn")
    a.label("LF_pg")
    a(f"s_cmp_ge_u32 s{sB0}, 27")
    a(f"s_cselect_b32 s{sT0}, 0, {Z1P - ZP}")
    a(f"v_add_u32 v{vSTO+1}, s{sT0}, v{vSTO}")
    epi_z(a, 0)
    epi_z(a, 1)
    a("s_waitcnt lgkmcnt(0)")
    a.label("LF_pn")
    a(f"ds_add_u32 v{vROW}, v{vSA}")
    a(f"s_cmp_lg_u32 s{sU}, 0")
    a("s_cbranch_scc1 LF_pd")
    a(f"s_sub_u32 s{sU}, 2, s{sTY}")
    a(f"s_mov_b32 s{sB0}, s{sB1}")
    for r in range(32): a(f"v_mov_b32 v{ACC[0]+r}, v{ACC[2]+r}")
    a("s_branch LF_pg")
    a.label("LF_pd")
    stamp(a, 4)
    a("s_branch LF_att")

def gen_S(a):
    a.label("LF_S")
    a(f"s_lshl_b32 s{sT0}, s2, 2")
    a(f"s_or_b32 s{sT0}, s{sT0}, s{sW4}")
    a("s_cbranch_scc1 LF_nolead")
    a(f"s_mov_b32 s{sT0}, {WS_EP}")
    a(f"buffer_load_dwordx2 {vr(vD,2)}, v{vCS}, {sr(sW,4)}, s{sT0} offen sc0 sc1")
    a("s_waitcnt vmcnt(0)")
    a(f"v_add_u32 v{vD}, 1, v{vD}")
    a(f"v_add_u32 v{vD+1}, 0x9e3779b9, v{vD+1}")
    a(f"v_mov_b32 v{vD+2}, 1")
    a(f"v_mov_b32 v{vD+3}, 1")
    a("s_mov_b64 exec, 1")
    a(f"global_store_dwordx4 v{vCS}, {vr(vD,4)}, s[16:17] sc0 sc1")
    a(f"buffer_store_dwordx2 {vr(vD,2)}, v{vCS}, {sr(sW,4)}, s{sT0} offen sc0 sc1")
    a("s_mov_b64 exec, -1")
    a.label("LF_nolead")
    for r in (vS1, vS2, vS3, vS4):
        a(f"v_mov_b32 v{r}, 0")
    a(f"v_mov_b32 v{vT+4}, 0xffff0000")
    a("s_setprio 1")
    compute_loop(a, "s", 1)
    a("s_setprio 3")
    a(f"v_add_f32 v{vS1}, v{vS1}, v{vS3}")
    a(f"v_add_f32 v{vS2}, v{vS2}, v{vS4}")
    a(f"v_and_b32 v{vS3}, 0xf8, v{vL8}")
    a(f"s_lshl_b32 s{sT0}, s{sW4}, 8")
    a(f"v_permlane32_swap_b32 v{vS1}, v{vS2}")
    a(f"s_add_u32 s{sT0}, s{sT0}, {STR}")
    a(f"v_add_str" if False else f"v_add_u32 v{vS3}, s{sT0}, v{vS3}")
    a(f"v_add_f32 v{vS1}, v{vS1}, v{vS2}")
    a(f"v_mul_f32 v{vS1}, {hx(1.0/640)}, v{vS1}")
    a(f"v_mov_b32 v{vS2}, v{vS1}")
    a("s_nop 1")
    a(f"v_permlane32_swap_b32 v{vS1}, v{vS2}")
    a("s_nop 0")
    a(f"v_cvt_pk_bf16_f32 v{vD}, -v{vS1}, -v{vS1}")
    a(f"v_fma_f32 v{vS2}, -v{vS1}, v{vS1}, v{vS2}")
    a(f"v_max_f32 v{vS2}, 0, v{vS2}")
    a(f"v_add_f32 v{vS2}, {hx(1e-5)}, v{vS2}")
    a(f"v_rsq_f32 v{vD+1}, v{vS2}")
    a("s_nop 0")
    a(f"ds_write_b64 v{vS3}, {vr(vD,2)}")
    write_colsum(a, 1, sW4)
    a(f"v_cndmask_b32 v{vMU}, v{vD}, 0, {sr(sHI,2)}")
    a(f"v_mov_b32 v{vR}, v{vD+1}")
    for i in range(1, 4):
        a(f"v_mov_b32 v{vMU+i}, v{vMU}")
    a(f"v_mul_f32 v{vR+1}, {hx(QSCALE)}, v{vD+1}")
    a(f"v_and_b32 v{vT}, 0x1f0, v{vL16}")
    a(f"v_add_u32 v{vT}, s{sCSB}, v{vT}")
    a(f"v_mov_b32 v{vT+6}, {NON}")
    a(f"s_lshl2_add_u32 s{sTG}, s{sRB}, s{sW4}")
    a("s_waitcnt lgkmcnt(0)")
    a("s_barrier")
    a(f"ds_read_b128 {vr(BUF[0],4)}, v{vT}")
    a(f"ds_read_b64 {vr(vN,2)}, v{vT+6}")
    a("s_waitcnt lgkmcnt(0)")
    acc = ACC[0]
    a(mf16(acc, BUF[0], vMU, acc))
    u = vT
    a("s_nop 6")
    stamp(a, 3)
    a(f"s_cmp_eq_u32 s{sG}, 0")
    a(f"s_cbranch_scc1 LF_ck")
    a(f"s_cmp_eq_u32 s{sG}, 1")
    a(f"s_cbranch_scc1 LF_cv")
    a(f"s_add_u32 s{sB0}, s{sG}, 8")
    a(f"s_cmp_lt_u32 s{sG}, 10")
    a(f"s_cbranch_scc1 LF_cq")
    a(f"s_add_u32 s{sB0}, s{sG}, 4")
    a(f"s_cmp_lt_u32 s{sG}, 14")
    a(f"s_cbranch_scc1 LF_cn")
    a.label("LF_cq")
    epi_q(a, acc, sB0)
    a(f"s_lshl_b32 s{sF1}, s{sTG}, 8")
    a(f"s_lshl3_add_u32 s{sF1}, s{sB0}, s{sF1}")
    a(f"s_add_u32 s{sF1}, s{sF1}, {F_Q}")
    a(f"s_branch LF_cf")
    a.label(f"LF_ck")
    a("s_nop 2")
    scale(a, acc, False)
    pack(a, acc)
    a(f"v_mov_b32 v{u}, 0x3f803f80")
    a(f"v_mov_b32 v{u+1}, 0x00003f80")
    a(f"v_cndmask_b32 v{vD+4}, v{vD+4}, v{u}, {sr(sHI,2)}")
    a(f"v_cndmask_b32 v{vD+5}, v{vD+5}, v{u+1}, {sr(sHI,2)}")
    swaps(a, n=1)
    a(f"s_mul_i32 s{sT0}, s{sTG}, {KVREC}")
    a(f"s_add_u32 s{sT0}, s{sT0}, {WS_KV}")
    a(f"buffer_store_dwordx4 {vr(vD,4)}, v{vL16}, {sr(sW,4)}, s{sT0} offen {WT}")
    a(f"buffer_store_dwordx2 {vr(vD+4,2)}, v{vL8}, {sr(sW,4)}, s{sT0} offen offset:3072 {WT}")
    a(f"s_lshl3_add_u32 s{sF1}, s{sTG}, {F_KV}")
    a(f"s_branch LF_cr")
    a.label(f"LF_cv")
    a("s_nop 0")
    scale(a, acc, False)
    pack(a, acc)
    a(f"v_mov_b32 v{u}, 0x00003f80")
    a(f"v_cndmask_b32 v{vD+4}, v{vD+4}, v{u}, {sr(sHI,2)}")
    a(f"v_cndmask_b32 v{vD+5}, v{vD+5}, 0, {sr(sHI,2)}")
    a(f"v_mov_b32 v{vD+6}, 0")
    a(f"v_mov_b32 v{vD+7}, 0")
    a(f"v_and_b32 v{u+1}, 31, v{vLANE}")
    a(f"v_lshlrev_b32 v{u+1}, 6, v{u+1}")
    a(f"v_lshrrev_b32 v{u+2}, 5, v{vLANE}")
    a(f"v_lshl_add_u32 v{u+1}, v{u+2}, 3, v{u+1}")
    a(f"s_lshl_b32 s{sT0}, s{sW4}, 11")
    a(f"s_add_u32 s{sT0}, s{sT0}, {VTR}")
    a(f"v_add_u32 v{u+1}, s{sT0}, v{u+1}")
    for k in range(4):
        a(f"ds_write_b64 v{u+1}, {vr(vD+2*k,2)} offset:{16*k}")
    a(f"v_bfe_u32 v{u+3}, v{vLANE}, 2, 2")
    a(f"v_lshl_add_u32 v{u+3}, v{u+2}, 2, v{u+3}")
    a(f"v_lshlrev_b32 v{u+3}, 6, v{u+3}")
    a(f"v_bfe_u32 v{u+4}, v{vLANE}, 4, 1")
    a(f"v_lshl_add_u32 v{u+3}, v{u+4}, 5, v{u+3}")
    a(f"v_and_b32 v{u+4}, 3, v{vLANE}")
    a(f"v_lshl_add_u32 v{u+3}, v{u+4}, 3, v{u+3}")
    a(f"v_add_u32 v{u+3}, s{sT0}, v{u+3}")
    a("s_waitcnt lgkmcnt(0)")
    for k in range(4):
        a(f"ds_read_b64_tr_b16 {vr(vD+2*k,2)}, v{u+3} offset:{512*k}")
    a(f"s_mul_i32 s{sT0}, s{sTG}, {KVREC}")
    a(f"s_add_u32 s{sT0}, s{sT0}, {WS_KV + 1024}")
    a("s_waitcnt lgkmcnt(0)")
    store_lin(a, sT0)
    a(f"s_lshl3_add_u32 s{sF1}, s{sTG}, {F_KV + 512}")
    a.label("LF_cr")
    put_flags(a, sF1, vN, u, 2, 10)
    a("s_branch LF_cn")
    a.label("LF_cf")
    put_flags(a, sF1, vN, u)
    a.label("LF_cn")
    a(f"v_mov_b32 v{vT}, 2")
    a(f"ds_write_b32 v{vROW}, v{vT}")
    a("s_setprio 1")
    stamp(a, 4)

S = (8, 24)
P = (40, 48)
O = (56, 72, 88, 104)
QL = (120, 124, 128, 132)
QH = (136, 138, 140, 142)
KL = (144, 148)
VV = (152, 160)
KH = (4, 6)

def phase(a, Sx, Px, mf, x0=(), x2=(), x3=()):
    E = lambda i: f"v_exp_f32 v{Sx+i}, v{Sx+i}"
    C = lambda k: f"v_cvt_pk_bf16_f32 v{Px+k}, v{Sx+2*k}, v{Sx+2*k+1}"
    for x in x0: a(x)
    a(mf[0])
    a(E(0)); a(E(1)); a(E(2)); a(E(3)); a(E(4)); a(C(0))
    a(mf[1])
    a(E(5)); a(E(6)); a(C(1)); a(E(7)); a(E(8)); a(C(2))
    for x in x2: a(x)
    a(mf[2])
    a(E(9)); a(C(3)); a(E(10)); a(E(11)); a(C(4)); a(E(12))
    a(mf[3])
    a(E(13))
    for x in x3: a(x)
    a(C(5)); a(E(14)); a(E(15)); a(C(6)); a(C(7))

KRD = os.environ.get("KRD", RD)
def ldK(b):
    return [f"buffer_load_dwordx4 {vr(KL[b],4)}, v{vL16}, {sr(sW,4)}, s{sKO} offen {KRD}",
            f"buffer_load_dwordx2 {vr(KH[b],2)}, v{vL8}, {sr(sW,4)}, s{sKO} offen offset:3072 {KRD}",
            f"s_add_u32 s{sKO}, s{sKO}, {4*KVREC}"]
def ldV(b):
    return [f"buffer_load_dwordx4 {vr(VV[b],4)}, v{vL16}, {sr(sW,4)}, s{sVO} offen offset:1024 {KRD}",
            f"buffer_load_dwordx4 {vr(VV[b]+4,4)}, v{vL16}, {sr(sW,4)}, s{sVO} offen offset:2048 {KRD}",
            f"s_add_u32 s{sVO}, s{sVO}, {4*KVREC}"]

def att_tile(a, c):
    n = c ^ 1
    def qk(j, kb): return [mf16(S[j & 1], KL[kb], QL[j], "0"), mf8(S[j & 1], KH[kb], QH[j])]
    def pv(j, vb): return [mf16(O[j], VV[vb], P[j & 1], O[j]), mf16(O[j], VV[vb]+4, P[j & 1]+4, O[j])]
    phase(a, S[0], P[0], qk(1, c) + pv(3, n))
    phase(a, S[1], P[1], qk(2, c) + pv(0, c), x2=["s_waitcnt vmcnt(2)"], x3=ldV(n))
    phase(a, S[0], P[0], qk(3, c) + pv(1, c))
    phase(a, S[1], P[1], qk(0, n) + pv(2, c), x0=["s_waitcnt vmcnt(2)"], x3=ldK(c))

def make_qhi(a, Q, vm, t):
    a(f"v_cvt_pk_bf16_f32 v{t}, -v{vm}, -v{vm}")
    a(f"v_lshlrev_b32 v{t}, 16, v{t}")
    a(f"v_add_f32 v{t+1}, v{vm}, v{t}")
    a(f"v_cvt_pk_bf16_f32 v{t+2}, v{t}, -v{t+1}")
    a(f"v_and_b32 v{t}, 0xffff0000, v{t+2}")
    a(f"v_add_f32 v{t+1}, v{t+1}, v{t}")
    a(f"v_cvt_pk_bf16_f32 v{t+3}, -v{t+1}, 0")
    a(f"v_cndmask_b32 v{Q}, v{Q}, v{t+2}, {sr(sHI,2)}")
    a(f"v_cndmask_b32 v{Q+1}, v{Q+1}, v{t+3}, {sr(sHI,2)}")

def max16(a, Sx, vm, first):
    k = 0
    if first:
        a(f"v_max3_f32 v{vm}, v{Sx}, v{Sx+1}, v{Sx+2}")
        a(f"v_max_f32 v{vm}, v{vm}, v{Sx+3}")
        k = 4
    for i in range(k, 16, 2):
        a(f"v_max3_f32 v{vm}, v{vm}, v{Sx+i}, v{Sx+i+1}")

def halves_max(a, vm, t):
    a(f"v_mov_b32 v{t}, v{vm}")
    a("s_nop 1")
    a(f"v_permlane32_swap_b32 v{t}, v{vm}")
    a("s_nop 0")
    a(f"v_max_f32 v{vm}, v{vm}, v{t}")

def gen_att(a):
    a.label("LF_att")
    AD = O[2]
    vrow, vgrp, vstg = AD+14, AD+15, O[3]+15
    a(f"v_mov_b32 v{vrow}, v{vROW}")
    a(f"s_and_b32 s{sKT}, s{sWAVE}, 3")
    a(f"s_lshl_b32 s{sTG}, s{sXC}, 3")
    a(f"s_lshr_b32 s{sT0}, s{sJ}, 2")
    a(f"s_add_u32 s{sTG}, s{sTG}, s{sT0}")
    a(f"s_and_b32 s{sT3}, s{sJ}, 3")
    a(f"s_lshl3_add_u32 s{sHEAD}, s{sT3}, s{sWAVE}")
    a(f"s_mul_i32 s{sVO}, s{sKT}, {KVREC}")
    a(f"s_add_u32 s{sVO}, s{sVO}, {WS_KV}")
    a(f"s_add_u32 s{sKO}, s{sVO}, {4*KVREC}")
    a(f"s_cmp_lt_u32 s{sWAVE}, 4")
    a("s_cbranch_scc1 LF_nst")
    a(f"v_mov_b32 v{O[0]+8}, {FL + 2048}")
    a(f"v_mov_b32 v{O[0]+9}, 3")
    a(f"v_mov_b32 v{O[0]+10}, 4")
    a(f"s_cmp_lg_u32 s{sWAVE}, 4")
    a("s_cbranch_scc1 LF_npl")
    a(f"s_mul_i32 s{sT1}, s{sT3}, 40")
    a(f"s_lshl_b32 s{sT0}, s{sTG}, 8")
    a(f"s_add_u32 s{sT1}, s{sT1}, s{sT0}")
    a(f"s_add_u32 s{sT1}, s{sT1}, {F_Q}")
    a(f"s_and_b32 s{sT2}, s2, 3")
    a(f"s_lshl_b32 s{sT2}, s{sT2}, 10")
    a(f"s_add_u32 s{sT2}, s{sT2}, {F_KV}")
    a(f"v_min_u32 v{O[0]}, 32, v{vL8}")
    a(f"v_and_b32 v{O[0]+1}, 7, v{vLANE}")
    a(f"v_lshlrev_b32 v{O[0]+1}, 8, v{O[0]+1}")
    a(f"v_add_u32 v{O[0]+1}, {FL + 1024}, v{O[0]+1}")
    spin_lds(a, O[0]+1, int(os.environ.get('APW', '2')), O[0]+2, sleep=2)
    poll_tags(a, [(f"buffer_load_dwordx4 {vr(O[0]+4,4)}, v{vL16}, {sr(sW,4)}, s{sT2} offen {PL}", (O[0]+4, O[0]+6)),
                  (f"buffer_load_dwordx2 {vr(O[0]+2,2)}, v{O[0]}, {sr(sW,4)}, s{sT1} offen {PL}", O[0]+2)], vN, sT0, sleep=SL1, adv=(sT1, sT2))
    a(f"ds_write_b32 v{vrow}, v{O[0]+9}")
    stamp(a, 9)
    a.label("LF_npl")
    a(f"s_mul_i32 s{sT1}, s{sT3}, 10240")
    a(f"s_mul_i32 s{sT0}, s{sTG}, 40960")
    a(f"s_add_u32 s{sT1}, s{sT1}, s{sT0}")
    if WS_Q: a(f"s_add_u32 s{sT1}, s{sT1}, {WS_Q}")
    a(f"s_lshl_b32 s{sT0}, s{sKT}, 10")
    a(f"s_add_u32 s{sT1}, s{sT1}, s{sT0}")
    spin_lds(a, O[0]+8, 3, O[0]+2, sleep=1)
    a(f"s_add_u32 m0, s{sT0}, {KB}")
    a(f"s_add_u32 s{sT2}, s{sT1}, 4096")
    a(f"buffer_load_dwordx4 v{vL16}, {sr(sW,4)}, s{sVO} offen {RD} lds")
    a(f"s_add_u32 m0, s{sT0}, {KB + 4096 - 3072}")
    a("s_nop 0")
    a(f"buffer_load_dwordx4 v{vL16}, {sr(sW,4)}, s{sVO} offen offset:3072 {RD} lds")
    a(f"s_add_u32 m0, s{sT0}, {QB}")
    a("s_nop 0")
    a(f"buffer_load_dwordx4 v{vL16}, {sr(sW,4)}, s{sT1} offen {RD} lds")
    a(f"s_add_u32 m0, s{sT0}, {QB + 4096}")
    a(f"s_cmp_ge_u32 s{sKT}, 2")
    a(f"buffer_load_dwordx4 v{vL16}, {sr(sW,4)}, s{sT2} offen {RD} lds")
    a("s_cbranch_scc1 LF_st2")
    a(f"s_add_u32 m0, s{sT0}, {QB + 8192}")
    a(f"s_add_u32 s{sT2}, s{sT1}, 8192")
    a(f"buffer_load_dwordx4 v{vL16}, {sr(sW,4)}, s{sT2} offen {RD} lds")
    a.label("LF_st2")
    a.label("LF_nst")
    tq = P[0]
    a(f"v_add_u32 v{tq}, {QB}, v{vL16}")
    a(f"v_and_b32 v{tq+1}, 0x1f0, v{vL16}")
    a(f"v_add_u32 v{tq+1}, {QB}, v{tq+1}")
    for j in range(4):
        if j: a(f"s_xor_b32 s{sT0}, s{sWAVE}, {j}")
        a(f"s_mul_i32 s{sT0}, s{sT0 if j else sWAVE}, 5")
        for k in range(3):
            if k == 1: a(f"s_add_u32 s{sT0}, s{sT0}, 1")
            if k == 2: a(f"s_add_u32 s{sT0}, s{sT0}, 3")
            a(f"s_lshr_b32 s{sT1}, s{sT0}, 1")
            a(f"s_lshl_b32 s{sT1}, s{sT1}, 9")
            a(f"s_and_b32 s{sT2}, s{sT0}, 1")
            a(f"s_lshl3_add_u32 s{sT1}, s{sT2}, s{sT1}")
            a(f"v_add_u32 v{AD+3*j+k}, s{sT1}, v{tq if k < 2 else tq+1}")
    a(f"v_add_u32 v{tq+1}, {KB + 4096}, v{vL8}")
    a(f"s_lshl_b32 s{sT0}, s{sKT}, 10")
    a(f"v_add_u32 v{AD+12}, s{sT0}, v{tq}")
    a(f"v_add_u32 v{AD+13}, s{sT0}, v{tq+1}")
    a(f"v_and_b32 v{vgrp}, 3, v{vLANE}")
    a(f"v_lshlrev_b32 v{vgrp}, 8, v{vgrp}")
    a(f"s_and_b32 s{sT0}, s{sWAVE}, 4")
    a(f"s_lshl_b32 s{sT0}, s{sT0}, 8")
    a(f"s_add_u32 s{sT0}, s{sT0}, {FL + 1024}")
    a(f"v_add_u32 v{vgrp}, s{sT0}, v{vgrp}")
    a(f"v_and_b32 v{vstg}, 3, v{vLANE}")
    a(f"v_lshlrev_b32 v{vstg}, 8, v{vstg}")
    a(f"v_add_u32 v{vstg}, {FL + 2048}, v{vstg}")
    for r in list(range(O[3], O[3]+15)) + list(range(P[1], P[1]+8)) + list(range(VV[1], VV[1]+8)):
        a(f"v_mov_b32 v{r}, 0")
    a(f"s_cmp_lt_u32 s{sWAVE}, 4")
    a("s_cbranch_scc1 LF_st3")
    a("s_waitcnt vmcnt(0)")
    a(f"ds_write_b32 v{vrow}, v{O[0]+10}")
    a.label("LF_st3")
    spin_lds(a, vstg, 4, S[0], sleep=1)
    a('s_setprio 3')
    stamp(a, 10)
    kb = [(O[0], O[0]+4), (O[0]+8, O[0]+12), (O[1], O[1]+4), (O[1]+8, O[1]+12)]
    def rq(j):
        for k in range(3):
            dst = vr(QL[j] + 2*k, 2) if k < 2 else vr(QH[j], 2)
            a(f"ds_read_b64 {dst}, v{AD+3*j+k}")
    rq(0)
    for t in range(4):
        a(f"ds_read_b128 {vr(kb[t][0],4)}, v{tq} offset:{KB - QB + 1024*t}")
        a(f"ds_read_b64 {vr(kb[t][1],2)}, v{tq+1} offset:{1024*t}")
    a("s_waitcnt lgkmcnt(8)")
    for r in (QH[0], QH[0]+1):
        a(f"v_cndmask_b32 v{r}, v{r}, 0, {sr(sHI,2)}")
    vm = P[0] + 2
    for t in range(4):
        Sx = S[t & 1]
        a(f"s_waitcnt lgkmcnt({6-2*t})")
        if t == 0: a("s_nop 0")
        a(mf16(Sx, kb[t][0], QL[0], "0"))
        a(mf8(Sx, kb[t][1], QH[0]))
        if t >= 1:
            if t == 1: a("s_nop 8")
            if t == 3:
                a(f"ds_read_b128 {vr(KL[0],4)}, v{AD+12} offset:{KB - QB}")
                a(f"ds_read_b64 {vr(KH[0],2)}, v{AD+13}")
                for j in (1, 2, 3): rq(j)
            max16(a, S[(t-1) & 1], vm, t == 1)
            a("s_nop 1")
    a("s_nop 1")
    max16(a, S[1], vm, False)
    halves_max(a, vm, vm+1)
    a(f"v_add_f32 v{vm}, {hx(MARGIN)}, v{vm}")
    make_qhi(a, QH[0], vm, vm+2)
    va = S[1]
    a(f"s_lshl_b32 s{sT0}, s{sWAVE}, 9")
    a(f"s_add_u32 s{sT0}, s{sT0}, {MX}")
    a(f"v_add_u32 v{va}, s{sT0}, v{vL8}")
    a(f"ds_write_b64 v{va}, {vr(vm+4,2)}")
    for j in range(1, 4):
        a(f"v_xor_b32 v{va+j}, {512*j}, v{va}")
    a(f"v_mov_b32 v{va+4}, 5")
    a("s_waitcnt lgkmcnt(0)")
    a(f"ds_write_b32 v{vrow}, v{va+4}")
    a(mf16(S[0], KL[0], QL[0], "0"))
    a(mf8(S[0], KH[0], QH[0]))
    for x in ldV(0) + ldK(1): a(x)
    for r in range(O[0], O[0]+32):
        a(f"v_mov_b32 v{r}, 0")
    spin_lds(a, vgrp, 5, va+5)
    for j in range(1, 4):
        a(f"ds_read_b64 {vr(va+4+2*j,2)}, v{va+j}")
    for r in list(range(O[2], O[2]+16)) + [vstg]:
        a(f"v_mov_b32 v{r}, 0")
    a("s_waitcnt lgkmcnt(0)")
    for j in range(1, 4):
        a(f"v_cndmask_b32 v{QH[j]}, v{QH[j]}, v{va+4+2*j}, {sr(sHI,2)}")
        a(f"v_cndmask_b32 v{QH[j]+1}, v{QH[j]+1}, v{va+5+2*j}, {sr(sHI,2)}")
    stamp(a, 5); stamp_rt(a, 12)
    a(f"s_mov_b32 s{sLOOP}, 8")
    PS = [int(v) for v in os.environ.get("PSTEP", "3,1").split(",")]
    a("s_setprio 2")
    a.raw(".p2align 6")
    a.label("LF_aloop")
    st = len(a.lines)
    att_tile(a, 0)
    att_tile(a, 1)
    a(f"s_sub_u32 s{sLOOP}, s{sLOOP}, 1")
    a(f"s_cmp_gt_u32 s{sLOOP}, {PS[0]}")
    a("s_cbranch_scc1 LF_aloop")
    a("s_setprio 1")
    a(f"s_cmp_gt_u32 s{sLOOP}, {PS[1]}")
    a("s_cbranch_scc1 LF_aloop")
    a("s_setprio 0")
    a(f"s_cmp_lg_u32 s{sLOOP}, 0")
    a("s_cbranch_scc1 LF_aloop")
    for p in check_linear(a.lines[st:] + a.lines[st:], "kf att loop x2"): print("HAZARD", p)
    a(mf16(O[3], VV[1], P[1], O[3]))
    a(mf16(O[3], VV[1]+4, P[1]+4, O[3]))
    stamp(a, 6); stamp_rt(a, 13)
    va = S[0]
    a("s_setprio 2")
    a(f"v_and_b32 v{va+5}, 3, v{vLANE}")
    a(f"v_lshlrev_b32 v{va+5}, 8, v{va+5}")
    a(f"v_add_u32 v{va+5}, {FL}, v{va+5}")
    a(f"s_lshr_b32 s{sT2}, s{sWAVE}, 2")
    a(f"s_lshl_b32 s{sT0}, s{sT2}, 10")
    a(f"s_add_u32 s{sT0}, s{sT0}, 1024")
    a(f"v_add_u32 v{va+6}, s{sT0}, v{va+5}")
    a(f"s_lshl_b32 s{sT0}, s{sWAVE}, 8")
    a(f"s_add_u32 s{sT0}, s{sT0}, {FL + 1024}")
    a(f"v_lshl_add_u32 v{va+7}, v{vLANE}, 2, s{sT0}")
    a(f"v_mov_b32 v{va+9}, 6")
    a(f"s_add_u32 s{sT2}, s{sT2}, 30")
    for j in range(4):
        if j: a(f"s_xor_b32 s{sT0}, s{sWAVE}, {j}")
        a(f"s_mul_i32 s{sT0}, s{sT0 if j else sWAVE}, 9216")
        a(f"s_add_u32 s{sT0}, s{sT0}, {2*GSLOT}")
        a(f"v_add_u32 v{va+j}, s{sT0}, v{vL16}")
    spin_lds(a, va+5, f"s{sT2}", va+8)
    for j in range(1, 4):
        for k in range(3):
            a(f"ds_write_b128 v{va+j}, {vr(O[j]+4*k,4)} offset:{(j-1)*3072 + 1024*k}")
    a("s_waitcnt lgkmcnt(0)")
    a(f"ds_write_b32 v{va+7}, v{va+9}")
    t = S[1]
    a(f"s_mul_i32 s{sT0}, s{sHEAD}, 5")
    a(f"v_lshrrev_b32 v{t+5}, 5, v{vLANE}")
    a(f"v_add_u32 v{t+5}, s{sT0}, v{t+5}")
    a(f"v_and_b32 v{t+2}, 0x1f0, v{vL16}")
    a(f"v_lshrrev_b32 v{t+3}, 1, v{t+5}")
    a(f"v_lshl_add_u32 v{t+3}, v{t+3}, 9, v{t+2}")
    a(f"v_and_b32 v{t+5}, 1, v{t+5}")
    a(f"v_lshl_add_u32 v{t+3}, v{t+5}, 3, v{t+3}")
    a(f"s_mul_i32 s{sVO}, s{sTG}, {OH_TG}")
    a(f"s_add_u32 s{sVO}, s{sVO}, {WS_OH}")
    spin_lds(a, va+6, "6", va+8)
    for j in range(1, 4):
        for k in range(3):
            a(f"ds_read_b128 {vr(O[j]+4*k,4)}, v{va} offset:{(j-1)*3072 + 1024*k}")
    OA = O[0]
    for j in range(1, 4):
        a(f"s_waitcnt lgkmcnt({9-3*j})")
        for k in range(12):
            a(f"v_add_f32 v{OA+k}, v{OA+k}, v{O[j]+k}")
    def get_l():
        a(f"v_mov_b32 v{t}, v{OA+8}")
        a(f"v_mov_b32 v{t+4}, v{OA+8}")
        a("s_nop 1")
        a(f"v_permlane32_swap_b32 v{t+4}, v{t}")
    get_l()
    a(f"v_add_f32 v{t+1}, |v{OA}|, |v{OA+1}|")
    for k in range(2, 8):
        a(f"v_add_f32 v{t+1}, v{t+1}, |v{OA+k}|")
    a(f"v_add_f32 v{t+2}, v{t+1}, |v{OA+8}|")
    for k in range(9, 12):
        a(f"v_add_f32 v{t+2}, v{t+2}, |v{OA+k}|")
    a(f"s_mov_b32 s{sT0}, {hx(2.0**120)}")
    a(f"s_mov_b32 s{sT1}, {hx(2.0**-100)}")
    a(f"s_mov_b32 s{sT2}, {hx(2.0**126)}")
    a(f"v_cmp_gt_f32 s[20:21], s{sT0}, v{t}")
    a(f"v_cmp_le_f32 {sr(sM,2)}, s{sT1}, v{t+1}")
    a(f"v_cmp_gt_f32 vcc, s{sT2}, v{t+2}")
    a("s_nop 1")
    a(f"s_and_b64 s[20:21], s[20:21], {sr(sM,2)}")
    a("s_and_b64 s[20:21], s[20:21], vcc")
    a("s_cmp_eq_u64 s[20:21], -1")
    a("s_cbranch_scc0 LF_fallback")
    a.label("LF_final")
    a(f"v_rcp_f32 v{t}, v{t}")
    a("s_nop 0")
    for k in range(12):
        a(f"v_mul_f32 v{OA+k}, v{OA+k}, v{t}")
    PA = P[0]
    for k in range(6):
        a(f"v_cvt_pk_bf16_f32 v{PA+k}, v{OA+2*k}, v{OA+2*k+1}")
    a(f"buffer_store_dwordx2 {vr(PA,2)}, v{t+3}, {sr(sW,4)}, s{sVO} offen")
    a(f"buffer_store_dwordx2 {vr(PA+2,2)}, v{t+3}, {sr(sW,4)}, s{sVO} offen offset:512")
    a("s_mov_b32 exec_hi, 0")
    a(f"buffer_store_dwordx2 {vr(PA+4,2)}, v{t+3}, {sr(sW,4)}, s{sVO} offen offset:1024")
    a("s_mov_b64 exec, -1")
    a("s_branch LF_fin")
    a.label("LF_fallback")
    a("s_waitcnt vmcnt(0)")
    for r in (QH[0], QH[0]+1):
        a(f"v_cndmask_b32 v{r}, v{r}, 0, {sr(sHI,2)}")
    vm = P[1]
    SA = S[0]
    a(f"v_mov_b32 v{vm}, 0xff800000")
    a(f"s_mov_b32 s{sT0}, {WS_KV}")
    a.label("LF_fb1")
    a(f"buffer_load_dwordx4 {vr(KL[0],4)}, v{vL16}, {sr(sW,4)}, s{sT0} offen {RD}")
    a(f"buffer_load_dwordx2 {vr(KH[0],2)}, v{vL8}, {sr(sW,4)}, s{sT0} offen offset:3072 {RD}")
    a("s_waitcnt vmcnt(0)")
    a(mf16(SA, KL[0], QL[0], "0"))
    a(mf8(SA, KH[0], QH[0]))
    a("s_nop 11")
    max16(a, SA, vm, False)
    a(f"s_add_u32 s{sT0}, s{sT0}, {KVREC}")
    a(f"s_cmp_lt_u32 s{sT0}, {WS_KV + 64*KVREC}")
    a("s_cbranch_scc1 LF_fb1")
    halves_max(a, vm, vm+1)
    make_qhi(a, QH[0], vm, vm+2)
    for r in range(OA, OA+16):
        a(f"v_mov_b32 v{r}, 0")
    a(f"s_mov_b32 s{sT0}, {WS_KV}")
    a.label("LF_fb2")
    a(f"buffer_load_dwordx4 {vr(KL[0],4)}, v{vL16}, {sr(sW,4)}, s{sT0} offen {RD}")
    a(f"buffer_load_dwordx2 {vr(KH[0],2)}, v{vL8}, {sr(sW,4)}, s{sT0} offen offset:3072 {RD}")
    a(f"buffer_load_dwordx4 {vr(VV[0],4)}, v{vL16}, {sr(sW,4)}, s{sT0} offen offset:1024 {RD}")
    a(f"buffer_load_dwordx4 {vr(VV[0]+4,4)}, v{vL16}, {sr(sW,4)}, s{sT0} offen offset:2048 {RD}")
    a("s_waitcnt vmcnt(0)")
    a(mf16(SA, KL[0], QL[0], "0"))
    a(mf8(SA, KH[0], QH[0]))
    a("s_nop 11")
    for i in range(16):
        a(f"v_exp_f32 v{SA+i}, v{SA+i}")
    a("s_nop 0")
    for k in range(8):
        a(f"v_cvt_pk_bf16_f32 v{PA+k}, v{SA+2*k}, v{SA+2*k+1}")
    a("s_nop 1")
    a(mf16(OA, VV[0], PA, OA))
    a(mf16(OA, VV[0]+4, PA+4, OA))
    a(f"s_add_u32 s{sT0}, s{sT0}, {KVREC}")
    a(f"s_cmp_lt_u32 s{sT0}, {WS_KV + 64*KVREC}")
    a("s_nop 11")
    a("s_cbranch_scc1 LF_fb2")
    get_l()
    a("s_branch LF_final")

zX0, zX1, zA, zB, zC, zPF, zZERO = 8, 9, 10, 11, 12, 13, 14
zNL = 160
GA = ((32, 48), (64, 80))
FB = (96, 112)
ZL = 144
vWa, vZa = 8, 14
vS0, vS1g = 4, 5
vFA, vFW, vONE, vFL = 6, 7, 20, 21
PFD = 4

def z_issue(a):
    a(f"s_add_u32 s{sT0}, s{sXD}, s{sSLOT}")
    a(f"s_add_u32 s{sT1}, s{sWD}, s{sSLOT}")
    a(f"s_mov_b32 m0, s{sT0}")
    a(f"s_add_u32 s{sT2}, s{sXO}, {16*1280}")
    a(f"buffer_load_dwordx4 v{zX0}, {sr(sX,4)}, s{sXO} offen lds")
    a(f"s_add_u32 m0, s{sT0}, 1024")
    a(f"s_add_u32 s{sSLOT}, s{sSLOT}, {SLOT}")
    a(f"buffer_load_dwordx4 v{zX1}, {sr(sX,4)}, s{sXO} offen lds")
    a(f"s_add_u32 m0, s{sT0}, 2048")
    a(f"s_add_u32 s{sXO}, s{sXO}, 128")
    a(f"buffer_load_dwordx4 v{zX0}, {sr(sX,4)}, s{sT2} offen lds")
    a(f"s_add_u32 m0, s{sT0}, 3072")
    a(f"s_cmp_eq_u32 s{sSLOT}, {4*SLOT}")
    a(f"buffer_load_dwordx4 v{zX1}, {sr(sX,4)}, s{sT2} offen lds")
    a(f"s_cselect_b32 s{sSLOT}, 0, s{sSLOT}")
    a(f"s_mov_b32 m0, s{sT1}")
    a("s_nop 0")
    a(f"buffer_load_dwordx4 v{zA}, {sr(sA,4)}, s{sAO} offen lds")
    a(f"s_add_u32 m0, s{sT1}, {4096-64}")
    a("s_nop 0")
    a(f"buffer_load_dwordx4 v{zA}, {sr(sA,4)}, s{sAO} offen offset:64 lds")
    a(f"s_add_u32 m0, s{sT1}, 8192")
    a(f"s_add_u32 s{sAO}, s{sAO}, s{sAS}")
    a(f"buffer_load_dwordx4 v{zB}, {sr(sB,4)}, s{sBO} offen lds")
    a(f"s_add_u32 m0, s{sT1}, {12288-64}")
    a("s_nop 0")
    a(f"buffer_load_dwordx4 v{zB}, {sr(sB,4)}, s{sBO} offen offset:64 lds")
    a(f"s_add_u32 m0, s{sT1}, 16384")
    a(f"s_add_u32 s{sBO}, s{sBO}, s{sBS}")
    a(f"buffer_load_dwordx4 v{zC}, {sr(sC,4)}, s{sCO} offen lds")
    a(f"s_add_u32 s{sCO}, s{sCO}, s{sCS_}")
    a(f"s_add_u32 s{sROT}, s{sROT}, 1")
    a(f"s_cmp_lg_u32 s{sROT}, 10")
    a("s_cbranch_scc1 LF_nowrap")
    a(f"s_sub_u32 s{sXO}, s{sXO}, 1280")
    for o, st in ((sAO, sAS), (sBO, sBS), (sCO, sCS_)):
        a(f"s_mul_i32 s{sT0}, s{st}, 10")
        a(f"s_sub_u32 s{o}, s{o}, s{sT0}")
    a.label("LF_nowrap")

def gen_loader(a):
    a(f"v_lshrrev_b32 v22, 3, v{vLANE}")
    a(f"v_mul_u32_u24 v22, 1280, v22")
    a(f"v_lshrrev_b32 v23, 4, v{vLANE}")
    a(f"v_xor_b32 v23, v23, v{vLANE}")
    a(f"v_and_b32 v23, 7, v23")
    a(f"v_lshl_add_u32 v{zX0}, v23, 4, v22")
    a(f"v_xor_b32 v23, 4, v23")
    a(f"v_lshl_add_u32 v{zX1}, v23, 4, v22")
    a(f"v_add_u32 v{zX1}, {8*1280}, v{zX1}")
    a(f"v_lshrrev_b32 v24, 2, v{vLANE}")
    a(f"s_lshl_b32 s{sT0}, s{sW4}, 4")
    a(f"v_add_u32 v24, s{sT0}, v24")
    a(f"v_and_b32 v25, 0x30, v{vL16}")
    a(f"s_lshl_b32 s{sXD}, s{sW4}, 12")
    a(f"s_lshl_b32 s{sWD}, s{sW4}, 10")
    a(f"s_add_u32 s{sWD}, s{sWD}, 16384")
    a(f"s_lshl2_add_u32 s{sTG}, s{sRB}, s{sW4}")
    a(f"s_mul_i32 s{sXO}, s{sTG}, {32*1280}")
    a(f"s_mov_b32 s{sSLOT}, 0")
    def pitch_col(cmp, colA, colB, sO, sStep, vdst):
        a(f"s_add_i32 s{sT0}, s{sG}, {colA}")
        a(f"s_add_i32 s{sT1}, s{sG}, {colB}")
        a(cmp)
        a(f"s_cselect_b32 s{sT2}, 27, 10")
        a(f"s_cselect_b32 s{sO}, s{sT0}, s{sT1}")
        a(f"s_lshl_b32 s{sT2}, s{sT2}, 7")
        a(f"s_lshl_b32 s{sStep}, s{sT2}, 6")
        a(f"s_lshl_b32 s{sO}, s{sO}, 7")
        a(f"v_mad_u32_u24 v{vdst}, v24, s{sT2}, v25")
    a(f"s_cmp_le_u32 s{sG}, 2")
    a(f"s_cselect_b32 s{sT1}, 2, -14")
    a(f"s_cselect_b32 s{sBO}, 13, -3")
    a(f"s_sub_u32 s{sT3}, s{sG}, 3")
    a(f"s_cmp_lt_u32 s{sT3}, 11")
    a(f"s_cselect_b32 s{sAO}, 13, s{sT1}")
    a(f"s_cselect_b32 s{sT2}, 27, 10")
    a(f"s_add_i32 s{sAO}, s{sAO}, s{sG}")
    a(f"s_add_i32 s{sBO}, s{sBO}, s{sG}")
    a(f"s_lshl_b32 s{sAO}, s{sAO}, 7")
    a(f"s_lshl_b32 s{sBO}, s{sBO}, 7")
    a(f"s_lshl_b32 s{sT2}, s{sT2}, 7")
    a(f"s_lshl_b32 s{sAS}, s{sT2}, 6")
    a(f"v_mad_u32_u24 v{zA}, v24, s{sT2}, v25")
    a(f"s_mul_i32 s{sA+2}, s{sT2}, 640")
    a(f"s_movk_i32 s{sT2}, 3456")
    a(f"s_mov_b32 s{sBS}, {3456*64}")
    a(f"v_mad_u32_u24 v{zB}, v24, s{sT2}, v25")
    a(f"s_mov_b32 s{sB+2}, {640*3456}")
    a(f"s_add_u32 s{sT0}, s{sG}, 8")
    a(f"s_add_u32 s{sT1}, s{sG}, 4")
    a(f"s_cmp_lt_u32 s{sG}, 10")
    a(f"s_cselect_b32 s{sT0}, s{sT0}, s{sT1}")
    a(f"s_lshl_b32 s{sT0}, s{sT0}, 6")
    a(f"s_movk_i32 s{sT1}, 1280")
    a(f"s_cmp_le_u32 s{sG}, 1")
    a(f"s_cselect_b32 s{sT2}, 40, s{sT1}")
    a(f"s_cselect_b32 s{sCO}, 0, s{sT0}")
    a(f"s_mul_i32 s{sC+2}, s{sT2}, 640")
    a(f"s_sub_u32 s{sT1}, s{sG}, 10")
    a(f"s_cmp_lt_u32 s{sT1}, 4")
    a(f"s_cselect_b32 s{sC+2}, 0, s{sC+2}")
    a(f"s_lshl_b32 s{sCS_}, s{sT2}, 6")
    a(f"v_mad_u32_u24 v{zC}, v24, s{sT2}, v25")
    RG, RR = (int(v) for v in os.environ.get("ROT1", "5,10").split(","))
    a(f"s_and_b32 s{sT0}, s{sG}, 7")
    a(f"s_mul_i32 s{sT0}, s{sT0}, {RG}")
    a(f"s_and_b32 s{sT1}, s{sRB}, 3")
    a(f"s_mul_i32 s{sT1}, s{sT1}, {RR}")
    a(f"s_add_u32 s{sT0}, s{sT0}, s{sT1}")
    a(f"s_lshr_b32 s{sROT}, s{sT0}, 2")
    a(f"s_sub_u32 s{sT0}, s{sROT}, 10")
    a(f"s_cselect_b32 s{sROT}, s{sROT}, s{sT0}")
    a(f"s_lshl_b32 s{sT0}, s{sROT}, 7")
    a(f"s_add_u32 s{sXO}, s{sXO}, s{sT0}")
    for o, st in ((sAO, sAS), (sBO, sBS), (sCO, sCS_)):
        a(f"s_mul_i32 s{sT0}, s{st}, s{sROT}")
        a(f"s_add_u32 s{o}, s{o}, s{sT0}")
    for r in (sX+3, sA+3, sB+3, sC+3, sW+3):
        a(f"s_mov_b32 s{r}, 0x20000")
    a(f"s_mov_b32 s{sX+2}, {2048*1280}")
    a(f"s_mov_b32 s{sW+2}, {WS_END}")
    a("s_waitcnt lgkmcnt(0)")
    a(f"s_mov_b64 {sr(sX,2)}, s[4:5]")
    a(f"s_mov_b64 {sr(sW,2)}, s[18:19]")
    a(f"s_cmp_lt_u32 s{sT3}, 11")
    a(f"s_cselect_b64 {sr(sA,2)}, s[12:13], s[6:7]")
    a(f"s_mov_b64 {sr(sB,2)}, s[12:13]")
    a(f"s_cmp_eq_u32 s{sG}, 0")
    a(f"s_cselect_b64 {sr(sC,2)}, s[8:9], s[10:11]")
    a(f"s_cmp_le_u32 s{sG}, 1")
    a(f"s_cselect_b64 {sr(sC,2)}, {sr(sC,2)}, s[6:7]")
    a(f"s_mov_b32 s{sLOOP}, 0")
    a.label("LF_zloop")
    z_issue(a)
    a(f"s_add_u32 s{sLOOP}, s{sLOOP}, 1")
    NPRO = int(os.environ.get("NPRO", "2"))
    a(f"s_cmp_eq_u32 s{sLOOP}, {NPRO}")
    a("s_cbranch_scc1 LF_zfirst")
    a(f"s_cmp_lt_u32 s{sLOOP}, 4")
    a("s_cbranch_scc1 LF_zloop")
    a(f"s_cmp_eq_u32 s{sLOOP}, 10")
    a("s_cbranch_scc1 LF_ztail")
    a("s_waitcnt vmcnt(18)")
    a("s_barrier")
    a("s_branch LF_zloop")
    a.label("LF_zfirst")
    a(f"s_waitcnt vmcnt({9*(NPRO-1)})")
    a("s_barrier")
    stamp(a, 1)
    a("s_branch LF_zloop")

def g_dma_groups(slot, part="wz"):
    b = slot * GSLOT
    g = []
    if "w" in part:
        g += [[f"s_add_u32 m0, s{sSPD}, {b}", f"s_add_u32 s{sT0}, s{sSPO}, 65536",
               f"buffer_load_dwordx4 v{vS0}, {sr(sSP,4)}, s{sSPO} offen lds"],
              [f"s_add_u32 m0, s{sSPD}, {b+1024}", f"s_add_u32 s{sT1}, s{sSPO}, 128",
               f"buffer_load_dwordx4 v{vS1g}, {sr(sSP,4)}, s{sSPO} offen lds"],
              [f"s_add_u32 m0, s{sSPD}, {b+2048}", f"s_and_b32 s{sT1}, s{sT1}, 0xfff",
               f"buffer_load_dwordx4 v{vS0}, {sr(sSP,4)}, s{sT0} offen lds"],
              [f"s_add_u32 m0, s{sSPD}, {b+3072}", f"s_or_b32 s{sSPO}, s{sSPB}, s{sT1}",
               f"buffer_load_dwordx4 v{vS1g}, {sr(sSP,4)}, s{sT0} offen lds"]]
    if "z" in part:
        g += [[f"s_add_u32 m0, s{sZD}, {b+16384}", f"s_add_u32 s{sT1}, s{sZO}, 4096",
               f"buffer_load_dwordx4 v{vL16}, {sr(sW,4)}, s{sZO} offen {RD} lds"],
              [f"s_and_b32 s{sT1}, s{sT1}, 0x1ffff",
               f"buffer_load_dwordx4 v{vL16}, {sr(sW,4)}, s{sZO} offen offset:1024 {RD} lds",
               f"s_or_b32 s{sZO}, s{sZB}, s{sT1}"]]
    return g
def g_dma(a, slot, part="wz"):
    for g in g_dma_groups(slot, part):
        for x in g: a(x)

def arrive(a): a(f"ds_add_u32 v{vFW}, v{vONE}")
def flag_read(a): a(f"ds_read_b32 v{vFL}, v{vFA}")
def flag_check(a, sleep=False, low=True):
    L = uid("sb")
    if low: a("s_setprio 3")
    a("s_waitcnt lgkmcnt(0)")
    a(f"v_cmp_gt_u32 vcc, s{sNEED}, v{vFL}")
    a("s_nop 0")
    a(f"s_cbranch_vccz {L}d")
    a.label(L)
    if sleep: a("s_sleep 2")
    flag_read(a)
    a("s_waitcnt lgkmcnt(0)")
    a(f"v_cmp_gt_u32 vcc, s{sNEED}, v{vFL}")
    a("s_nop 0")
    a(f"s_cbranch_vccnz {L}")
    a.label(L + "d")
    if low: a(f"s_setprio {os.environ.get('GLOW', '0')}")

def g_reads(i, ks):
    slot = i % NSL
    st, so = slot // 2, (slot % 2) * GSLOT
    f = FB[ks]
    return [f"ds_read_b128 {vr(f,4)}, v{vWa+2*st+ks} offset:{so}",
            f"ds_read_b128 {vr(f+8,4)}, v{vZa+2*st} offset:{so + ks*1024}",
            f"ds_read_b128 {vr(f+4,4)}, v{vWa+2*st+ks} offset:{so + 4096}",
            f"ds_read_b128 {vr(f+12,4)}, v{vZa+2*st+1} offset:{so + ks*1024}"]

def g_step(a, i, issue, wait, last=False):
    def M(ks, u, v):
        f = FB[ks]
        a(mf16(GA[u][v], f+8+4*v, f+4*u, GA[u][v]))
    D = g_dma_groups((i + PFD) % NSL) if issue else [[]] * 6
    def dma(k):
        for x in D[k]: a(x)
    r1 = g_reads(i, 1)
    r0 = g_reads(i + 1, 0)
    a("s_waitcnt lgkmcnt(2)")
    M(0, 0, 0)
    a(r1[0]); a(r1[1])
    a("s_waitcnt lgkmcnt(3)")
    M(0, 1, 0)
    a(r1[2]); a(r1[3])
    a("s_waitcnt lgkmcnt(4)")
    M(0, 0, 1)
    dma(0)
    flag_read(a)
    M(0, 1, 1)
    dma(1)
    a(f"s_add_u32 s{sNEED}, s{sNEED}, 1")
    flag_check(a)
    M(1, 0, 0)
    a(f"s_waitcnt vmcnt({wait})")
    arrive(a)
    if not last: a(r0[0]); a(r0[1])
    M(1, 1, 0)
    if not last: a(r0[2]); a(r0[3])
    dma(2)
    M(1, 0, 1)
    dma(3); dma(4)
    M(1, 1, 1)
    dma(5)

def gen_gemm(a):
    gw = sW4
    NR, NS = 128, 96
    a.label("LF_ztail")
    a(f"v_mov_b32 v{zZERO}, 0")
    a(f"v_lshlrev_b32 v{zPF}, 7, v{vLANE}")
    a(f"s_cmp_lg_u32 s{sW4}, 0")
    a(f"s_cbranch_scc1 LF_nonl")
    a(f"global_load_dwordx4 {vr(zNL,4)}, v{zZERO}, s[16:17] sc0 sc1")
    a.label("LF_nonl")
    a("s_load_dwordx4 s[8:11], s[0:1], 56")
    a("s_load_dwordx2 s[4:5], s[0:1], 32")
    a("s_load_dwordx2 s[6:7], s[0:1], 72")
    a("s_waitcnt vmcnt(18)")
    a("s_barrier")
    a(f"s_lshr_b32 s{sT0}, s{sXC}, 1")
    a(f"s_lshl_b32 s{sT0}, s{sT0}, 7")
    a(f"s_lshl2_add_u32 s{sT0}, s{sJ}, s{sT0}")
    a(f"s_add_u32 s{sT0}, s{sT0}, s{sW4}")
    a(f"s_lshl_b32 s{sT1}, s{sT0}, 14")
    a(f"s_and_b32 s{sT0}, s{sXC}, 1")
    a(f"s_lshl_b32 s{sT0}, s{sT0}, 13")
    a(f"s_add_u32 s{sT1}, s{sT1}, s{sT0}")
    a(f"s_xor_b32 s{sT0}, s{sT1}, 8192")
    a("s_waitcnt lgkmcnt(0)")
    srd(a, sSP, 8, 2048*4096)
    srd(a, sBI, 10, 4096)
    NT = int(os.environ.get("NTOUCH", "2"))
    a(f"buffer_load_dword v22, v{zPF}, {sr(sSP,4)}, s{sT1} offen")
    if NT == 2: a(f"buffer_load_dword v22, v{zPF}, {sr(sSP,4)}, s{sT0} offen")
    a(f"v_and_b32 v{vFA}, 3, v{vLANE}")
    a(f"v_lshlrev_b32 v{vFA}, 8, v{vFA}")
    a(f"v_add_u32 v{vFA}, {FL}, v{vFA}")
    a(f"v_and_b32 v31, 7, v{vLANE}")
    a(f"v_lshlrev_b32 v31, 8, v31")
    a(f"v_add_u32 v31, {FL + 1024}, v31")
    a(f"s_sub_u32 s{sCG}, s{sG}, 3")
    a(f"s_cmp_eq_u32 s{sG}, 0")
    a(f"s_cselect_b32 s{sCG}, 13, s{sCG}")
    a(f"v_and_b32 v164, 31, v{vLANE}")
    a(f"v_lshrrev_b32 v165, 5, v{vLANE}")
    a(f"s_lshl_b32 s{sSPD}, s{gw}, 12")
    a(f"s_add_u32 s{sT2}, s{sSPD}, {NSC}")
    a(f"v_lshlrev_b32 v24, 6, v164")
    a(f"v_lshl_add_u32 v24, v165, 3, v24")
    a(f"v_add_u32 v24, s{sT2}, v24")
    a(f"v_bfe_u32 v23, v{vLANE}, 2, 2")
    a(f"v_lshl_add_u32 v23, v165, 3, v23")
    a(f"v_lshlrev_b32 v23, 6, v23")
    a(f"v_bfe_u32 v167, v{vLANE}, 4, 1")
    a(f"v_lshl_add_u32 v23, v167, 5, v23")
    a(f"v_and_b32 v167, 3, v{vLANE}")
    a(f"v_lshl_add_u32 v23, v167, 3, v23")
    a(f"v_add_u32 v23, s{sT2}, v23")
    a(f"s_add_u32 s{sT2}, s{sSPD}, {ZP}")
    a(f"v_add_u32 v27, s{sT2}, v{vL16}")
    a(f"s_waitcnt vmcnt({9+NT})")
    a("s_barrier")
    a(f"s_lshl_b32 s{sZD}, s{gw}, 11")
    a(f"s_lshl_b32 s{sSPO}, s{sRB}, 19")
    a(f"s_lshl_b32 s{sT0}, s{gw}, 17")
    a(f"s_add_u32 s{sSPO}, s{sSPO}, s{sT0}")
    a(f"s_lshr_b32 s{sT2}, s{gw}, 1")
    a(f"s_lshl1_add_u32 s{sFB}, s{sCG}, s{sT2}")
    a(f"s_lshl_b32 s{sZB}, s{sFB}, 17")
    a(f"s_add_u32 s{sZB}, s{sZB}, {WS_Z2}")
    a(f"s_and_b32 s{sTH}, s{gw}, 1")
    a(f"s_lshl_b32 s{sT0}, s{sTH}, 11")
    a(f"s_add_u32 s{sZO}, s{sZB}, s{sT0}")
    assert WS_Z2 % 0x20000 == 0
    a(f"s_mov_b32 s{sSPB}, s{sSPO}")
    RC, RR = (int(v) for v in os.environ.get("ROT2", "9,32").split(","))
    a(f"s_mul_i32 s{sT0}, s{sCG}, {RC}")
    a(f"s_mul_i32 s{sT1}, s{sRB}, {RR}")
    a(f"s_add_u32 s{sT0}, s{sT0}, s{sT1}")
    a(f"s_bfe_u32 s{sT0}, s{sT0}, 0x50002")
    a(f"s_lshl_b32 s{sT1}, s{sT0}, 7")
    a(f"s_add_u32 s{sSPO}, s{sSPO}, s{sT1}")
    a(f"s_lshl_b32 s{sT1}, s{sT0}, 12")
    a(f"s_add_u32 s{sZO}, s{sZO}, s{sT1}")
    a(f"v_lshrrev_b32 v166, 3, v{vLANE}")
    a(f"v_lshlrev_b32 v166, 12, v166")
    a(f"v_lshrrev_b32 v167, 4, v{vLANE}")
    a(f"v_xor_b32 v167, v167, v{vLANE}")
    a(f"v_and_b32 v167, 7, v167")
    a(f"v_lshl_add_u32 v{vS0}, v167, 4, v166")
    a(f"v_xor_b32 v167, 4, v167")
    a(f"v_lshl_add_u32 v{vS1g}, v167, 4, v166")
    a(f"v_add_u32 v{vS1g}, {8*4096}, v{vS1g}")
    a(f"v_bfe_u32 v166, v164, 1, 3")
    a(f"v_xor_b32 v166, v166, v165")
    a(f"s_lshl_b32 s{sT1}, s{sT2}, 2")
    a(f"v_xor_b32 v166, s{sT1}, v166")
    a(f"v_lshlrev_b32 v166, 4, v166")
    a(f"v_lshl_add_u32 v166, v164, 7, v166")
    a(f"s_lshl_b32 s{sT0}, s{sTH}, 13")
    a(f"v_add_u32 v{vWa}, s{sT0}, v166")
    a(f"v_xor_b32 v{vWa+1}, 32, v{vWa}")
    a(f"s_waitcnt vmcnt({NT})")
    a("s_barrier")
    a(f"s_cmp_lg_u32 s{sW4}, 0")
    a("s_cbranch_scc1 LF_nnw")
    a(f"s_mov_b32 s{sT1}, 0x20000")
    a.label("LF_npoll")
    a(f"v_cmp_eq_u32 vcc, 1, v{zNL+2}")
    a("s_nop 0")
    a("s_cbranch_vccnz LF_ngot")
    a(f"global_load_dwordx4 {vr(zNL,4)}, v{zZERO}, s[16:17] sc0 sc1")
    a("s_waitcnt vmcnt(0)")
    a(f"s_sub_u32 s{sT1}, s{sT1}, 1")
    a("s_cbranch_scc0 LF_npoll")
    a.label("LF_ngot")
    a(f"v_mov_b32 v25, {NON}")
    a(f"ds_write_b64 v25, {vr(zNL,2)}")
    a("s_waitcnt lgkmcnt(0)")
    a.label("LF_nnw")
    a(f"s_mul_i32 s{sT0}, s{sT2}, {4096+2048}")
    a(f"s_add_u32 s{sT0}, s{sT0}, 16384")
    a(f"v_add_u32 v{vZa}, s{sT0}, v{vL16}")
    a(f"v_xor_b32 v{vZa+1}, 4096, v{vZa}")
    for st in (1, 2):
        for k in range(2):
            a(f"v_add_u32 v{vWa+2*st+k}, {2*GSLOT*st}, v{vWa+k}")
            a(f"v_add_u32 v{vZa+2*st+k}, {2*GSLOT*st}, v{vZa+k}")
    a(f"v_mov_b32 v{vONE}, 1")
    a(f"v_mov_b32 v26, 0xffff0000")
    a(f"v_mov_b32 v25, {NON}")
    a("s_barrier")
    a(f"ds_read_b64 {vr(zNL,2)}, v25")
    a("s_barrier")
    stamp(a, 3)
    NW0 = 2
    a(f"s_cmp_ge_u32 s{sCG}, 14")
    a("s_cbranch_scc1 LF_now")
    a(f"s_lshl_b32 s{sT0}, s{sRB}, 8")
    a(f"s_lshl_b32 s{sT1}, s{sTH}, 7")
    a(f"s_add_u32 s{sT0}, s{sT0}, s{sT1}")
    a(f"v_lshlrev_b32 v166, 1, v164")
    a(f"buffer_load_ushort v28, v166, {sr(sBI,4)}, s{sT0} offen")
    a(f"buffer_load_ushort v29, v166, {sr(sBI,4)}, s{sT0} offen offset:64")
    for c in range(NW0): g_dma(a, c, "w")
    a.label("LF_now")
    for r in range(16):
        a(f"v_mov_b32 v{GA[0][1]+r}, 0")
        a(f"v_mov_b32 v{GA[1][1]+r}, 0")
    a(f"s_cmp_le_u32 s{sG}, 2")
    a(f"s_cselect_b32 s{sT0}, 2, 1")
    spin_lds(a, 31, f"s{sT0}", 30, sleep=2)
    stamp(a, 4)
    a(f"s_cmp_ge_u32 s{sG}, 14")
    a("s_cbranch_scc1 LF_nonorm")
    UN = GA[0][0]
    UN2 = GA[1][0]
    for q in range(4):
        a(f"ds_read_b128 {vr(NR+4*q,4)}, v27 offset:{1024*q}")
    a(f"s_lshl_b32 s{sT3}, s{sTG}, 13")
    a(f"s_add_u32 s{sT3}, s{sT3}, {WS_ST}")
    a(f"s_add_u32 s{sT2}, s{sT3}, 4096")
    a(f"s_cmp_eq_u32 s{sG}, 0")
    a(f"s_cselect_b32 s{sT0}, 0, -1")
    a(f"s_cselect_b32 s{sT1}, 0, 0xffff0000")
    for r in range(4): a(f"v_mov_b32 v{124+r}, 0")
    a("s_waitcnt lgkmcnt(2)")
    for k in range(8): a(f"v_and_b32 v{NR+k}, s{sT0}, v{NR+k}")
    for k in range(16):
        if k == 8: a("s_waitcnt lgkmcnt(0)")
        un = (UN, UN2)[k >> 3] + 2*(k & 7)
        a(f"v_lshlrev_b32 v{un}, 16, v{NR+k}")
        a(f"v_and_b32 v{un+1}, v26, v{NR+k}")
        a(f"v_pk_add_f32 v[124:125], v[124:125], {vr(un,2)}")
        a(f"v_pk_fma_f32 v[126:127], {vr(un,2)}, {vr(un,2)}, v[126:127]")
    a(f"v_add_f32 v124, v124, v125")
    a(f"v_add_f32 v126, v126, v127")
    a(f"s_lshl_b32 s{sT1}, s{sG}, 9")
    a(f"s_add_u32 s{sT1}, s{sT1}, s{sT3}")
    a(f"v_permlane32_swap_b32 v124, v126")
    a("s_nop 0")
    a(f"v_add_f32 v124, v124, v126")
    a(f"v_mov_b32 v125, v124")
    a(f"v_mov_b32 v126, v{zNL}")
    a(f"v_mov_b32 v127, v{zNL+1}")
    a(f"v_permlane32_swap_b32 v124, v125")
    a("s_mov_b32 exec_hi, 0")
    a(f"buffer_store_dwordx4 v[124:127], v{vL16}, {sr(sW,4)}, s{sT1} offen {WT}")
    a("s_mov_b32 exec_hi, -1")
    if 'stw' in EXP: spin_lds(a, 31, 2, 30, sleep=2)
    a("s_waitcnt vmcnt(0)")
    a(f"s_sleep {int(os.environ.get('STD', '8'))}")
    poll_tags(a, [(f"buffer_load_dwordx4 {vr(NS+4*i,4)}, v{vL16}, {sr(sW,4)}, s{sT3 if i < 4 else sT2} offen offset:{1024*(i%4)} sc0 sc1", NS+4*i+2) for i in range(7)], zNL, sT0, sleep=SL2)
    stamp(a, 9)
    for i in (1, 2, 3):
        a(f"v_add_f32 v{NS+4*i}, v{NS+4*i}, v{NS+4*i+12}")
        a(f"v_add_f32 v{NS+4*i+1}, v{NS+4*i+1}, v{NS+4*i+13}")
    for i in (1, 2, 3):
        a(f"v_add_f32 v{NS}, v{NS}, v{NS+4*i}")
        a(f"v_add_f32 v{NS+1}, v{NS+1}, v{NS+4*i+1}")
    a(f"s_lshl_b32 s{sT1}, s{sG}, 1")
    a(f"s_sub_u32 s{sT0}, s{sT1}, 1")
    a(f"v_permlane32_swap_b32 v{NS}, v{NS+1}")
    a(f"s_cselect_b32 s{sT0}, 27, s{sT0}")
    a(f"v_add_f32 v{NS}, v{NS}, v{NS+1}")
    a(f"v_mul_f32 v{NS}, {hx(1.0/864)}, v{NS}")
    a(f"v_mov_b32 v{NS+1}, v{NS}")
    a(f"s_lshl_b32 s{sT2}, s{sT0}, 9")
    a(f"s_lshl_b32 s{sT3}, s{sT1}, 9")
    a(f"v_permlane32_swap_b32 v{NS}, v{NS+1}")
    a(f"s_lshl_b32 s{sT0}, s{sT0}, 17")
    a(f"v_fma_f32 v{NS+1}, -v{NS}, v{NS}, v{NS+1}")
    a(f"v_max_f32 v{NS+1}, 0, v{NS+1}")
    a(f"v_add_f32 v{NS+1}, {hx(1e-5)}, v{NS+1}")
    a(f"v_rsq_f32 v{NS+1}, v{NS+1}")
    a(f"s_lshl_b32 s{sT1}, s{sT1}, 17")
    a(f"v_mul_f32 v{NS}, -v{NS}, v{NS+1}")
    a(f"s_lshl_b32 s{sLOOP}, s{sTG}, 11")
    a(f"s_add_u32 s{sLOOP}, s{sLOOP}, {WS_Z2}")
    a(f"s_add_u32 s{sT0}, s{sT0}, s{sLOOP}")
    a(f"s_add_u32 s{sT1}, s{sT1}, s{sLOOP}")
    a(f"s_lshl3_add_u32 s{sLOOP}, s{sTG}, {F_Z2}")
    a(f"s_add_u32 s{sT2}, s{sT2}, s{sLOOP}")
    a(f"s_add_u32 s{sT3}, s{sT3}, s{sLOOP}")
    for q in range(4):
        for k in range(4):
            un = (UN, UN2)[q >> 1] + 2*(4*(q & 1) + k)
            a(f"v_fma_f32 v{un}, v{un}, v{NS+1}, v{NS}")
            a(f"v_fma_f32 v{un+1}, v{un+1}, v{NS+1}, v{NS}")
            a(f"v_cvt_pk_bf16_f32 v{NR+4*q+k}, v{un}, v{un+1}")
        for k in range(2):
            a(f"ds_write_b64 v24, {vr(NR+4*q+2*k,2)} offset:{(q>>1)*2048 + (q&1)*32 + 16*k}")
    a("s_waitcnt lgkmcnt(0)")
    for q in range(4):
        for k in range(2):
            a(f"ds_read_b64_tr_b16 {vr(NR+4*q+2*k,2)}, v23 offset:{q*1024 + k*256}")
    for q in range(4):
        a(f"s_waitcnt lgkmcnt({6-2*q})")
        a(f"buffer_store_dwordx4 {vr(NR+4*q,4)}, v{vL16}, {sr(sW,4)}, s{(sT0, sT1)[q>>1]} offen offset:{1024*(q&1)} {WT}")
    put_flags(a, sT2, zNL, 166)
    put_flags(a, sT3, zNL, 166, wait=False)
    if 'zw' in EXP: a("s_waitcnt vmcnt(0)")
    a.label("LF_nonorm")
    stamp(a, 10)
    a(f"s_cmp_ge_u32 s{sCG}, 14")
    a("s_cbranch_scc1 LF_idle")
    a(f"s_lshl_b32 s{sTG}, s{sRB}, 2")
    a(f"s_lshl1_add_u32 s{sTG}, s{sTH}, s{sTG}")
    spin_lds(a, 31, 2, 30, sleep=2)
    a(f"s_lshl_b32 s{sT0}, s{sTH}, 13")
    a(f"s_lshr_b32 s{sT1}, s{gw}, 1")
    a(f"s_lshl_b32 s{sT1}, s{sT1}, 11")
    a(f"s_add_u32 s{sT0}, s{sT0}, s{sT1}")
    a(f"s_add_u32 s{sT0}, s{sT0}, {Z1P}")
    a(f"v_add_u32 v30, s{sT0}, v{vL16}")
    for q in range(4):
        a(f"ds_read_b128 {vr(ZL+4*q,4)}, v30 offset:{(q>>1)*4096 + (q&1)*1024}")
    a("s_waitcnt vmcnt(2) lgkmcnt(0)")
    a(f"v_lshlrev_b32 v28, 16, v28")
    a(f"v_lshlrev_b32 v29, 16, v29")
    for r in range(16):
        a(f"v_mov_b32 v{GA[0][0]+r}, v28")
        a(f"v_mov_b32 v{GA[1][0]+r}, v29")
    a(f"s_cmp_lg_u32 s{gw}, 0")
    a("s_cbranch_scc1 LF_gnp")
    a(f"s_lshl_b32 s{sT1}, s{sCG}, 10")
    a(f"s_add_u32 s{sT1}, s{sT1}, {F_Z2}")
    poll_tags(a, [(f"buffer_load_dwordx4 {vr(NS,4)}, v{vL16}, {sr(sW,4)}, s{sT1} offen {PL}", (NS, NS+2))], zNL, sT0, sleep=SL3, adv=(sT1,))
    a.label("LF_gnp")
    stamp(a, 11)
    arrive(a); flag_read(a)
    a(f"s_mov_b32 s{sNEED}, 1")
    flag_check(a, sleep=True, low=False)
    for c in range(PFD): g_dma(a, c, "z" if c < NW0 else "wz")
    spin_lds(a, 31, 5, 30, sleep=2)
    a(f"s_waitcnt vmcnt({6*(PFD-2)})")
    arrive(a); flag_read(a)
    a(f"s_mov_b32 s{sNEED}, 2")
    flag_check(a)
    a(f"s_mov_b32 s{sNEED}, 1")
    for x in g_reads(0, 0): a(x)
    stamp(a, 5); stamp_rt(a, 12)
    a(f"s_mov_b32 s{sLOOP}, 4")
    a.raw(".p2align 6")
    a.label("LF_gloop")
    st = len(a.lines)
    WS = 6 * (PFD - 3) + 2
    for i in range(NSL):
        g_step(a, i, True, WS)
    a(f"s_sub_u32 s{sLOOP}, s{sLOOP}, 1")
    a(f"s_cmp_lg_u32 s{sLOOP}, 0")
    a("s_cbranch_scc1 LF_gloop")
    for p in check_linear(a.lines[st:] + a.lines[st:], "kf gemm loop x2"): print("HAZARD", p)
    for i in range(24, 32 - PFD):
        g_step(a, i, True, WS)
    for i in range(32 - PFD, 32):
        g_step(a, i, False, 6 * max(0, 31 - (i + 2)), last=(i == 31))
    stamp(a, 6); stamp_rt(a, 13)
    a("s_setprio 3")
    a(f"s_lshl_b32 s{sT0}, s{sTH}, 13")
    a(f"s_add_u32 s{sT1}, s{sT0}, {5*GSLOT}")
    a(f"s_cmp_lt_u32 s{gw}, 2")
    a(f"s_cselect_b32 s{sT2}, s{sT1}, s{sT0}")
    a(f"s_cselect_b32 s{sT0}, s{sT0}, s{sT1}")
    a(f"v_add_u32 v22, s{sT2}, v{vL16}")
    a(f"v_add_u32 v23, s{sT0}, v{vL16}")
    a("s_nop 4")
    for u in range(2):
        for k in range(4):
            a(f"ds_write_b128 v22, {vr(GA[u][1]+4*k,4)} offset:{u*4096 + k*1024}")
    a("s_waitcnt lgkmcnt(0)")
    arrive(a); flag_read(a)
    a(f"s_add_u32 s{sNEED}, s{sNEED}, 2")
    flag_check(a, low=False)
    a(f"s_cmp_ge_u32 s{sFB}, 27")
    a("s_cbranch_scc1 LF_fin")
    for u in range(2):
        for k in range(4):
            a(f"ds_read_b128 {vr(GA[u][1]+4*k,4)}, v23 offset:{u*4096 + k*1024}")
    a(f"s_mul_i32 s{sT0}, s{sTG}, {OH_TG}")
    a(f"s_lshl_b32 s{sT1}, s{sFB}, 11")
    a(f"s_add_u32 s{sT0}, s{sT0}, s{sT1}")
    a(f"s_add_u32 s{sT0}, s{sT0}, {WS_OH + 40960}")
    a("s_waitcnt vmcnt(0)")
    for u in range(2):
        G, H = GA[u]
        a(f"s_waitcnt lgkmcnt({4-4*u})")
        for k in range(8):
            z = ZL + 8*u + k
            a(f"v_add_f32 v{G+2*k}, v{G+2*k}, v{H+2*k}")
            a(f"v_add_f32 v{G+2*k+1}, v{G+2*k+1}, v{H+2*k+1}")
            a(f"v_lshlrev_b32 v24, 16, v{z}")
            a(f"v_and_b32 v25, v26, v{z}")
            a(f"v_mul_f32 v24, v24, v{G+2*k}")
            a(f"v_mul_f32 v25, v25, v{G+2*k+1}")
            a(f"v_cvt_pk_bf16_f32 v{z}, v24, v25")
        a(f"buffer_store_dwordx4 {vr(ZL+8*u,4)}, v{vL16}, {sr(sW,4)}, s{sT0} offen")
        a(f"buffer_store_dwordx4 {vr(ZL+8*u+4,4)}, v{vL16}, {sr(sW,4)}, s{sT0} offen offset:1024")
        a(f"s_add_u32 s{sT0}, s{sT0}, {OH_TG}")
    a("s_branch LF_fin")

    a.label("LF_idle")
    a(f"v_mov_b32 v{vONE}, 64")
    a(f"ds_write_b32 v{vFW}, v{vONE}")
    srd(a, sSP, 4, 640*1280)
    srd(a, sBI, 6, 864*1280)
    sUN, sKS = sSPO, sZO
    a(f"s_lshl1_add_u32 s{sUN}, s{sRB}, s{sG}")
    a(f"s_sub_u32 s{sUN}, s{sUN}, 1")
    a(f"s_lshl2_add_u32 s{sUN}, s{sUN}, s{gw}")
    a(f"v_lshrrev_b32 v16, 3, v{vLANE}")
    a(f"v_mul_u32_u24 v16, 1280, v16")
    a(f"v_and_b32 v17, 7, v{vLANE}")
    a(f"v_lshl_add_u32 v{vS0}, v17, 4, v16")
    a(f"v_bfe_u32 v16, v{vLANE}, 2, 2")
    a(f"v_and_b32 v17, 3, v{vLANE}")
    a(f"v_lshlrev_b32 v17, 3, v17")
    a(f"v_lshl_add_u32 v16, v16, 7, v17")
    a(f"v_add_u32 v16, s{sSPD}, v16")
    a(f"v_lshrrev_b32 v17, 4, v{vLANE}")
    a(f"v_lshl_add_u32 v8, v17, 10, v16")
    a(f"v_add_u32 v9, 512, v8")
    a(f"v_lshrrev_b32 v18, 1, v17")
    a(f"v_lshl_add_u32 v10, v18, 11, v16")
    a(f"v_and_b32 v18, 1, v17")
    a(f"v_lshl_add_u32 v10, v18, 9, v10")
    a(f"v_add_u32 v11, 1024, v10")
    a.label("LF_iloop")
    a(f"s_mul_i32 s{sKS}, s{sUN}, 6554")
    a(f"s_lshr_b32 s{sKS}, s{sKS}, 16")
    a(f"s_mul_i32 s{sT0}, s{sKS}, 10")
    a(f"s_sub_u32 s{sCG}, s{sUN}, s{sT0}")
    a(f"s_lshl_b32 s{sT1}, s{sCG}, 7")
    a(f"s_cmp_ge_u32 s{sKS}, 20")
    a("s_cbranch_scc1 LF_idh")
    a(f"s_mul_i32 s{sT0}, s{sKS}, {32*1280}")
    a(f"s_add_u32 s{sT0}, s{sT0}, s{sT1}")
    for k in range(4):
        a(f"s_add_u32 m0, s{sSPD}, {1024*k}")
        a("s_nop 0")
        a(f"buffer_load_dwordx4 v{vS0}, {sr(sSP,4)}, s{sT0} offen lds")
        a(f"s_add_u32 s{sT0}, s{sT0}, {8*1280}")
    a("s_branch LF_itr")
    a.label("LF_idh")
    a(f"s_sub_u32 s{sT0}, s{sKS}, 20")
    a(f"s_mul_i32 s{sT0}, s{sT0}, {32*1280}")
    a(f"s_add_u32 s{sT0}, s{sT0}, s{sT1}")
    for k in range(4):
        a(f"s_add_u32 m0, s{sSPD}, {1024*k}")
        a("s_nop 0")
        a(f"buffer_load_dwordx4 v{vS0}, {sr(sBI,4)}, s{sT0} offen lds")
        a(f"s_add_u32 s{sT0}, s{sT0}, {8*1280}")
    a.label("LF_itr")
    a(f"s_cmp_ge_u32 s{sKS}, 20")
    a(f"s_cselect_b64 vcc, -1, 0")
    a(f"v_cndmask_b32 v12, v8, v10, vcc")
    a(f"v_cndmask_b32 v13, v9, v11, vcc")
    a("s_waitcnt vmcnt(0)")
    for q in range(4):
        a(f"ds_read_b64_tr_b16 {vr(32+4*q,2)}, v12 offset:{32*q}")
        a(f"ds_read_b64_tr_b16 {vr(34+4*q,2)}, v13 offset:{32*q}")
    for q in range(4):
        a(f"s_lshl2_add_u32 s{sT0}, s{sCG}, {q}")
        a(f"s_mul_i32 s{sT1}, s{sT0}, 13108")
        a(f"s_lshr_b32 s{sT1}, s{sT1}, 16")
        a(f"s_mul_i32 s{sT2}, s{sT1}, {47*5 - 5}")
        a(f"s_add_u32 s{sT0}, s{sT0}, s{sT2}")
        a(f"s_mul_i32 s{sT2}, s{sKS}, 5")
        a(f"s_add_u32 s{sT0}, s{sT0}, s{sT2}")
        a(f"s_lshl_b32 s{sT0}, s{sT0}, 10")
        a(f"s_add_u32 s{sT0}, s{sT0}, {WS_WT}")
        a(f"s_waitcnt lgkmcnt({6-2*q})")
        a(f"buffer_store_dwordx4 {vr(32+4*q,4)}, v{vL16}, {sr(sW,4)}, s{sT0} offen sc1")
    a(f"s_add_u32 s{sUN}, s{sUN}, 128")
    a(f"s_cmp_lt_u32 s{sUN}, 470")
    a("s_cbranch_scc1 LF_iloop")
    a("s_branch LF_fin")

def gen_kf(a):
    kernel_header(a, "kf_kernel")
    a("s_cmp_ge_u32 s2, 256")
    a("s_cbranch_scc1 LF_end")
    stamp(a, 0); stamp_rt(a, 8)
    a("s_load_dwordx8 s[4:11], s[0:1], 0")
    a("s_load_dwordx2 s[12:13], s[0:1], 48")
    a("s_load_dwordx4 s[16:19], s[0:1], 88")
    a(f"v_and_b32 v{vLANE}, 63, v0")
    a("v_lshrrev_b32 v16, 6, v0")
    a(f"s_and_b32 s{sXC}, s2, 7")
    a(f"v_readfirstlane_b32 s{sWAVE}, v16")
    a(f"s_lshr_b32 s{sJ}, s2, 3")
    a(f"s_lshr_b32 s{sRB}, s{sXC}, 1")
    a(f"s_lshr_b32 s{sT2}, s{sJ}, 3")
    a(f"s_lshl2_add_u32 s{sRB}, s{sRB}, s{sT2}")
    a(f"s_and_b32 s{sG}, s{sXC}, 1")
    a(f"s_and_b32 s{sT2}, s{sJ}, 7")
    a(f"s_lshl3_add_u32 s{sG}, s{sG}, s{sT2}")
    a(f"s_and_b32 s{sW4}, s{sWAVE}, 3")
    a(f"v_lshlrev_b32 v{vL16}, 4, v{vLANE}")
    a(f"v_lshlrev_b32 v{vL8}, 3, v{vLANE}")
    a(f"s_cmp_lt_u32 s{sWAVE}, 8")
    a("s_cbranch_scc1 LF_A")
    a("s_setprio 3")
    a(f"s_lshl_b32 s{sT0}, s{sW4}, 8")
    a(f"s_add_u32 s{sT0}, s{sT0}, {FL}")
    a(f"v_lshl_add_u32 v{vFW}, v{vLANE}, 2, s{sT0}")
    a(f"v_mov_b32 v{vONE}, 0")
    a(f"ds_write_b32 v{vFW}, v{vONE}")
    gen_loader(a)

    a.label("LF_A")
    code_prefetch(a, "kf_kernel", 8, vD, 16, vLANE, sp=54)
    a(f"s_mov_b32 s{sHI}, 0")
    a(f"s_mov_b32 s{sHI+1}, -1")
    a(f"s_lshl_b32 s{sT0}, s{sWAVE}, 8")
    a(f"s_add_u32 s{sT0}, s{sT0}, {FL + 1024}")
    a(f"v_lshl_add_u32 v{vROW}, v{vLANE}, 2, s{sT0}")
    for r in list(range(ACC[0], vCS+8)):
        a(f"v_mov_b32 v{r}, 0")
    a(f"ds_write_b32 v{vROW}, v{vCS}")
    a(f"s_and_b32 s{sT0}, s{sWAVE}, 1")
    a(f"s_lshl_b32 s{sT0}, s{sT0}, 1")
    a(f"s_lshr_b32 s{sT1}, s{sWAVE}, 1")
    a(f"s_cmp_lt_u32 s{sWAVE}, 4")
    a(f"s_cselect_b32 s{sT0}, s{sT0}, s{sW4}")
    a(f"s_cselect_b32 s{sT1}, s{sT1}, 4")
    a(f"v_and_b32 v32, 31, v{vLANE}")
    a(f"v_lshrrev_b32 v33, 5, v{vLANE}")
    a(f"v_mov_b32 v34, s{sT0}")
    a(f"v_lshl_add_u32 v35, v34, 5, v32")
    a(f"v_lshl_add_u32 v36, v34, 1, v33")
    a(f"v_bfe_u32 v37, v32, 1, 3")
    a(f"v_xor_b32 v36, v36, v37")
    a(f"v_lshlrev_b32 v36, 4, v36")
    a(f"v_lshl_add_u32 v{vXA}, v35, 7, v36")
    for s in range(1, 4):
        a(f"v_xor_b32 v{vXA+s}, {32*s}, v{vXA}")
    a(f"v_lshlrev_b32 v35, 10, v34")
    a(f"v_lshl_add_u32 v35, v33, 9, v35")
    a(f"v_bfe_u32 v36, v{vLANE}, 2, 2")
    a(f"v_lshl_add_u32 v35, v36, 6, v35")
    a(f"v_bfe_u32 v36, v{vLANE}, 4, 1")
    a(f"v_lshl_add_u32 v35, v36, 5, v35")
    a(f"v_and_b32 v37, 3, v{vLANE}")
    a(f"v_lshl_add_u32 v35, v37, 3, v35")
    a(f"s_lshl_b32 s{sT0}, s{sT1}, 12")
    a(f"s_add_u32 s{sT0}, s{sT0}, 16384")
    a(f"v_add_u32 v{vWA}, s{sT0}, v35")
    for s in range(1, 4):
        a(f"v_xor_b32 v{vWA+s}, {1024*s}, v{vWA}")
    a(f"s_lshl_b32 s{sCSB}, s{sT1}, 9")
    a(f"s_add_u32 s{sCSB}, s{sCSB}, {CSR}")
    a(f"v_and_b32 v{vSEL+1}, 15, v{vLANE}")
    a(f"v_cmp_eq_u32 vcc, v36, v{vSEL+1}")
    a(f"v_mov_b32 v{vSEL+1}, 0x3f803f80")
    a(f"v_mov_b32 v{vGC}, {hx(GC1)}")
    a(f"v_cndmask_b32 v{vSEL}, 0, v{vSEL+1}, vcc")
    a(f"v_mov_b32 v{vGC+1}, {hx(GC0)}")
    for i in range(1, 4):
        a(f"v_mov_b32 v{vSEL+i}, v{vSEL}")
    a(f"s_mov_b32 s{sT1}, {SLOT}")
    a(f"s_mov_b32 s{sT2}, {-3*SLOT}")
    a("s_waitcnt lgkmcnt(0) vmcnt(0)")
    srd(a, sW, 18, WS_END)
    a(f"s_cmp_ge_u32 s{sWAVE}, 4")
    a("s_cbranch_scc1 LF_S")
    gen_P(a)
    gen_S(a)
    gen_att(a)
    gen_gemm(a)
    a.label("LF_fin")
    if STAMP: a("s_waitcnt vmcnt(0)")
    stamp(a, 7)
    stamp_flush(a, 14, 0, sWAVE, 18, 12, 30)
    a.label("LF_end")
    a("s_endpgm")
    return dict(name="kf_kernel", grid=256, block=768, lds=KF_LDS, vgpr=168, sgpr=102 if STAMP else 64, accum=168)
```

```python
import sys, importlib
from common import *
import k1

def build(kernels, out):
    hdr = open("cdna_kernels/" + NAME + ".s.ref").read().split("; Override launch")[0]
    a = Asm()
    infos = []
    for gen in kernels:
        start = len(a.lines)
        infos.append(gen(a))
        for p in check_linear(a.lines[start:], infos[-1]["name"]):
            print("HAZARD", p)
    s = hdr
    for i in infos:
        s += f"; @launch kernel={i['name']} grid=({i['grid']},1,1) block=({i['block']},1,1) lds={i['lds']}\n"
    s += '.amdgcn_target "amdgcn-amd-amdhsa--gfx950"\n.text\n'
    s += a.text()
    s += "Lcode_end:\n"
    s += '.section .rodata,"a"\n'
    for i in infos:
        s += kernel_desc(i["name"], i["vgpr"], i["sgpr"], i["accum"])
    open(out, "w").write(s)

if __name__ == "__main__":
    import k2, k3, kf
    ks = [k1.gen_k1, k2.gen_k2, k3.gen_k3] if os.environ.get("THREE") else [kf.gen_kf, k3.gen_k3]
    out = sys.argv[1] if len(sys.argv) > 1 else "cdna_kernels/" + NAME + ".s"
    build(ks, out)
```

```python
import math, struct
from asmlib import *

NAME = "parallel_sum__grouped_kv_mqa__mixer_gmlp__prompt"
WS_Q  = 0
WS_Z1 = 0x280000
WS_Z2 = 0x5E0000
WS_KV = 0x960000
WS_OH = 0x9A0000
WS_WT = 0xF80000
WS_ST = 0x1160000
WS_FL = 0x1200000
CPS = 0x10000
F_Q  = WS_FL
F_O  = WS_FL + 0x4000
F_H  = WS_FL + 0x80000
F_W  = WS_FL + 0x84000
F_Z2 = WS_FL + 0x8000
F_KV = WS_FL + 0xC000
F_ST = WS_FL + 0xD000
WS_EP = WS_FL + 0xF000
WS_ZR = 0x1300000
WS_END = WS_ZR + 0x380000
OH_TG = 96256
KVREC = 3584

def f2u(f):
    return struct.unpack("<I", struct.pack("<f", f))[0]
def hx(f):
    return "0x%08x" % f2u(f)

LOG2E = math.log2(math.e)
QSCALE = LOG2E / math.sqrt(20.0)
GC0 = -2.0 * math.sqrt(2.0 / math.pi) * LOG2E
GC1 = GC0 * 0.044715

def kernel_header(a, name):
    a.raw(f".globl {name}")
    a.raw(".p2align 8")
    a.raw(f".type {name},@function")
    a.label(name)

def kernel_desc(name, vgpr, sgpr, accum):
    return f""".p2align 6
.amdhsa_kernel {name}
  .amdhsa_next_free_vgpr {vgpr}
  .amdhsa_next_free_sgpr {sgpr}
  .amdhsa_accum_offset {accum}
  .amdhsa_group_segment_fixed_size 0
  .amdhsa_kernarg_size 104
  .amdhsa_user_sgpr_count 2
  .amdhsa_user_sgpr_kernarg_segment_ptr 1
  .amdhsa_system_sgpr_workgroup_id_x 1
.end_amdhsa_kernel
"""

def srd(a, d, base, size):
    a(f"s_mov_b32 s{d}, s{base}")
    a(f"s_mov_b32 s{d+1}, s{base+1}")
    a(f"s_mov_b32 s{d+2}, {size}")
    a(f"s_mov_b32 s{d+3}, 0x20000")

import os
STAMP = bool(os.environ.get("STAMP"))
WS_STAMP = 0x2000000
def stamp(a, i):
    if STAMP:
        a(f"s_memtime s[{64+2*i}:{65+2*i}]")
        a("s_waitcnt lgkmcnt(0)")
def stamp_flush(a, n, kidx, swave, ws_pair, nwaves, vt):
    if not STAMP: return
    a(f"s_memrealtime s[{64+2*n}:{65+2*n}]")
    a("s_waitcnt lgkmcnt(0)")
    a(f"s_mul_i32 s100, s2, {nwaves}")
    a(f"s_add_u32 s100, s100, s{swave}")
    a("s_lshl_b32 s100, s100, 6")
    a(f"s_add_u32 s100, s100, {WS_STAMP + kidx*0x100000}")
    a("s_mov_b64 exec, 1")
    a(f"v_mov_b32 v{vt}, s100")
    for i in range(n + 1):
        a(f"v_mov_b32 v{vt+1}, s{64+2*i}")
        a(f"global_store_dword v{vt}, v{vt+1}, s[{ws_pair}:{ws_pair+1}] offset:{4*i}")

def stamp_rt(a, i):
    if STAMP:
        a(f"s_memrealtime s[{64+2*i}:{65+2*i}]")
        a("s_waitcnt lgkmcnt(0)")

def code_prefetch(a, label, kb_per_wave, vtmp, vwave, vlane, sp=96):
    a(f"s_getpc_b64 s[{sp}:{sp+1}]")
    a.label(f"Lpc_{label}")
    a(f"s_sub_u32 s{sp}, s{sp}, Lpc_{label}-{label}")
    a(f"s_subb_u32 s{sp+1}, s{sp+1}, 0")
    a(f"v_lshlrev_b32 v{vtmp}, 7, v{vlane}")
    a(f"v_lshl_add_u32 v{vtmp}, v{vwave}, 13, v{vtmp}")
    a(f"v_min_u32 v{vtmp}, Lcode_end-{label}-4, v{vtmp}")
    a(f"global_load_dword v{vtmp+1}, v{vtmp}, s[{sp}:{sp+1}]")

DIAG = bool(os.environ.get("DIAG"))
WS_DG = 0x3000000
def diag(a, idx, swave, wsel, ws_pair, vt, sbase=90, pre=False):
    if not DIAG: return
    L = f"Ldg{idx}"
    a(f"s_lshl_b32 s{sbase}, s2, 4")
    a(f"s_add_u32 s{sbase}, s{sbase}, s{swave}")
    a(f"s_cmp_lg_u32 s{sbase}, {wsel + 16*int(os.environ.get('DWG', '43'))}")
    a(f"s_cbranch_scc1 {L}")
    if not pre: a(f"s_memrealtime s[{sbase+2}:{sbase+3}]")
    a("s_waitcnt lgkmcnt(0)")
    a(f"v_mov_b32 v{vt}, {WS_DG + 4*idx}")
    a(f"v_mov_b32 v{vt+1}, s{sbase+2}")
    a(f"global_store_dword v{vt}, v{vt+1}, s[{ws_pair}:{ws_pair+1}]")
    a.label(L)
```

```python
from common import *
EXP = os.environ.get('EXP', '').split(',')
MARGIN = float(os.environ.get('MARGIN', '90'))
WT = "sc0 sc1"
RD = "sc1"
PL = os.environ.get("PL", "sc0 sc1")
NCP = int(os.environ.get("NCP", "2"))
SL1, SL2, SL3 = (int(v) for v in os.environ.get("SLP", "8,6,8").split(","))

SLOT = 36864
NSL, GSLOT = 6, 24576
NON = 147456
CSR = NON + 512
STR = CSR + 2560
MX = STR + 1024
FL = MX + 4096
OST = (STR, FL + 3072)
KF_LDS = FL + 3072 + 5120
ROWP = 336
PART = 64 * ROWP
FULL = 'k3' not in EXP
QB = 5 * GSLOT
KB = QB + 10240
ZP = 2 * GSLOT
VTR = 3 * GSLOT
Z1P = VTR + 8192
NSC = 4 * GSLOT
assert MX % 4096 == 0

sX, sA, sB, sC, sW = 20, 24, 28, 32, 36
sSP, sBI = 24, 28
sWAVE, sRB, sG, sW4, sXC, sJ, sLOOP, sTG = 40, 41, 42, 43, 44, 45, 46, 47
sT0, sT1, sT2, sT3 = 48, 49, 50, 51
sHI = 52
sM = 54
sXO, sAO, sBO, sCO, sAS, sBS, sCS_, sXD, sWD, sSLOT, sROT = 56, 57, 58, 59, 60, 61, 62, 63, 14, 15, 3
sSPO, sZO, sSPD, sZD, sSPB, sZB, sNEED, sCG, sFB, sTH, sRB2 = 56, 57, 58, 59, 60, 61, 62, 63, 14, 15, 3
sB0, sTY, sU, sCSB, sKO, sVO, sHEAD, sKT, sF1 = 56, 57, 58, 59, 60, 61, 62, 63, 14

vLANE, vL16, vL8 = 1, 2, 3
vROW, vGRP = 4, 5
vSTO = 6
vXA, vWA, vSEL, vMU, vR, vGC, vN = 8, 12, 16, 20, 24, 28, 30
BUF = (32, 48)
ACC = (64, 80, 96, 112)
vCS, vT, vD, vSA = 128, 136, 152, 160
vSQ = vSA + 2
vS1, vS2, vS3, vS4 = 164, 165, 166, 167

def mf16(d, a_, b, c):
    cc = c if isinstance(c, str) else vr(c, 16)
    return f"v_mfma_f32_32x32x16_bf16 {vr(d,16)}, {vr(a_,4)}, {vr(b,4)}, {cc}"
def mf8(d, a_, b):
    return f"v_mfma_f32_32x32x8bf16_1k {vr(d,16)}, {vr(a_,2)}, {vr(b,2)}, {vr(d,16)}"

_uid = [0]
def uid(p):
    _uid[0] += 1
    return f"LF_{p}{_uid[0]}"

def spin_lds(a, vaddr, need, vt, sleep=1):
    L = uid("sp")
    a.label(L)
    a(f"ds_read_b32 v{vt}, v{vaddr}")
    a("s_waitcnt lgkmcnt(0)")
    a(f"v_cmp_gt_u32 vcc, {need}, v{vt}")
    a("s_nop 0")
    a(f"s_cbranch_vccz {L}d")
    if sleep: a(f"s_sleep {sleep}")
    a(f"s_branch {L}")
    a.label(L + "d")

def poll_tags(a, loads, vn, scnt, sleep=2, adv=()):
    L = uid("pl")
    a(f"s_mov_b32 s{scnt}, 0x20000")
    a.label(L)
    for ins, _ in loads: a(ins)
    n = len(loads)
    first = True
    for i, (_, ts) in enumerate(loads):
        a(f"s_waitcnt vmcnt({n-1-i})")
        for t in (ts if isinstance(ts, tuple) else (ts,)):
            a(f"v_cmp_ne_u64 {'vcc' if first else sr(sM,2)}, {vr(t,2)}, {vr(vn,2)}")
            a("s_nop 0")
            if not first: a(f"s_or_b64 vcc, vcc, {sr(sM,2)}")
            first = False
    a(f"s_cbranch_vccz {L}d")
    if adv:
        a(f"s_cmp_gt_u32 s{scnt}, {0x20000 - (NCP-1)}")
        a(f"s_cselect_b32 s{sM}, {CPS}, 0")
        for r in adv: a(f"s_add_u32 s{r}, s{r}, s{sM}")
    a(f"s_sleep {sleep}")
    a(f"s_sub_u32 s{scnt}, s{scnt}, 1")
    a(f"s_cbranch_scc0 {L}")
    a.label(L + "d")

def put_flags(a, soff, vn, vt, lb=0, ls=0, ncp=None, wait=True):
    ncp = NCP if ncp is None else ncp
    a(f"v_lshrrev_b32 v{vt}, {lb}, v{vLANE}")
    a(f"v_lshlrev_b32 v{vt}, 16, v{vt}")
    if lb:
        a(f"v_and_b32 v{vt+1}, {(1 << lb) - 1}, v{vLANE}")
        if isinstance(ls, str): a(f"v_mad_u32_u24 v{vt}, v{vt+1}, {ls}, v{vt}")
        else: a(f"v_lshl_add_u32 v{vt}, v{vt+1}, {ls}, v{vt}")
    if wait: a("s_waitcnt vmcnt(0)")
    n = ncp << lb
    assert n <= 32
    a("s_mov_b32 exec_hi, 0")
    a(f"s_mov_b32 exec_lo, {hex((1 << n) - 1)}")
    a(f"buffer_store_dwordx2 {vr(vn,2)}, v{vt}, {sr(sW,4)}, s{soff} offen {WT}")
    a("s_mov_b64 exec, -1")

def reads(a, s, n):
    buf = BUF[s & 1]
    for u in range(n):
        a(f"ds_read_b128 {vr(buf+4*u,4)}, v{vXA+s} offset:{u*4096}")
        for h in range(2):
            a(f"ds_read_b64_tr_b16 {vr(buf+8+4*u+2*h,2)}, v{vWA+s} offset:{u*8192 + h*256}")

def mfmas(a, s, n):
    buf = BUF[s & 1]
    for (u, b) in ((0, 0), (1, 0), (0, 1), (1, 1)):
        if u < n and b < n:
            a(mf16(ACC[2*b+u], buf+8+4*b, buf+4*u, ACC[2*b+u]))
            if u == n - 1 and s < n:
                a(f"v_mfma_f32_16x16x32_bf16 {vr(vCS+4*b,4)}, {vr(buf+8+4*b,4)}, {vr(vSEL,4)}, {vr(vCS+4*b,4)}")
    if n == 1:
        for r in range(4):
            t = vT + 2*(r & 1)
            a(f"v_lshlrev_b32 v{t}, 16, v{buf+r}")
            a(f"v_and_b32 v{t+1}, v{vT+4}, v{buf+r}")
            a(f"v_add_f32 v{vS1}, v{vS1}, v{t}")
            a(f"v_fmac_f32 v{vS2}, v{t}, v{t}")
            a(f"v_add_f32 v{vS3}, v{vS3}, v{t+1}")
            a(f"v_fmac_f32 v{vS4}, v{t+1}, v{t+1}")

def compute_loop(a, tag, n):
    nr = 3 * n
    a("s_barrier")
    stamp(a, 1)
    reads(a, 0, n)
    a(f"s_mov_b32 s{sLOOP}, 0")
    a.raw(".p2align 6")
    a.label(f"LF_loop{tag}")
    st = len(a.lines)
    for s in range(3):
        reads(a, s+1, n)
        if s == 2:
            a(f"s_add_u32 s{sLOOP}, s{sLOOP}, 1")
            a(f"s_and_b32 s{sT0}, s{sLOOP}, 3")
            a(f"s_cselect_b32 s{sT0}, s{sT1}, s{sT2}")
            for i in range(4):
                a(f"v_add_u32 v{vXA+i}, s{sT0}, v{vXA+i}")
                a(f"v_add_u32 v{vWA+i}, s{sT0}, v{vWA+i}")
        a(f"s_waitcnt lgkmcnt({nr})")
        mfmas(a, s, n)
    a("s_waitcnt lgkmcnt(0)")
    a("s_barrier")
    reads(a, 0, n)
    mfmas(a, 3, n)
    a(f"s_cmp_lt_u32 s{sLOOP}, 10")
    a(f"s_cbranch_scc1 LF_loop{tag}")
    for p in check_linear(a.lines[st:] + a.lines[st:], "kf loop x2"): print("HAZARD", p)
    a("s_waitcnt lgkmcnt(0)")
    stamp(a, 2)

def write_colsum(a, n, sslot):
    a(f"v_and_b32 v{vT}, 1, v{vLANE}")
    a(f"v_lshlrev_b32 v{vT}, 8, v{vT}")
    a(f"v_lshrrev_b32 v{vT+1}, 4, v{vLANE}")
    a(f"v_lshl_add_u32 v{vT}, v{vT+1}, 6, v{vT}")
    a(f"s_lshl2_add_u32 s{sT0}, s{sslot}, s{sCSB}")
    a(f"v_add_u32 v{vT}, s{sT0}, v{vT}")
    m = 4 * n
    for k in range(m): a(f"v_cvt_pk_bf16_f32 v{vT+2+k}, v{vCS+k}, v{vCS+k}")
    for k in range(m): a(f"v_lshlrev_b32 v{vT+2+k}, 16, v{vT+2+k}")
    for k in range(m): a(f"v_sub_f32 v{vT+2+k}, v{vCS+k}, v{vT+2+k}")
    for k in range(m): a(f"v_cvt_pk_bf16_f32 v{vT+2+k}, v{vCS+k}, v{vT+2+k}")
    a("s_mov_b32 exec_lo, 0x00030003")
    a("s_mov_b32 exec_hi, 0x00030003")
    for b in range(n):
        for r in range(4):
            a(f"ds_write_b32 v{vT}, v{vT+2+4*b+r} offset:{b*1024 + r*16}")
    a("s_mov_b64 exec, -1")

def scale(a, acc, hi, r=vR):
    sel = "op_sel:[0,1] op_sel_hi:[1,1]" if hi else "op_sel_hi:[1,0]"
    for i in range(8):
        a(f"v_pk_mul_f32 {vr(acc+2*i,2)}, {vr(acc+2*i,2)}, {vr(r,2)} {sel}")

def gelu(a, acc, r):
    scale(a, acc, False, r)
    for i in range(8):
        a(f"v_pk_mul_f32 {vr(vT+2*i,2)}, {vr(acc+2*i,2)}, {vr(acc+2*i,2)}")
    for i in range(8):
        a(f"v_pk_fma_f32 {vr(vT+2*i,2)}, {vr(vT+2*i,2)}, {vr(vGC,2)}, {vr(vGC,2)} op_sel:[0,0,1] op_sel_hi:[1,0,1]")
    for i in range(8):
        a(f"v_pk_mul_f32 {vr(vT+2*i,2)}, {vr(vT+2*i,2)}, {vr(acc+2*i,2)}")
    for i in range(16):
        a(f"v_exp_f32 v{vT+i}, v{vT+i}")
    for i in range(8):
        a(f"v_pk_add_f32 {vr(vT+2*i,2)}, {vr(vT+2*i,2)}, 1.0 op_sel_hi:[1,0]")
    for i in range(16):
        a(f"v_rcp_f32 v{vT+i}, v{vT+i}")
    for i in range(8):
        a(f"v_pk_mul_f32 {vr(acc+2*i,2)}, {vr(acc+2*i,2)}, {vr(vT+2*i,2)}")

def pack(a, acc, d=vD):
    for i in range(8):
        a(f"v_cvt_pk_bf16_f32 v{d+i}, v{acc+2*i}, v{acc+2*i+1}")

def swaps(a, d=vD, n=2):
    a("s_nop 1")
    for i in range(n):
        a(f"v_permlane32_swap_b32 v{d+4*i}, v{d+4*i+2}")
        a(f"v_permlane32_swap_b32 v{d+4*i+1}, v{d+4*i+3}")

def store_lin(a, soff, d=vD):
    a(f"buffer_store_dwordx4 {vr(d,4)}, v{vL16}, {sr(sW,4)}, s{soff} offen {WT}")
    a(f"buffer_store_dwordx4 {vr(d+4,4)}, v{vL16}, {sr(sW,4)}, s{soff} offen offset:1024 {WT}")
    a("s_nop 1")

def epi_q(a, acc, sblk, u=0):
    scale(a, acc, True, vR + 2*u)
    pack(a, acc)
    swaps(a)
    if u == 0:
        a(f"s_mul_i32 s{sT0}, s{sTG}, 40960")
        a(f"s_lshl_b32 s{sT1}, s{sblk}, 11")
        a(f"s_add_u32 s{sT0}, s{sT0}, s{sT1}")
        if WS_Q: a(f"s_add_u32 s{sT0}, s{sT0}, {WS_Q}")
    else:
        a(f"s_add_u32 s{sT0}, s{sT0}, 40960")
    store_lin(a, sT0)

def epi_z(a, u):
    acc = ACC[u]
    gelu(a, acc, vR + 2*u)
    pack(a, acc)
    if u == 0:
        a(f"s_cmp_eq_u32 s{sU}, 2")
        a("s_cbranch_scc0 LF_pq")
        put_flags(a, sF1, vN, vT, 1, 8)
        a.label("LF_pq")
    a(f"ds_write_b128 v{vSTO+1}, {vr(vD,4)} offset:{u*4096}")
    a(f"ds_write_b128 v{vSTO+1}, {vr(vD+4,4)} offset:{u*4096 + 1024}")

def gen_P(a):
    sB1, sTY1 = sKO, sVO
    compute_loop(a, "p", 2)
    a(f"s_and_b32 s{sT3}, s{sWAVE}, 1")
    write_colsum(a, 2, sT3)
    a(f"s_lshr_b32 s{sT2}, s{sWAVE}, 1")
    a(f"s_cmp_le_u32 s{sG}, 2")
    a(f"s_cselect_b32 s{sB0}, 2, 13")
    a(f"s_cselect_b32 s{sB1}, 13, -3")
    a(f"s_cselect_b32 s{sTY}, 0, 1")
    a(f"s_cmp_ge_u32 s{sG}, 14")
    a(f"s_cselect_b32 s{sB0}, -14, s{sB0}")
    a(f"s_cselect_b32 s{sTY}, 0, s{sTY}")
    a(f"s_add_i32 s{sB0}, s{sB0}, s{sG}")
    a(f"s_add_i32 s{sB1}, s{sB1}, s{sG}")
    a(f"s_lshl1_add_u32 s{sB0}, s{sB0}, s{sT2}")
    a(f"s_lshl1_add_u32 s{sB1}, s{sB1}, s{sT2}")
    a(f"s_lshl_b32 s{sTG}, s{sRB}, 2")
    a(f"s_lshl1_add_u32 s{sTG}, s{sT3}, s{sTG}")
    a(f"v_and_b32 v{vT}, 0x1f0, v{vL16}")
    a(f"v_add_u32 v{vT}, s{sCSB}, v{vT}")
    a(f"v_and_b32 v{vT+1}, 0xf8, v{vL8}")
    a(f"s_lshl_b32 s{sT0}, s{sT3}, 9")
    a(f"s_add_u32 s{sT0}, s{sT0}, {STR}")
    a(f"v_add_u32 v{vT+1}, s{sT0}, v{vT+1}")
    a(f"v_mov_b32 v{vT+6}, {NON}")
    a(f"s_lshl_b32 s{sT0}, s{sT3}, 13")
    a(f"s_lshl_b32 s{sT1}, s{sT2}, 11")
    a(f"s_add_u32 s{sT0}, s{sT0}, s{sT1}")
    a(f"s_add_u32 s{sT0}, s{sT0}, {ZP}")
    a(f"v_add_u32 v{vSTO}, s{sT0}, v{vL16}")
    a(f"v_mov_b32 v{vSA}, 1")
    a("s_setprio 2")
    a("s_waitcnt lgkmcnt(0)")
    a("s_barrier")
    a(f"ds_read_b64 {vr(vT+2,2)}, v{vT+1}")
    a(f"ds_read_b64 {vr(vT+4,2)}, v{vT+1} offset:256")
    for b in range(2):
        a(f"ds_read_b64 {vr(BUF[0]+4*b,2)}, v{vT} offset:{b*1024}")
        a(f"v_mov_b32 v{BUF[0]+4*b+2}, 0")
        a(f"v_mov_b32 v{BUF[0]+4*b+3}, 0")
    a(f"ds_read_b64 {vr(vN,2)}, v{vT+6}")
    a("s_waitcnt lgkmcnt(3)")
    MU = (vMU, BUF[1])
    for u in range(2):
        a(f"v_cndmask_b32 v{MU[u]}, v{vT+2+2*u}, 0, {sr(sHI,2)}")
        a(f"v_mov_b32 v{vR+2*u}, v{vT+3+2*u}")
        for i in range(1, 4):
            a(f"v_mov_b32 v{MU[u]+i}, v{MU[u]}")
        a(f"v_mul_f32 v{vR+2*u+1}, {hx(QSCALE)}, v{vT+3+2*u}")
    a("s_waitcnt lgkmcnt(0)")
    for b in range(2):
        for u in range(2):
            a(mf16(ACC[2*b+u], BUF[0]+4*b, MU[u], ACC[2*b+u]))
    a(f"s_mov_b32 s{sU}, 0")
    a("s_nop 7")
    stamp(a, 3)
    a(f"s_cmp_eq_u32 s{sTY}, 1")
    a("s_cbranch_scc1 LF_pg")
    epi_q(a, ACC[0], sB0, 0)
    epi_q(a, ACC[1], sB0, 1)
    a(f"s_lshl_b32 s{sF1}, s{sTG}, 8")
    a(f"s_lshl3_add_u32 s{sF1}, s{sB0}, s{sF1}")
    a(f"s_add_u32 s{sF1}, s{sF1}, {F_Q}")
    a("s_branch LF_pn")
    a.label("LF_pg")
    a(f"s_cmp_ge_u32 s{sB0}, 27")
    a(f"s_cselect_b32 s{sT0}, 0, {Z1P - ZP}")
    a(f"v_add_u32 v{vSTO+1}, s{sT0}, v{vSTO}")
    epi_z(a, 0)
    epi_z(a, 1)
    a("s_waitcnt lgkmcnt(0)")
    a.label("LF_pn")
    a(f"ds_add_u32 v{vROW}, v{vSA}")
    a(f"s_cmp_lg_u32 s{sU}, 0")
    a("s_cbranch_scc1 LF_pd")
    a(f"s_sub_u32 s{sU}, 2, s{sTY}")
    a(f"s_mov_b32 s{sB0}, s{sB1}")
    for r in range(32): a(f"v_mov_b32 v{ACC[0]+r}, v{ACC[2]+r}")
    a("s_branch LF_pg")
    a.label("LF_pd")
    stamp(a, 4)
    a("s_branch LF_att")

def gen_S(a):
    a.label("LF_S")
    a(f"s_lshl_b32 s{sT0}, s2, 2")
    a(f"s_or_b32 s{sT0}, s{sT0}, s{sW4}")
    a("s_cbranch_scc1 LF_nolead")
    a(f"s_mov_b32 s{sT0}, {WS_EP}")
    a(f"buffer_load_dwordx2 {vr(vD,2)}, v{vCS}, {sr(sW,4)}, s{sT0} offen sc0 sc1")
    a("s_waitcnt vmcnt(0)")
    a(f"v_add_u32 v{vD}, 1, v{vD}")
    a(f"v_add_u32 v{vD+1}, 0x9e3779b9, v{vD+1}")
    a(f"v_mov_b32 v{vD+2}, 1")
    a(f"v_mov_b32 v{vD+3}, 1")
    a("s_mov_b64 exec, 1")
    a(f"global_store_dwordx4 v{vCS}, {vr(vD,4)}, s[16:17] sc0 sc1")
    a(f"buffer_store_dwordx2 {vr(vD,2)}, v{vCS}, {sr(sW,4)}, s{sT0} offen sc0 sc1")
    a("s_mov_b64 exec, -1")
    a.label("LF_nolead")
    for r in (vS1, vS2, vS3, vS4):
        a(f"v_mov_b32 v{r}, 0")
    a(f"v_mov_b32 v{vT+4}, 0xffff0000")
    a("s_setprio 1")
    compute_loop(a, "s", 1)
    a("s_setprio 3")
    a(f"v_add_f32 v{vS1}, v{vS1}, v{vS3}")
    a(f"v_add_f32 v{vS2}, v{vS2}, v{vS4}")
    a(f"v_and_b32 v{vS3}, 0xf8, v{vL8}")
    a(f"s_lshl_b32 s{sT0}, s{sW4}, 8")
    a(f"v_permlane32_swap_b32 v{vS1}, v{vS2}")
    a(f"s_add_u32 s{sT0}, s{sT0}, {STR}")
    a(f"v_add_str" if False else f"v_add_u32 v{vS3}, s{sT0}, v{vS3}")
    a(f"v_add_f32 v{vS1}, v{vS1}, v{vS2}")
    a(f"v_mul_f32 v{vS1}, {hx(1.0/640)}, v{vS1}")
    a(f"v_mov_b32 v{vS2}, v{vS1}")
    a("s_nop 1")
    a(f"v_permlane32_swap_b32 v{vS1}, v{vS2}")
    a("s_nop 0")
    a(f"v_cvt_pk_bf16_f32 v{vD}, -v{vS1}, -v{vS1}")
    a(f"v_fma_f32 v{vS2}, -v{vS1}, v{vS1}, v{vS2}")
    a(f"v_max_f32 v{vS2}, 0, v{vS2}")
    a(f"v_add_f32 v{vS2}, {hx(1e-5)}, v{vS2}")
    a(f"v_rsq_f32 v{vD+1}, v{vS2}")
    a("s_nop 0")
    a(f"ds_write_b64 v{vS3}, {vr(vD,2)}")
    write_colsum(a, 1, sW4)
    a(f"v_cndmask_b32 v{vMU}, v{vD}, 0, {sr(sHI,2)}")
    a(f"v_mov_b32 v{vR}, v{vD+1}")
    for i in range(1, 4):
        a(f"v_mov_b32 v{vMU+i}, v{vMU}")
    a(f"v_mul_f32 v{vR+1}, {hx(QSCALE)}, v{vD+1}")
    a(f"v_and_b32 v{vT}, 0x1f0, v{vL16}")
    a(f"v_add_u32 v{vT}, s{sCSB}, v{vT}")
    a(f"v_mov_b32 v{vT+6}, {NON}")
    a(f"s_lshl2_add_u32 s{sTG}, s{sRB}, s{sW4}")
    a("s_waitcnt lgkmcnt(0)")
    a("s_barrier")
    a(f"ds_read_b128 {vr(BUF[0],4)}, v{vT}")
    a(f"ds_read_b64 {vr(vN,2)}, v{vT+6}")
    a("s_waitcnt lgkmcnt(0)")
    acc = ACC[0]
    a(mf16(acc, BUF[0], vMU, acc))
    u = vT
    a("s_nop 6")
    stamp(a, 3)
    a(f"s_cmp_eq_u32 s{sG}, 0")
    a(f"s_cbranch_scc1 LF_ck")
    a(f"s_cmp_eq_u32 s{sG}, 1")
    a(f"s_cbranch_scc1 LF_cv")
    a(f"s_add_u32 s{sB0}, s{sG}, 8")
    a(f"s_cmp_lt_u32 s{sG}, 10")
    a(f"s_cbranch_scc1 LF_cq")
    a(f"s_add_u32 s{sB0}, s{sG}, 4")
    a(f"s_cmp_lt_u32 s{sG}, 14")
    a(f"s_cbranch_scc1 LF_cn")
    a.label("LF_cq")
    epi_q(a, acc, sB0)
    a(f"s_lshl_b32 s{sF1}, s{sTG}, 8")
    a(f"s_lshl3_add_u32 s{sF1}, s{sB0}, s{sF1}")
    a(f"s_add_u32 s{sF1}, s{sF1}, {F_Q}")
    a(f"s_branch LF_cf")
    a.label(f"LF_ck")
    a("s_nop 2")
    scale(a, acc, False)
    pack(a, acc)
    a(f"v_mov_b32 v{u}, 0x3f803f80")
    a(f"v_mov_b32 v{u+1}, 0x00003f80")
    a(f"v_cndmask_b32 v{vD+4}, v{vD+4}, v{u}, {sr(sHI,2)}")
    a(f"v_cndmask_b32 v{vD+5}, v{vD+5}, v{u+1}, {sr(sHI,2)}")
    swaps(a, n=1)
    a(f"s_mul_i32 s{sT0}, s{sTG}, {KVREC}")
    a(f"s_add_u32 s{sT0}, s{sT0}, {WS_KV}")
    a(f"buffer_store_dwordx4 {vr(vD,4)}, v{vL16}, {sr(sW,4)}, s{sT0} offen {WT}")
    a(f"buffer_store_dwordx2 {vr(vD+4,2)}, v{vL8}, {sr(sW,4)}, s{sT0} offen offset:3072 {WT}")
    a(f"s_lshl3_add_u32 s{sF1}, s{sTG}, {F_KV}")
    a(f"s_branch LF_cr")
    a.label(f"LF_cv")
    a("s_nop 0")
    scale(a, acc, False)
    pack(a, acc)
    a(f"v_mov_b32 v{u}, 0x00003f80")
    a(f"v_cndmask_b32 v{vD+4}, v{vD+4}, v{u}, {sr(sHI,2)}")
    a(f"v_cndmask_b32 v{vD+5}, v{vD+5}, 0, {sr(sHI,2)}")
    a(f"v_mov_b32 v{vD+6}, 0")
    a(f"v_mov_b32 v{vD+7}, 0")
    a(f"v_and_b32 v{u+1}, 31, v{vLANE}")
    a(f"v_lshlrev_b32 v{u+1}, 6, v{u+1}")
    a(f"v_lshrrev_b32 v{u+2}, 5, v{vLANE}")
    a(f"v_lshl_add_u32 v{u+1}, v{u+2}, 3, v{u+1}")
    a(f"s_lshl_b32 s{sT0}, s{sW4}, 11")
    a(f"s_add_u32 s{sT0}, s{sT0}, {VTR}")
    a(f"v_add_u32 v{u+1}, s{sT0}, v{u+1}")
    for k in range(4):
        a(f"ds_write_b64 v{u+1}, {vr(vD+2*k,2)} offset:{16*k}")
    a(f"v_bfe_u32 v{u+3}, v{vLANE}, 2, 2")
    a(f"v_lshl_add_u32 v{u+3}, v{u+2}, 2, v{u+3}")
    a(f"v_lshlrev_b32 v{u+3}, 6, v{u+3}")
    a(f"v_bfe_u32 v{u+4}, v{vLANE}, 4, 1")
    a(f"v_lshl_add_u32 v{u+3}, v{u+4}, 5, v{u+3}")
    a(f"v_and_b32 v{u+4}, 3, v{vLANE}")
    a(f"v_lshl_add_u32 v{u+3}, v{u+4}, 3, v{u+3}")
    a(f"v_add_u32 v{u+3}, s{sT0}, v{u+3}")
    a("s_waitcnt lgkmcnt(0)")
    for k in range(4):
        a(f"ds_read_b64_tr_b16 {vr(vD+2*k,2)}, v{u+3} offset:{512*k}")
    a(f"s_mul_i32 s{sT0}, s{sTG}, {KVREC}")
    a(f"s_add_u32 s{sT0}, s{sT0}, {WS_KV + 1024}")
    a("s_waitcnt lgkmcnt(0)")
    store_lin(a, sT0)
    a(f"s_lshl3_add_u32 s{sF1}, s{sTG}, {F_KV + 512}")
    a.label("LF_cr")
    put_flags(a, sF1, vN, u, 2, 10)
    a("s_branch LF_cn")
    a.label("LF_cf")
    put_flags(a, sF1, vN, u)
    a.label("LF_cn")
    a(f"v_mov_b32 v{vT}, 2")
    a(f"ds_write_b32 v{vROW}, v{vT}")
    a("s_setprio 1")
    stamp(a, 4)

S = (8, 24)
P = (40, 48)
O = (56, 72, 88, 104)
QL = (120, 124, 128, 132)
QH = (136, 138, 140, 142)
KL = (144, 148)
VV = (152, 160)
KH = (4, 6)

def phase(a, Sx, Px, mf, x0=(), x2=(), x3=()):
    E = lambda i: f"v_exp_f32 v{Sx+i}, v{Sx+i}"
    C = lambda k: f"v_cvt_pk_bf16_f32 v{Px+k}, v{Sx+2*k}, v{Sx+2*k+1}"
    for x in x0: a(x)
    a(mf[0])
    a(E(0)); a(E(1)); a(E(2)); a(E(3)); a(E(4)); a(C(0))
    a(mf[1])
    a(E(5)); a(E(6)); a(C(1)); a(E(7)); a(E(8)); a(C(2))
    for x in x2: a(x)
    a(mf[2])
    a(E(9)); a(C(3)); a(E(10)); a(E(11)); a(C(4)); a(E(12))
    a(mf[3])
    a(E(13))
    for x in x3: a(x)
    a(C(5)); a(E(14)); a(E(15)); a(C(6)); a(C(7))

KRD = os.environ.get("KRD", RD)
def ldK(b):
    return [f"buffer_load_dwordx4 {vr(KL[b],4)}, v{vL16}, {sr(sW,4)}, s{sKO} offen {KRD}",
            f"buffer_load_dwordx2 {vr(KH[b],2)}, v{vL8}, {sr(sW,4)}, s{sKO} offen offset:3072 {KRD}",
            f"s_add_u32 s{sKO}, s{sKO}, {4*KVREC}"]
def ldV(b):
    return [f"buffer_load_dwordx4 {vr(VV[b],4)}, v{vL16}, {sr(sW,4)}, s{sVO} offen offset:1024 {KRD}",
            f"buffer_load_dwordx4 {vr(VV[b]+4,4)}, v{vL16}, {sr(sW,4)}, s{sVO} offen offset:2048 {KRD}",
            f"s_add_u32 s{sVO}, s{sVO}, {4*KVREC}"]

def att_tile(a, c):
    n = c ^ 1
    def qk(j, kb): return [mf16(S[j & 1], KL[kb], QL[j], "0"), mf8(S[j & 1], KH[kb], QH[j])]
    def pv(j, vb): return [mf16(O[j], VV[vb], P[j & 1], O[j]), mf16(O[j], VV[vb]+4, P[j & 1]+4, O[j])]
    phase(a, S[0], P[0], qk(1, c) + pv(3, n))
    phase(a, S[1], P[1], qk(2, c) + pv(0, c), x2=["s_waitcnt vmcnt(2)"], x3=ldV(n))
    phase(a, S[0], P[0], qk(3, c) + pv(1, c))
    phase(a, S[1], P[1], qk(0, n) + pv(2, c), x0=["s_waitcnt vmcnt(2)"], x3=ldK(c))

def make_qhi(a, Q, vm, t):
    a(f"v_cvt_pk_bf16_f32 v{t}, -v{vm}, -v{vm}")
    a(f"v_lshlrev_b32 v{t}, 16, v{t}")
    a(f"v_add_f32 v{t+1}, v{vm}, v{t}")
    a(f"v_cvt_pk_bf16_f32 v{t+2}, v{t}, -v{t+1}")
    a(f"v_and_b32 v{t}, 0xffff0000, v{t+2}")
    a(f"v_add_f32 v{t+1}, v{t+1}, v{t}")
    a(f"v_cvt_pk_bf16_f32 v{t+3}, -v{t+1}, 0")
    a(f"v_cndmask_b32 v{Q}, v{Q}, v{t+2}, {sr(sHI,2)}")
    a(f"v_cndmask_b32 v{Q+1}, v{Q+1}, v{t+3}, {sr(sHI,2)}")

def max16(a, Sx, vm, first):
    k = 0
    if first:
        a(f"v_max3_f32 v{vm}, v{Sx}, v{Sx+1}, v{Sx+2}")
        a(f"v_max_f32 v{vm}, v{vm}, v{Sx+3}")
        k = 4
    for i in range(k, 16, 2):
        a(f"v_max3_f32 v{vm}, v{vm}, v{Sx+i}, v{Sx+i+1}")

def halves_max(a, vm, t):
    a(f"v_mov_b32 v{t}, v{vm}")
    a("s_nop 1")
    a(f"v_permlane32_swap_b32 v{t}, v{vm}")
    a("s_nop 0")
    a(f"v_max_f32 v{vm}, v{vm}, v{t}")

def gen_att(a):
    a.label("LF_att")
    AD = O[2]
    vrow, vgrp, vstg = AD+14, AD+15, O[3]+15
    a(f"v_mov_b32 v{vrow}, v{vROW}")
    a(f"s_and_b32 s{sKT}, s{sWAVE}, 3")
    a(f"s_lshl_b32 s{sTG}, s{sXC}, 3")
    a(f"s_lshr_b32 s{sT0}, s{sJ}, 2")
    a(f"s_add_u32 s{sTG}, s{sTG}, s{sT0}")
    a(f"s_and_b32 s{sT3}, s{sJ}, 3")
    a(f"s_lshl3_add_u32 s{sHEAD}, s{sT3}, s{sWAVE}")
    a(f"s_mul_i32 s{sVO}, s{sKT}, {KVREC}")
    a(f"s_add_u32 s{sVO}, s{sVO}, {WS_KV}")
    a(f"s_add_u32 s{sKO}, s{sVO}, {4*KVREC}")
    a(f"s_cmp_lt_u32 s{sWAVE}, 4")
    a("s_cbranch_scc1 LF_nst")
    a(f"v_mov_b32 v{O[0]+8}, {FL + 2048}")
    a(f"v_mov_b32 v{O[0]+9}, 3")
    a(f"v_mov_b32 v{O[0]+10}, 4")
    a(f"s_cmp_lg_u32 s{sWAVE}, 4")
    a("s_cbranch_scc1 LF_npl")
    a(f"s_mul_i32 s{sT1}, s{sT3}, 40")
    a(f"s_lshl_b32 s{sT0}, s{sTG}, 8")
    a(f"s_add_u32 s{sT1}, s{sT1}, s{sT0}")
    a(f"s_add_u32 s{sT1}, s{sT1}, {F_Q}")
    a(f"s_and_b32 s{sT2}, s2, 3")
    a(f"s_lshl_b32 s{sT2}, s{sT2}, 10")
    a(f"s_add_u32 s{sT2}, s{sT2}, {F_KV}")
    a(f"v_min_u32 v{O[0]}, 32, v{vL8}")
    a(f"v_and_b32 v{O[0]+1}, 7, v{vLANE}")
    a(f"v_lshlrev_b32 v{O[0]+1}, 8, v{O[0]+1}")
    a(f"v_add_u32 v{O[0]+1}, {FL + 1024}, v{O[0]+1}")
    spin_lds(a, O[0]+1, int(os.environ.get('APW', '2')), O[0]+2, sleep=2)
    poll_tags(a, [(f"buffer_load_dwordx4 {vr(O[0]+4,4)}, v{vL16}, {sr(sW,4)}, s{sT2} offen {PL}", (O[0]+4, O[0]+6)),
                  (f"buffer_load_dwordx2 {vr(O[0]+2,2)}, v{O[0]}, {sr(sW,4)}, s{sT1} offen {PL}", O[0]+2)], vN, sT0, sleep=SL1, adv=(sT1, sT2))
    a(f"ds_write_b32 v{vrow}, v{O[0]+9}")
    stamp(a, 9)
    a.label("LF_npl")
    a(f"s_mul_i32 s{sT1}, s{sT3}, 10240")
    a(f"s_mul_i32 s{sT0}, s{sTG}, 40960")
    a(f"s_add_u32 s{sT1}, s{sT1}, s{sT0}")
    if WS_Q: a(f"s_add_u32 s{sT1}, s{sT1}, {WS_Q}")
    a(f"s_lshl_b32 s{sT0}, s{sKT}, 10")
    a(f"s_add_u32 s{sT1}, s{sT1}, s{sT0}")
    spin_lds(a, O[0]+8, 3, O[0]+2, sleep=1)
    a(f"s_add_u32 m0, s{sT0}, {KB}")
    a(f"s_add_u32 s{sT2}, s{sT1}, 4096")
    a(f"buffer_load_dwordx4 v{vL16}, {sr(sW,4)}, s{sVO} offen {RD} lds")
    a(f"s_add_u32 m0, s{sT0}, {KB + 4096 - 3072}")
    a("s_nop 0")
    a(f"buffer_load_dwordx4 v{vL16}, {sr(sW,4)}, s{sVO} offen offset:3072 {RD} lds")
    a(f"s_add_u32 m0, s{sT0}, {QB}")
    a("s_nop 0")
    a(f"buffer_load_dwordx4 v{vL16}, {sr(sW,4)}, s{sT1} offen {RD} lds")
    a(f"s_add_u32 m0, s{sT0}, {QB + 4096}")
    a(f"s_cmp_ge_u32 s{sKT}, 2")
    a(f"buffer_load_dwordx4 v{vL16}, {sr(sW,4)}, s{sT2} offen {RD} lds")
    a("s_cbranch_scc1 LF_st2")
    a(f"s_add_u32 m0, s{sT0}, {QB + 8192}")
    a(f"s_add_u32 s{sT2}, s{sT1}, 8192")
    a(f"buffer_load_dwordx4 v{vL16}, {sr(sW,4)}, s{sT2} offen {RD} lds")
    a.label("LF_st2")
    a.label("LF_nst")
    tq = P[0]
    a(f"v_add_u32 v{tq}, {QB}, v{vL16}")
    a(f"v_and_b32 v{tq+1}, 0x1f0, v{vL16}")
    a(f"v_add_u32 v{tq+1}, {QB}, v{tq+1}")
    for j in range(4):
        if j: a(f"s_xor_b32 s{sT0}, s{sWAVE}, {j}")
        a(f"s_mul_i32 s{sT0}, s{sT0 if j else sWAVE}, 5")
        for k in range(3):
            if k == 1: a(f"s_add_u32 s{sT0}, s{sT0}, 1")
            if k == 2: a(f"s_add_u32 s{sT0}, s{sT0}, 3")
            a(f"s_lshr_b32 s{sT1}, s{sT0}, 1")
            a(f"s_lshl_b32 s{sT1}, s{sT1}, 9")
            a(f"s_and_b32 s{sT2}, s{sT0}, 1")
            a(f"s_lshl3_add_u32 s{sT1}, s{sT2}, s{sT1}")
            a(f"v_add_u32 v{AD+3*j+k}, s{sT1}, v{tq if k < 2 else tq+1}")
    a(f"v_add_u32 v{tq+1}, {KB + 4096}, v{vL8}")
    a(f"s_lshl_b32 s{sT0}, s{sKT}, 10")
    a(f"v_add_u32 v{AD+12}, s{sT0}, v{tq}")
    a(f"v_add_u32 v{AD+13}, s{sT0}, v{tq+1}")
    a(f"v_and_b32 v{vgrp}, 3, v{vLANE}")
    a(f"v_lshlrev_b32 v{vgrp}, 8, v{vgrp}")
    a(f"s_and_b32 s{sT0}, s{sWAVE}, 4")
    a(f"s_lshl_b32 s{sT0}, s{sT0}, 8")
    a(f"s_add_u32 s{sT0}, s{sT0}, {FL + 1024}")
    a(f"v_add_u32 v{vgrp}, s{sT0}, v{vgrp}")
    a(f"v_and_b32 v{vstg}, 3, v{vLANE}")
    a(f"v_lshlrev_b32 v{vstg}, 8, v{vstg}")
    a(f"v_add_u32 v{vstg}, {FL + 2048}, v{vstg}")
    for r in list(range(O[3], O[3]+15)) + list(range(P[1], P[1]+8)) + list(range(VV[1], VV[1]+8)):
        a(f"v_mov_b32 v{r}, 0")
    a(f"s_cmp_lt_u32 s{sWAVE}, 4")
    a("s_cbranch_scc1 LF_st3")
    a("s_waitcnt vmcnt(0)")
    a(f"ds_write_b32 v{vrow}, v{O[0]+10}")
    a.label("LF_st3")
    spin_lds(a, vstg, 4, S[0], sleep=1)
    a('s_setprio 3')
    stamp(a, 10)
    kb = [(O[0], O[0]+4), (O[0]+8, O[0]+12), (O[1], O[1]+4), (O[1]+8, O[1]+12)]
    def rq(j):
        for k in range(3):
            dst = vr(QL[j] + 2*k, 2) if k < 2 else vr(QH[j], 2)
            a(f"ds_read_b64 {dst}, v{AD+3*j+k}")
    rq(0)
    for t in range(4):
        a(f"ds_read_b128 {vr(kb[t][0],4)}, v{tq} offset:{KB - QB + 1024*t}")
        a(f"ds_read_b64 {vr(kb[t][1],2)}, v{tq+1} offset:{1024*t}")
    a("s_waitcnt lgkmcnt(8)")
    for r in (QH[0], QH[0]+1):
        a(f"v_cndmask_b32 v{r}, v{r}, 0, {sr(sHI,2)}")
    vm = P[0] + 2
    for t in range(4):
        Sx = S[t & 1]
        a(f"s_waitcnt lgkmcnt({6-2*t})")
        if t == 0: a("s_nop 0")
        a(mf16(Sx, kb[t][0], QL[0], "0"))
        a(mf8(Sx, kb[t][1], QH[0]))
        if t >= 1:
            if t == 1: a("s_nop 8")
            if t == 3:
                a(f"ds_read_b128 {vr(KL[0],4)}, v{AD+12} offset:{KB - QB}")
                a(f"ds_read_b64 {vr(KH[0],2)}, v{AD+13}")
                for j in (1, 2, 3): rq(j)
            max16(a, S[(t-1) & 1], vm, t == 1)
            a("s_nop 1")
    a("s_nop 1")
    max16(a, S[1], vm, False)
    halves_max(a, vm, vm+1)
    a(f"v_add_f32 v{vm}, {hx(MARGIN)}, v{vm}")
    make_qhi(a, QH[0], vm, vm+2)
    va = S[1]
    a(f"s_lshl_b32 s{sT0}, s{sWAVE}, 9")
    a(f"s_add_u32 s{sT0}, s{sT0}, {MX}")
    a(f"v_add_u32 v{va}, s{sT0}, v{vL8}")
    a(f"ds_write_b64 v{va}, {vr(vm+4,2)}")
    for j in range(1, 4):
        a(f"v_xor_b32 v{va+j}, {512*j}, v{va}")
    a(f"v_mov_b32 v{va+4}, 5")
    a("s_waitcnt lgkmcnt(0)")
    a(f"ds_write_b32 v{vrow}, v{va+4}")
    a(mf16(S[0], KL[0], QL[0], "0"))
    a(mf8(S[0], KH[0], QH[0]))
    for x in ldV(0) + ldK(1): a(x)
    for r in range(O[0], O[0]+32):
        a(f"v_mov_b32 v{r}, 0")
    spin_lds(a, vgrp, 5, va+5)
    for j in range(1, 4):
        a(f"ds_read_b64 {vr(va+4+2*j,2)}, v{va+j}")
    for r in list(range(O[2], O[2]+16)) + [vstg]:
        a(f"v_mov_b32 v{r}, 0")
    a("s_waitcnt lgkmcnt(0)")
    for j in range(1, 4):
        a(f"v_cndmask_b32 v{QH[j]}, v{QH[j]}, v{va+4+2*j}, {sr(sHI,2)}")
        a(f"v_cndmask_b32 v{QH[j]+1}, v{QH[j]+1}, v{va+5+2*j}, {sr(sHI,2)}")
    stamp(a, 5); stamp_rt(a, 12)
    a(f"s_mov_b32 s{sLOOP}, 8")
    PS = [int(v) for v in os.environ.get("PSTEP", "3,1").split(",")]
    a("s_setprio 2")
    a.raw(".p2align 6")
    a.label("LF_aloop")
    st = len(a.lines)
    att_tile(a, 0)
    att_tile(a, 1)
    a(f"s_sub_u32 s{sLOOP}, s{sLOOP}, 1")
    a(f"s_cmp_gt_u32 s{sLOOP}, {PS[0]}")
    a("s_cbranch_scc1 LF_aloop")
    a("s_setprio 1")
    a(f"s_cmp_gt_u32 s{sLOOP}, {PS[1]}")
    a("s_cbranch_scc1 LF_aloop")
    a("s_setprio 0")
    a(f"s_cmp_lg_u32 s{sLOOP}, 0")
    a("s_cbranch_scc1 LF_aloop")
    for p in check_linear(a.lines[st:] + a.lines[st:], "kf att loop x2"): print("HAZARD", p)
    a(mf16(O[3], VV[1], P[1], O[3]))
    a(mf16(O[3], VV[1]+4, P[1]+4, O[3]))
    stamp(a, 6); stamp_rt(a, 13)
    va = S[0]
    a("s_setprio 2")
    a(f"v_and_b32 v{va+5}, 3, v{vLANE}")
    a(f"v_lshlrev_b32 v{va+5}, 8, v{va+5}")
    a(f"v_add_u32 v{va+5}, {FL}, v{va+5}")
    a(f"s_lshr_b32 s{sT2}, s{sWAVE}, 2")
    a(f"s_lshl_b32 s{sT0}, s{sT2}, 10")
    a(f"s_add_u32 s{sT0}, s{sT0}, 1024")
    a(f"v_add_u32 v{va+6}, s{sT0}, v{va+5}")
    a(f"s_lshl_b32 s{sT0}, s{sWAVE}, 8")
    a(f"s_add_u32 s{sT0}, s{sT0}, {FL + 1024}")
    a(f"v_lshl_add_u32 v{va+7}, v{vLANE}, 2, s{sT0}")
    a(f"v_mov_b32 v{va+9}, 6")
    a(f"s_add_u32 s{sT2}, s{sT2}, 30")
    for j in range(4):
        if j: a(f"s_xor_b32 s{sT0}, s{sWAVE}, {j}")
        a(f"s_mul_i32 s{sT0}, s{sT0 if j else sWAVE}, 9216")
        a(f"s_add_u32 s{sT0}, s{sT0}, {2*GSLOT}")
        a(f"v_add_u32 v{va+j}, s{sT0}, v{vL16}")
    spin_lds(a, va+5, f"s{sT2}", va+8)
    for j in range(1, 4):
        for k in range(3):
            a(f"ds_write_b128 v{va+j}, {vr(O[j]+4*k,4)} offset:{(j-1)*3072 + 1024*k}")
    a("s_waitcnt lgkmcnt(0)")
    a(f"ds_write_b32 v{va+7}, v{va+9}")
    t = S[1]
    a(f"s_mul_i32 s{sT0}, s{sKT if FULL else sHEAD}, 5")
    a(f"v_lshrrev_b32 v{t+5}, 5, v{vLANE}")
    a(f"v_add_u32 v{t+5}, s{sT0}, v{t+5}")
    a(f"v_and_b32 v{t+2}, 0x1f0, v{vL16}")
    a(f"v_lshrrev_b32 v{t+3}, 1, v{t+5}")
    a(f"v_lshl_add_u32 v{t+3}, v{t+3}, 9, v{t+2}")
    a(f"v_and_b32 v{t+5}, 1, v{t+5}")
    a(f"v_lshl_add_u32 v{t+3}, v{t+5}, 3, v{t+3}")
    a(f"s_mul_i32 s{sVO}, s{sTG}, {OH_TG}")
    a(f"s_add_u32 s{sVO}, s{sVO}, {WS_OH}")
    if FULL:
        a(f"s_cmp_lt_u32 s{sWAVE}, 4")
        a(f"s_mov_b32 s{sKO}, {OST[0]}")
        a(f"s_cselect_b32 s{sKO}, s{sKO}, {OST[1]}")
        a(f"v_add_u32 v{t+3}, s{sKO}, v{t+3}")
        for k in (5, 6, 7): a(f"v_mov_b32 v{t+3+k}, v{va+k}")
    spin_lds(a, va+6, "6", va+8)
    for j in range(1, 4):
        for k in range(3):
            a(f"ds_read_b128 {vr(O[j]+4*k,4)}, v{va} offset:{(j-1)*3072 + 1024*k}")
    OA = O[0]
    for j in range(1, 4):
        a(f"s_waitcnt lgkmcnt({9-3*j})")
        for k in range(12):
            a(f"v_add_f32 v{OA+k}, v{OA+k}, v{O[j]+k}")
    def get_l():
        a(f"v_mov_b32 v{t}, v{OA+8}")
        a(f"v_mov_b32 v{t+4}, v{OA+8}")
        a("s_nop 1")
        a(f"v_permlane32_swap_b32 v{t+4}, v{t}")
    get_l()
    a(f"v_add_f32 v{t+1}, |v{OA}|, |v{OA+1}|")
    for k in range(2, 8):
        a(f"v_add_f32 v{t+1}, v{t+1}, |v{OA+k}|")
    a(f"v_add_f32 v{t+2}, v{t+1}, |v{OA+8}|")
    for k in range(9, 12):
        a(f"v_add_f32 v{t+2}, v{t+2}, |v{OA+k}|")
    a(f"s_mov_b32 s{sT0}, {hx(2.0**120)}")
    a(f"s_mov_b32 s{sT1}, {hx(2.0**-100)}")
    a(f"s_mov_b32 s{sT2}, {hx(2.0**126)}")
    a(f"v_cmp_gt_f32 s[20:21], s{sT0}, v{t}")
    a(f"v_cmp_le_f32 {sr(sM,2)}, s{sT1}, v{t+1}")
    a(f"v_cmp_gt_f32 vcc, s{sT2}, v{t+2}")
    a("s_nop 1")
    a(f"s_and_b64 s[20:21], s[20:21], {sr(sM,2)}")
    a("s_and_b64 s[20:21], s[20:21], vcc")
    a("s_cmp_eq_u64 s[20:21], -1")
    a("s_cbranch_scc0 LF_fallback")
    a.label("LF_final")
    a(f"v_rcp_f32 v{t}, v{t}")
    a("s_nop 0")
    for k in range(12):
        a(f"v_mul_f32 v{OA+k}, v{OA+k}, v{t}")
    PA = P[0]
    for k in range(6):
        a(f"v_cvt_pk_bf16_f32 v{PA+k}, v{OA+2*k}, v{OA+2*k+1}")
    if FULL:
        a(f"ds_write_b64 v{t+3}, {vr(PA,2)}")
        a(f"ds_write_b64 v{t+3}, {vr(PA+2,2)} offset:512")
        a("s_mov_b32 exec_hi, 0")
        a(f"ds_write_b64 v{t+3}, {vr(PA+4,2)} offset:1024")
        a("s_mov_b64 exec, -1")
        a("s_branch LF_p3")
    else:
        a(f"buffer_store_dwordx2 {vr(PA,2)}, v{t+3}, {sr(sW,4)}, s{sVO} offen")
        a(f"buffer_store_dwordx2 {vr(PA+2,2)}, v{t+3}, {sr(sW,4)}, s{sVO} offen offset:512")
        a("s_mov_b32 exec_hi, 0")
        a(f"buffer_store_dwordx2 {vr(PA+4,2)}, v{t+3}, {sr(sW,4)}, s{sVO} offen offset:1024")
        a("s_mov_b64 exec, -1")
        a("s_branch LF_fin")
    a.label("LF_fallback")
    a("s_waitcnt vmcnt(0)")
    for r in (QH[0], QH[0]+1):
        a(f"v_cndmask_b32 v{r}, v{r}, 0, {sr(sHI,2)}")
    vm = P[1]
    SA = S[0]
    a(f"v_mov_b32 v{vm}, 0xff800000")
    a(f"s_mov_b32 s{sT0}, {WS_KV}")
    a.label("LF_fb1")
    a(f"buffer_load_dwordx4 {vr(KL[0],4)}, v{vL16}, {sr(sW,4)}, s{sT0} offen {RD}")
    a(f"buffer_load_dwordx2 {vr(KH[0],2)}, v{vL8}, {sr(sW,4)}, s{sT0} offen offset:3072 {RD}")
    a("s_waitcnt vmcnt(0)")
    a(mf16(SA, KL[0], QL[0], "0"))
    a(mf8(SA, KH[0], QH[0]))
    a("s_nop 11")
    max16(a, SA, vm, False)
    a(f"s_add_u32 s{sT0}, s{sT0}, {KVREC}")
    a(f"s_cmp_lt_u32 s{sT0}, {WS_KV + 64*KVREC}")
    a("s_cbranch_scc1 LF_fb1")
    halves_max(a, vm, vm+1)
    make_qhi(a, QH[0], vm, vm+2)
    for r in range(OA, OA+16):
        a(f"v_mov_b32 v{r}, 0")
    a(f"s_mov_b32 s{sT0}, {WS_KV}")
    a.label("LF_fb2")
    a(f"buffer_load_dwordx4 {vr(KL[0],4)}, v{vL16}, {sr(sW,4)}, s{sT0} offen {RD}")
    a(f"buffer_load_dwordx2 {vr(KH[0],2)}, v{vL8}, {sr(sW,4)}, s{sT0} offen offset:3072 {RD}")
    a(f"buffer_load_dwordx4 {vr(VV[0],4)}, v{vL16}, {sr(sW,4)}, s{sT0} offen offset:1024 {RD}")
    a(f"buffer_load_dwordx4 {vr(VV[0]+4,4)}, v{vL16}, {sr(sW,4)}, s{sT0} offen offset:2048 {RD}")
    a("s_waitcnt vmcnt(0)")
    a(mf16(SA, KL[0], QL[0], "0"))
    a(mf8(SA, KH[0], QH[0]))
    a("s_nop 11")
    for i in range(16):
        a(f"v_exp_f32 v{SA+i}, v{SA+i}")
    a("s_nop 0")
    for k in range(8):
        a(f"v_cvt_pk_bf16_f32 v{PA+k}, v{SA+2*k}, v{SA+2*k+1}")
    a("s_nop 1")
    a(mf16(OA, VV[0], PA, OA))
    a(mf16(OA, VV[0]+4, PA+4, OA))
    a(f"s_add_u32 s{sT0}, s{sT0}, {KVREC}")
    a(f"s_cmp_lt_u32 s{sT0}, {WS_KV + 64*KVREC}")
    a("s_nop 11")
    a("s_cbranch_scc1 LF_fb2")
    get_l()
    a("s_branch LF_final")


def gen_p3(a):
    t = S[1]
    vG, vGR, vRW, vC = 160, 161, 162, 163
    vNN = 164
    vA3, vR0, vAL, vX = 4, 5, 6, 7
    AC, B0, B1 = 8, 88, 124
    sAO3, sWO3, sN3, sPT, sOO, sTB, sNG = sB0, sTY, sU, sCSB, sF1, sHEAD, sG
    sXs, sOs = 24, 28
    a.label("LF_p3")
    a("s_waitcnt vmcnt(0)")
    a(f"v_mov_b32 v{vG}, v{t+8}")
    a(f"v_mov_b32 v{vGR}, v{t+9}")
    a(f"v_mov_b32 v{vRW}, v{t+10}")
    a(f"v_mov_b32 v{vC}, {NON}")
    a(f"ds_read_b64 {vr(vNN,2)}, v{vC}")
    a("s_load_dwordx2 s[6:7], s[0:1], 80")
    def mark(v):
        a(f"v_mov_b32 v{vC}, {v}")
        a(f"ds_write_b32 v{vRW}, v{vC}")
    a("s_waitcnt lgkmcnt(0)")
    mark(7)
    a(f"s_lshr_b32 s{sT0}, s{sHEAD}, 2")
    a(f"s_mul_i32 s{sT0}, s{sT0}, 5120")
    a(f"s_add_u32 s{sVO}, s{sVO}, s{sT0}")
    a(f"s_lshl_b32 s{sT0}, s{sKT}, 10")
    a(f"s_add_u32 s{sVO}, s{sVO}, s{sT0}")
    a(f"s_add_u32 s{sKO}, s{sKO}, s{sT0}")
    a(f"v_add_u32 v{vX}, s{sKO}, v{vL16}")
    a(f"s_lshl_b32 s{sT1}, s{sTG}, 8")
    a(f"s_lshl3_add_u32 s{sT1}, s{sHEAD}, s{sT1}")
    a(f"s_add_u32 s{sT1}, s{sT1}, {F_O}")
    spin_lds(a, vGR, 7, vC)
    a(f"ds_read_b128 {vr(B0,4)}, v{vX}")
    a(f"s_cmp_lg_u32 s{sKT}, 0")
    a("s_cbranch_scc1 LF_o1")
    a(f"ds_read_b128 {vr(B0+4,4)}, v{vX} offset:4096")
    a(f"s_add_u32 s{sT0}, s{sVO}, 4096")
    a("s_waitcnt lgkmcnt(0)")
    a(f"buffer_store_dwordx4 {vr(B0+4,4)}, v{vL16}, {sr(sW,4)}, s{sT0} offen {WT}")
    a.label("LF_o1")
    a("s_waitcnt lgkmcnt(0)")
    a(f"buffer_store_dwordx4 {vr(B0,4)}, v{vL16}, {sr(sW,4)}, s{sVO} offen {WT}")
    a(f"s_lshr_b32 s{sT0}, s{sJ}, 3")
    a(f"s_lshl2_add_u32 s{sTB}, s{sXC}, s{sT0}")
    a(f"s_and_b32 s{sNG}, s{sJ}, 7")
    srd(a, sXs, 4, 2048*1280)
    srd(a, sOs, 6, 2048*1280)
    a(f"s_mul_i32 s{sOO}, s{sTB}, {64*1280}")
    a(f"s_mul_i32 s{sT0}, s{sNG}, 160")
    a(f"s_add_u32 s{sOO}, s{sOO}, s{sT0}")
    def item_addr(r, go, lo, tp):
        if r == 0: a(f"v_mov_b32 v{tp}, v0")
        else:
            a(f"s_lshl_b32 s{sT0}, s{sWAVE}, 4")
            a(f"s_add_u32 s{sT0}, s{sT0}, 512")
            a(f"v_add_u32 v{tp}, s{sT0}, v{vLANE}")
        a(f"v_mul_u32_u24 v{tp+1}, 6554, v{tp}")
        a(f"v_lshrrev_b32 v{tp+1}, 16, v{tp+1}")
        a(f"v_mul_u32_u24 v{tp+2}, 10, v{tp+1}")
        a(f"v_sub_u32 v{tp+2}, v{tp}, v{tp+2}")
        a(f"v_mul_u32_u24 v{tp+3}, 1280, v{tp+1}")
        a(f"v_lshl_add_u32 v{go}, v{tp+2}, 4, v{tp+3}")
        if lo is not None:
            a(f"v_mul_u32_u24 v{tp+3}, {ROWP}, v{tp+1}")
            a(f"v_lshl_add_u32 v{lo}, v{tp+2}, 5, v{tp+3}")
    item_addr(0, B1+8, None, B1+4)
    item_addr(1, B1+9, None, B1+4)
    a(f"v_lshrrev_b32 v{B1}, 4, v{vLANE}")
    a(f"v_and_b32 v{B1+1}, 0xf0, v{vL16}")
    a(f"v_lshl_add_u32 v{vA3}, v{B1}, 9, v{B1+1}")
    a(f"v_mov_b32 v{vR0}, {FL + 1024}")
    a(f"v_and_b32 v{vAL}, 7, v{vLANE}")
    a(f"v_lshl_add_u32 v{vAL}, v{vAL}, 8, v{vR0}")
    for r in range(80): a(f"v_mov_b32 v{AC+r}, 0")
    put_flags(a, sT1, vNN, B1, ncp=2)
    mark(8)
    a(f"s_mov_b32 m0, s{sKO}")
    a(f"s_cmp_lg_u32 s{sKT}, 0")
    a(f"buffer_load_dwordx4 v{B1+8}, {sr(sXs,4)}, s{sOO} offen lds")
    a("s_cbranch_scc1 LF_x1")
    a(f"s_add_u32 m0, s{sKO}, 4096")
    a("s_nop 0")
    a(f"buffer_load_dwordx4 v{B1+9}, {sr(sXs,4)}, s{sOO} offen lds")
    a.label("LF_x1")
    stamp(a, 11)
    a("s_setprio 0")
    HF = int(os.environ.get("HF", "1"))
    a(f"s_mov_b32 s{sPT}, {HF}")
    a(f"v_mov_b32 v{vG}, {FL}")
    a(f"v_mov_b32 v{vR0}, {FL + 256}")
    a.label("LF_part")
    a(f"s_lshl2_add_u32 s{sT0}, s{sPT}, s{sWAVE}")
    if HF: a(f"s_add_u32 s{sT0}, s{sT0}, 4")
    a(f"s_and_b32 s{sT0}, s{sT0}, 7")
    a(f"s_cmp_lt_u32 s{sT0}, 4")
    a(f"s_cselect_b32 s{sN3}, 3, 2")
    a(f"s_cmp_eq_u32 s{sT0}, 3")
    a(f"s_cselect_b32 s{sT1}, 0, s{sPT}")
    a(f"s_add_u32 s{sN3}, s{sN3}, s{sT1}")
    a(f"s_mul_i32 s{sT1}, s{sPT}, 20")
    a(f"s_add_u32 s{sT0}, s{sT0}, s{sT1}")
    a(f"s_mul_i32 s{sAO3}, s{sTB}, {2*OH_TG}")
    a(f"s_lshl_b32 s{sT1}, s{sT0}, 11")
    a(f"s_add_u32 s{sAO3}, s{sAO3}, s{sT1}")
    a(f"s_add_u32 s{sAO3}, s{sAO3}, {WS_OH}")
    a(f"s_mul_i32 s{sWO3}, s{sNG}, 47")
    a(f"s_add_u32 s{sWO3}, s{sWO3}, s{sT0}")
    a(f"s_mul_i32 s{sWO3}, s{sWO3}, 5120")
    a(f"s_add_u32 s{sWO3}, s{sWO3}, {WS_WT}")
    def LW(b):
        a(f"s_add_u32 s{sT3}, s{sWO3}, 4096")
        for nb in range(4):
            a(f"buffer_load_dwordx4 {vr(b+16+4*nb,4)}, v{vL16}, {sr(sW,4)}, s{sWO3} offen offset:{1024*nb} {RD}")
        a(f"buffer_load_dwordx4 {vr(b+32,4)}, v{vL16}, {sr(sW,4)}, s{sT3} offen {RD}")
        a(f"s_add_u32 s{sWO3}, s{sWO3}, {8*5120}")
    def LA(b):
        a(f"s_add_u32 s{sT1}, s{sAO3}, {OH_TG}")
        a(f"buffer_load_dwordx4 {vr(b,4)}, v{vA3}, {sr(sW,4)}, s{sAO3} offen {RD}")
        a(f"buffer_load_dwordx4 {vr(b+4,4)}, v{vA3}, {sr(sW,4)}, s{sAO3} offen offset:256 {RD}")
        a(f"buffer_load_dwordx4 {vr(b+8,4)}, v{vA3}, {sr(sW,4)}, s{sT1} offen {RD}")
        a(f"buffer_load_dwordx4 {vr(b+12,4)}, v{vA3}, {sr(sW,4)}, s{sT1} offen offset:256 {RD}")
        a(f"s_add_u32 s{sAO3}, s{sAO3}, {8*2048}")
    def MM(b, w):
        a(f"s_waitcnt vmcnt({w})")
        for nb in range(5):
            for m in range(4):
                d = AC + (nb * 4 + m) * 4
                a(f"v_mfma_f32_16x16x32_bf16 {vr(d,4)}, {vr(b+16+4*nb,4)}, {vr(b+4*m,4)}, {vr(d,4)}")
    if 'pre' in EXP: LW(B0); LW(B1)
    a(f"s_cmp_eq_u32 s{sPT}, 1")
    a("s_cbranch_scc1 LF_wh")
    spin_lds(a, vR0, 65, vC, sleep=2)
    stamp(a, 3)
    a("s_branch LF_go")
    a.label("LF_wh")
    spin_lds(a, vG, 65, vC, sleep=2)
    a.label("LF_go")
    if 'pre' in EXP:
        LA(B0); LA(B1)
        MM(B0, 4)
    else:
        LA(B0); LW(B0); LA(B1); LW(B1)
        MM(B0, 9)
    a(f"s_cmp_eq_u32 s{sN3}, 2")
    a("s_cbranch_scc1 LF_l1")
    LA(B0); LW(B0)
    MM(B1, 9)
    a(f"s_cmp_eq_u32 s{sN3}, 3")
    a("s_cbranch_scc0 LF_n4")
    MM(B0, 0)
    a("s_branch LF_pe")
    a.label("LF_n4")
    LA(B1); LW(B1)
    MM(B0, 9)
    a.label("LF_l1")
    MM(B1, 0)
    a.label("LF_pe")
    a(f"s_cmp_eq_u32 s{sPT}, {1-HF}")
    a("s_cbranch_scc1 LF_red")
    a(f"s_mov_b32 s{sPT}, {1-HF}")
    stamp(a, 9)
    a("s_branch LF_part")
    a.label("LF_red")
    stamp(a, 10)
    XR, XO, LO, TP = 128, 136, 138, 144
    XCH = 4 * PART
    a(f"s_mul_i32 s{sT0}, s{sKT}, {PART}")
    a(f"s_mul_i32 s{sT1}, s{sWAVE}, 5120")
    a(f"s_mul_i32 s{sT1}, s{sKT}, 10240")
    a(f"s_add_u32 s{sT1}, s{sT1}, {XCH}")
    a(f"s_cmp_lt_u32 s{sWAVE}, 4")
    a(f"s_cselect_b32 s{sT2}, s{sT1}, s{sT0}")
    a(f"s_cselect_b32 s{sT3}, s{sT0}, s{sT1}")
    a(f"v_add_u32 v{vX}, s{sT2}, v{vL16}")
    a(f"v_add_u32 v{TP+9}, s{sT3}, v{vL16}")
    a(f"v_subrev_u32 v{vR0}, {FL + 1024}, v{vRW}")
    a(f"v_xor_b32 v{vR0}, 1024, v{vR0}")
    a(f"v_add_u32 v{vR0}, {FL + 1024}, v{vR0}")
    a("s_cbranch_scc0 LF_r1")
    for hi in range(2):
        keep, send = AC + 40*hi, AC + 40*(1-hi)
        if hi: a.label("LF_r1")
        for k in range(10):
            a(f"ds_write_b128 v{vX}, {vr(send+4*k,4)} offset:{1024*k}")
        a(f"v_and_b32 v{TP}, 15, v{vLANE}")
        a(f"v_mul_u32_u24 v{TP}, {ROWP}, v{TP}")
        a(f"v_lshrrev_b32 v{TP+1}, 4, v{vLANE}")
        a(f"v_lshl_add_u32 v{TP}, v{TP+1}, 4, v{TP}")
        a(f"v_add_u32 v{vA3}, s{sT0}, v{TP}")
        a("s_waitcnt lgkmcnt(0)")
        mark(11)
        spin_lds(a, vR0, 11, vC, sleep=1)
        a("s_setprio 2")
        for k in range(10):
            a(f"ds_read_b128 {vr(B0+4*k,4)}, v{TP+9} offset:{1024*k}")
        if not hi:
            a("s_waitcnt lgkmcnt(0)")
            mark(12)
        for k in range(10):
            if hi: a(f"s_waitcnt lgkmcnt({9-k})")
            a(f"v_pk_add_f32 {vr(keep+4*k,2)}, {vr(keep+4*k,2)}, {vr(B0+4*k,2)}")
            a(f"v_pk_add_f32 {vr(keep+4*k+2,2)}, {vr(keep+4*k+2,2)}, {vr(B0+4*k+2,2)}")
        if hi: spin_lds(a, vR0, 12, vC, sleep=0)
        for k in range(10):
            q = k + 10*hi
            a(f"ds_write_b128 v{vA3}, {vr(keep+4*k,4)} offset:{(q%4)*16*ROWP + (q//4)*64}")
        if not hi: a("s_branch LF_r2")
    a.label("LF_r2")
    a(f"v_add_u32 v{TP+8}, s{sKO}, v{vL16}")
    a(f"ds_read_b128 {vr(XR,4)}, v{TP+8}")
    a(f"ds_read_b128 {vr(XR+4,4)}, v{TP+8} offset:4096")
    item_addr(0, XO, LO, TP)
    a("s_waitcnt lgkmcnt(0)")
    mark(13)
    item_addr(1, XO+1, LO+1, TP)
    spin_lds(a, vAL, 13, vC, sleep=0)
    stamp(a, 4)
    def rd(r):
        b = AC + 32 * r
        for w in range(4):
            a(f"ds_read_b128 {vr(b+8*w,4)}, v{LO+r} offset:{w*PART}")
            a(f"ds_read_b128 {vr(b+8*w+4,4)}, v{LO+r} offset:{w*PART+16}")
    def fin(r):
        b = AC + 32 * r
        for i in range(4):
            a(f"v_lshlrev_b32 v{TP+2*i}, 16, v{XR+4*r+i}")
            a(f"v_and_b32 v{TP+1+2*i}, 0xffff0000, v{XR+4*r+i}")
        a("s_waitcnt lgkmcnt(0)")
        for i in range(4):
            a(f"v_pk_add_f32 {vr(b+2*i,2)}, {vr(b+2*i,2)}, {vr(b+8+2*i,2)}")
            a(f"v_pk_add_f32 {vr(b+16+2*i,2)}, {vr(b+16+2*i,2)}, {vr(b+24+2*i,2)}")
        for i in range(4):
            a(f"v_pk_add_f32 {vr(b+2*i,2)}, {vr(b+2*i,2)}, {vr(TP+2*i,2)}")
        for i in range(4):
            a(f"v_pk_add_f32 {vr(b+2*i,2)}, {vr(b+2*i,2)}, {vr(b+16+2*i,2)}")
        for i in range(4):
            a(f"v_cvt_pk_bf16_f32 v{b+8+i}, v{b+2*i}, v{b+2*i+1}")
        a(f"buffer_store_dwordx4 {vr(b+8,4)}, v{XO+r}, {sr(sOs,4)}, s{sOO} offen")
    rd(0)
    fin(0)
    a(f"s_cmp_lg_u32 s{sKT}, 0")
    a("s_cbranch_scc1 LF_fin")
    rd(1)
    fin(1)
    a("s_branch LF_fin")

zX0, zX1, zA, zB, zC, zPF, zZERO = 8, 9, 10, 11, 12, 13, 14
zNL = 160
GA = ((32, 48), (64, 80))
FB = (96, 112)
ZL = 144
vWa, vZa = 8, 14
vS0, vS1g = 4, 5
vFA, vFW, vONE, vFL = 6, 7, 20, 21
PFD = 4

def z_issue(a):
    a(f"s_add_u32 s{sT0}, s{sXD}, s{sSLOT}")
    a(f"s_add_u32 s{sT1}, s{sWD}, s{sSLOT}")
    a(f"s_mov_b32 m0, s{sT0}")
    a(f"s_add_u32 s{sT2}, s{sXO}, {16*1280}")
    a(f"buffer_load_dwordx4 v{zX0}, {sr(sX,4)}, s{sXO} offen lds")
    a(f"s_add_u32 m0, s{sT0}, 1024")
    a(f"s_add_u32 s{sSLOT}, s{sSLOT}, {SLOT}")
    a(f"buffer_load_dwordx4 v{zX1}, {sr(sX,4)}, s{sXO} offen lds")
    a(f"s_add_u32 m0, s{sT0}, 2048")
    a(f"s_add_u32 s{sXO}, s{sXO}, 128")
    a(f"buffer_load_dwordx4 v{zX0}, {sr(sX,4)}, s{sT2} offen lds")
    a(f"s_add_u32 m0, s{sT0}, 3072")
    a(f"s_cmp_eq_u32 s{sSLOT}, {4*SLOT}")
    a(f"buffer_load_dwordx4 v{zX1}, {sr(sX,4)}, s{sT2} offen lds")
    a(f"s_cselect_b32 s{sSLOT}, 0, s{sSLOT}")
    a(f"s_mov_b32 m0, s{sT1}")
    a("s_nop 0")
    a(f"buffer_load_dwordx4 v{zA}, {sr(sA,4)}, s{sAO} offen lds")
    a(f"s_add_u32 m0, s{sT1}, {4096-64}")
    a("s_nop 0")
    a(f"buffer_load_dwordx4 v{zA}, {sr(sA,4)}, s{sAO} offen offset:64 lds")
    a(f"s_add_u32 m0, s{sT1}, 8192")
    a(f"s_add_u32 s{sAO}, s{sAO}, s{sAS}")
    a(f"buffer_load_dwordx4 v{zB}, {sr(sB,4)}, s{sBO} offen lds")
    a(f"s_add_u32 m0, s{sT1}, {12288-64}")
    a("s_nop 0")
    a(f"buffer_load_dwordx4 v{zB}, {sr(sB,4)}, s{sBO} offen offset:64 lds")
    a(f"s_add_u32 m0, s{sT1}, 16384")
    a(f"s_add_u32 s{sBO}, s{sBO}, s{sBS}")
    a(f"buffer_load_dwordx4 v{zC}, {sr(sC,4)}, s{sCO} offen lds")
    a(f"s_add_u32 s{sCO}, s{sCO}, s{sCS_}")
    a(f"s_add_u32 s{sROT}, s{sROT}, 1")
    a(f"s_cmp_lg_u32 s{sROT}, 10")
    a("s_cbranch_scc1 LF_nowrap")
    a(f"s_sub_u32 s{sXO}, s{sXO}, 1280")
    for o, st in ((sAO, sAS), (sBO, sBS), (sCO, sCS_)):
        a(f"s_mul_i32 s{sT0}, s{st}, 10")
        a(f"s_sub_u32 s{o}, s{o}, s{sT0}")
    a.label("LF_nowrap")

def gen_loader(a):
    a(f"v_lshrrev_b32 v22, 3, v{vLANE}")
    a(f"v_mul_u32_u24 v22, 1280, v22")
    a(f"v_lshrrev_b32 v23, 4, v{vLANE}")
    a(f"v_xor_b32 v23, v23, v{vLANE}")
    a(f"v_and_b32 v23, 7, v23")
    a(f"v_lshl_add_u32 v{zX0}, v23, 4, v22")
    a(f"v_xor_b32 v23, 4, v23")
    a(f"v_lshl_add_u32 v{zX1}, v23, 4, v22")
    a(f"v_add_u32 v{zX1}, {8*1280}, v{zX1}")
    a(f"v_lshrrev_b32 v24, 2, v{vLANE}")
    a(f"s_lshl_b32 s{sT0}, s{sW4}, 4")
    a(f"v_add_u32 v24, s{sT0}, v24")
    a(f"v_and_b32 v25, 0x30, v{vL16}")
    a(f"s_lshl_b32 s{sXD}, s{sW4}, 12")
    a(f"s_lshl_b32 s{sWD}, s{sW4}, 10")
    a(f"s_add_u32 s{sWD}, s{sWD}, 16384")
    a(f"s_lshl2_add_u32 s{sTG}, s{sRB}, s{sW4}")
    a(f"s_mul_i32 s{sXO}, s{sTG}, {32*1280}")
    a(f"s_mov_b32 s{sSLOT}, 0")
    def pitch_col(cmp, colA, colB, sO, sStep, vdst):
        a(f"s_add_i32 s{sT0}, s{sG}, {colA}")
        a(f"s_add_i32 s{sT1}, s{sG}, {colB}")
        a(cmp)
        a(f"s_cselect_b32 s{sT2}, 27, 10")
        a(f"s_cselect_b32 s{sO}, s{sT0}, s{sT1}")
        a(f"s_lshl_b32 s{sT2}, s{sT2}, 7")
        a(f"s_lshl_b32 s{sStep}, s{sT2}, 6")
        a(f"s_lshl_b32 s{sO}, s{sO}, 7")
        a(f"v_mad_u32_u24 v{vdst}, v24, s{sT2}, v25")
    a(f"s_cmp_le_u32 s{sG}, 2")
    a(f"s_cselect_b32 s{sT1}, 2, -14")
    a(f"s_cselect_b32 s{sBO}, 13, -3")
    a(f"s_sub_u32 s{sT3}, s{sG}, 3")
    a(f"s_cmp_lt_u32 s{sT3}, 11")
    a(f"s_cselect_b32 s{sAO}, 13, s{sT1}")
    a(f"s_cselect_b32 s{sT2}, 27, 10")
    a(f"s_add_i32 s{sAO}, s{sAO}, s{sG}")
    a(f"s_add_i32 s{sBO}, s{sBO}, s{sG}")
    a(f"s_lshl_b32 s{sAO}, s{sAO}, 7")
    a(f"s_lshl_b32 s{sBO}, s{sBO}, 7")
    a(f"s_lshl_b32 s{sT2}, s{sT2}, 7")
    a(f"s_lshl_b32 s{sAS}, s{sT2}, 6")
    a(f"v_mad_u32_u24 v{zA}, v24, s{sT2}, v25")
    a(f"s_mul_i32 s{sA+2}, s{sT2}, 640")
    a(f"s_movk_i32 s{sT2}, 3456")
    a(f"s_mov_b32 s{sBS}, {3456*64}")
    a(f"v_mad_u32_u24 v{zB}, v24, s{sT2}, v25")
    a(f"s_mov_b32 s{sB+2}, {640*3456}")
    a(f"s_add_u32 s{sT0}, s{sG}, 8")
    a(f"s_add_u32 s{sT1}, s{sG}, 4")
    a(f"s_cmp_lt_u32 s{sG}, 10")
    a(f"s_cselect_b32 s{sT0}, s{sT0}, s{sT1}")
    a(f"s_lshl_b32 s{sT0}, s{sT0}, 6")
    a(f"s_movk_i32 s{sT1}, 1280")
    a(f"s_cmp_le_u32 s{sG}, 1")
    a(f"s_cselect_b32 s{sT2}, 40, s{sT1}")
    a(f"s_cselect_b32 s{sCO}, 0, s{sT0}")
    a(f"s_mul_i32 s{sC+2}, s{sT2}, 640")
    a(f"s_sub_u32 s{sT1}, s{sG}, 10")
    a(f"s_cmp_lt_u32 s{sT1}, 4")
    a(f"s_cselect_b32 s{sC+2}, 0, s{sC+2}")
    a(f"s_lshl_b32 s{sCS_}, s{sT2}, 6")
    a(f"v_mad_u32_u24 v{zC}, v24, s{sT2}, v25")
    RG, RR = (int(v) for v in os.environ.get("ROT1", "5,10").split(","))
    a(f"s_and_b32 s{sT0}, s{sG}, 7")
    a(f"s_mul_i32 s{sT0}, s{sT0}, {RG}")
    a(f"s_and_b32 s{sT1}, s{sRB}, 3")
    a(f"s_mul_i32 s{sT1}, s{sT1}, {RR}")
    a(f"s_add_u32 s{sT0}, s{sT0}, s{sT1}")
    a(f"s_lshr_b32 s{sROT}, s{sT0}, 2")
    a(f"s_sub_u32 s{sT0}, s{sROT}, 10")
    a(f"s_cselect_b32 s{sROT}, s{sROT}, s{sT0}")
    a(f"s_lshl_b32 s{sT0}, s{sROT}, 7")
    a(f"s_add_u32 s{sXO}, s{sXO}, s{sT0}")
    for o, st in ((sAO, sAS), (sBO, sBS), (sCO, sCS_)):
        a(f"s_mul_i32 s{sT0}, s{st}, s{sROT}")
        a(f"s_add_u32 s{o}, s{o}, s{sT0}")
    for r in (sX+3, sA+3, sB+3, sC+3, sW+3):
        a(f"s_mov_b32 s{r}, 0x20000")
    a(f"s_mov_b32 s{sX+2}, {2048*1280}")
    a(f"s_mov_b32 s{sW+2}, {WS_END}")
    a("s_waitcnt lgkmcnt(0)")
    a(f"s_mov_b64 {sr(sX,2)}, s[4:5]")
    a(f"s_mov_b64 {sr(sW,2)}, s[18:19]")
    a(f"s_cmp_lt_u32 s{sT3}, 11")
    a(f"s_cselect_b64 {sr(sA,2)}, s[12:13], s[6:7]")
    a(f"s_mov_b64 {sr(sB,2)}, s[12:13]")
    a(f"s_cmp_eq_u32 s{sG}, 0")
    a(f"s_cselect_b64 {sr(sC,2)}, s[8:9], s[10:11]")
    a(f"s_cmp_le_u32 s{sG}, 1")
    a(f"s_cselect_b64 {sr(sC,2)}, {sr(sC,2)}, s[6:7]")
    a(f"s_mov_b32 s{sLOOP}, 0")
    a.label("LF_zloop")
    z_issue(a)
    a(f"s_add_u32 s{sLOOP}, s{sLOOP}, 1")
    NPRO = int(os.environ.get("NPRO", "2"))
    a(f"s_cmp_eq_u32 s{sLOOP}, {NPRO}")
    a("s_cbranch_scc1 LF_zfirst")
    a(f"s_cmp_lt_u32 s{sLOOP}, 4")
    a("s_cbranch_scc1 LF_zloop")
    a(f"s_cmp_eq_u32 s{sLOOP}, 10")
    a("s_cbranch_scc1 LF_ztail")
    a("s_waitcnt vmcnt(18)")
    a("s_barrier")
    a("s_branch LF_zloop")
    a.label("LF_zfirst")
    a(f"s_waitcnt vmcnt({9*(NPRO-1)})")
    a("s_barrier")
    stamp(a, 1)
    a("s_branch LF_zloop")

def g_dma_groups(slot, part="wz"):
    b = slot * GSLOT
    g = []
    if "w" in part:
        g += [[f"s_add_u32 m0, s{sSPD}, {b}", f"s_add_u32 s{sT0}, s{sSPO}, 65536",
               f"buffer_load_dwordx4 v{vS0}, {sr(sSP,4)}, s{sSPO} offen lds"],
              [f"s_add_u32 m0, s{sSPD}, {b+1024}", f"s_add_u32 s{sT1}, s{sSPO}, 128",
               f"buffer_load_dwordx4 v{vS1g}, {sr(sSP,4)}, s{sSPO} offen lds"],
              [f"s_add_u32 m0, s{sSPD}, {b+2048}", f"s_and_b32 s{sT1}, s{sT1}, 0xfff",
               f"buffer_load_dwordx4 v{vS0}, {sr(sSP,4)}, s{sT0} offen lds"],
              [f"s_add_u32 m0, s{sSPD}, {b+3072}", f"s_or_b32 s{sSPO}, s{sSPB}, s{sT1}",
               f"buffer_load_dwordx4 v{vS1g}, {sr(sSP,4)}, s{sT0} offen lds"]]
    if "z" in part:
        g += [[f"s_add_u32 m0, s{sZD}, {b+16384}", f"s_add_u32 s{sT1}, s{sZO}, 4096",
               f"buffer_load_dwordx4 v{vL16}, {sr(sW,4)}, s{sZO} offen {RD} lds"],
              [f"s_and_b32 s{sT1}, s{sT1}, 0x1ffff",
               f"buffer_load_dwordx4 v{vL16}, {sr(sW,4)}, s{sZO} offen offset:1024 {RD} lds",
               f"s_or_b32 s{sZO}, s{sZB}, s{sT1}"]]
    return g
def g_dma(a, slot, part="wz"):
    for g in g_dma_groups(slot, part):
        for x in g: a(x)

def arrive(a): a(f"ds_add_u32 v{vFW}, v{vONE}")
def flag_read(a): a(f"ds_read_b32 v{vFL}, v{vFA}")
def flag_check(a, sleep=False, low=True):
    L = uid("sb")
    if low: a("s_setprio 3")
    a("s_waitcnt lgkmcnt(0)")
    a(f"v_cmp_gt_u32 vcc, s{sNEED}, v{vFL}")
    a("s_nop 0")
    a(f"s_cbranch_vccz {L}d")
    a.label(L)
    if sleep: a("s_sleep 2")
    flag_read(a)
    a("s_waitcnt lgkmcnt(0)")
    a(f"v_cmp_gt_u32 vcc, s{sNEED}, v{vFL}")
    a("s_nop 0")
    a(f"s_cbranch_vccnz {L}")
    a.label(L + "d")
    if low: a(f"s_setprio {os.environ.get('GLOW', '0')}")

def g_reads(i, ks):
    slot = i % NSL
    st, so = slot // 2, (slot % 2) * GSLOT
    f = FB[ks]
    return [f"ds_read_b128 {vr(f,4)}, v{vWa+2*st+ks} offset:{so}",
            f"ds_read_b128 {vr(f+8,4)}, v{vZa+2*st} offset:{so + ks*1024}",
            f"ds_read_b128 {vr(f+4,4)}, v{vWa+2*st+ks} offset:{so + 4096}",
            f"ds_read_b128 {vr(f+12,4)}, v{vZa+2*st+1} offset:{so + ks*1024}"]

def g_step(a, i, issue, wait, last=False):
    def M(ks, u, v):
        f = FB[ks]
        a(mf16(GA[u][v], f+8+4*v, f+4*u, GA[u][v]))
    D = g_dma_groups((i + PFD) % NSL) if issue else [[]] * 6
    def dma(k):
        for x in D[k]: a(x)
    r1 = g_reads(i, 1)
    r0 = g_reads(i + 1, 0)
    a("s_waitcnt lgkmcnt(2)")
    M(0, 0, 0)
    a(r1[0]); a(r1[1])
    a("s_waitcnt lgkmcnt(3)")
    M(0, 1, 0)
    a(r1[2]); a(r1[3])
    a("s_waitcnt lgkmcnt(4)")
    M(0, 0, 1)
    dma(0)
    flag_read(a)
    M(0, 1, 1)
    dma(1)
    a(f"s_add_u32 s{sNEED}, s{sNEED}, 1")
    flag_check(a)
    M(1, 0, 0)
    a(f"s_waitcnt vmcnt({wait})")
    arrive(a)
    if not last: a(r0[0]); a(r0[1])
    M(1, 1, 0)
    if not last: a(r0[2]); a(r0[3])
    dma(2)
    M(1, 0, 1)
    dma(3); dma(4)
    M(1, 1, 1)
    dma(5)

def gen_gemm(a):
    gw = sW4
    NR, NS = 128, 96
    a.label("LF_ztail")
    a(f"v_mov_b32 v{zZERO}, 0")
    a(f"v_lshlrev_b32 v{zPF}, 7, v{vLANE}")
    a(f"s_cmp_lg_u32 s{sW4}, 0")
    a(f"s_cbranch_scc1 LF_nonl")
    a(f"global_load_dwordx4 {vr(zNL,4)}, v{zZERO}, s[16:17] sc0 sc1")
    a.label("LF_nonl")
    a("s_load_dwordx4 s[8:11], s[0:1], 56")
    a("s_load_dwordx2 s[4:5], s[0:1], 32")
    a("s_load_dwordx2 s[6:7], s[0:1], 72")
    a("s_waitcnt vmcnt(18)")
    a("s_barrier")
    a(f"s_lshr_b32 s{sT0}, s{sXC}, 1")
    a(f"s_lshl_b32 s{sT0}, s{sT0}, 7")
    a(f"s_lshl2_add_u32 s{sT0}, s{sJ}, s{sT0}")
    a(f"s_add_u32 s{sT0}, s{sT0}, s{sW4}")
    a(f"s_lshl_b32 s{sT1}, s{sT0}, 14")
    a(f"s_and_b32 s{sT0}, s{sXC}, 1")
    a(f"s_lshl_b32 s{sT0}, s{sT0}, 13")
    a(f"s_add_u32 s{sT1}, s{sT1}, s{sT0}")
    a(f"s_xor_b32 s{sT0}, s{sT1}, 8192")
    a("s_waitcnt lgkmcnt(0)")
    srd(a, sSP, 8, 2048*4096)
    srd(a, sBI, 10, 4096)
    NT = int(os.environ.get("NTOUCH", "2"))
    a(f"buffer_load_dword v22, v{zPF}, {sr(sSP,4)}, s{sT1} offen")
    if NT == 2: a(f"buffer_load_dword v22, v{zPF}, {sr(sSP,4)}, s{sT0} offen")
    a(f"v_and_b32 v{vFA}, 3, v{vLANE}")
    a(f"v_lshlrev_b32 v{vFA}, 8, v{vFA}")
    a(f"v_add_u32 v{vFA}, {FL}, v{vFA}")
    a(f"v_and_b32 v31, 7, v{vLANE}")
    a(f"v_lshlrev_b32 v31, 8, v31")
    a(f"v_add_u32 v31, {FL + 1024}, v31")
    a(f"s_sub_u32 s{sCG}, s{sG}, 3")
    a(f"s_cmp_eq_u32 s{sG}, 0")
    a(f"s_cselect_b32 s{sCG}, 13, s{sCG}")
    a(f"v_and_b32 v164, 31, v{vLANE}")
    a(f"v_lshrrev_b32 v165, 5, v{vLANE}")
    a(f"s_lshl_b32 s{sSPD}, s{gw}, 12")
    a(f"s_add_u32 s{sT2}, s{sSPD}, {NSC}")
    a(f"v_lshlrev_b32 v24, 6, v164")
    a(f"v_lshl_add_u32 v24, v165, 3, v24")
    a(f"v_add_u32 v24, s{sT2}, v24")
    a(f"v_bfe_u32 v23, v{vLANE}, 2, 2")
    a(f"v_lshl_add_u32 v23, v165, 3, v23")
    a(f"v_lshlrev_b32 v23, 6, v23")
    a(f"v_bfe_u32 v167, v{vLANE}, 4, 1")
    a(f"v_lshl_add_u32 v23, v167, 5, v23")
    a(f"v_and_b32 v167, 3, v{vLANE}")
    a(f"v_lshl_add_u32 v23, v167, 3, v23")
    a(f"v_add_u32 v23, s{sT2}, v23")
    a(f"s_add_u32 s{sT2}, s{sSPD}, {ZP}")
    a(f"v_add_u32 v27, s{sT2}, v{vL16}")
    a(f"s_waitcnt vmcnt({9+NT})")
    a("s_barrier")
    a(f"s_lshl_b32 s{sZD}, s{gw}, 11")
    a(f"s_lshl_b32 s{sSPO}, s{sRB}, 19")
    a(f"s_lshl_b32 s{sT0}, s{gw}, 17")
    a(f"s_add_u32 s{sSPO}, s{sSPO}, s{sT0}")
    a(f"s_lshr_b32 s{sT2}, s{gw}, 1")
    a(f"s_lshl1_add_u32 s{sFB}, s{sCG}, s{sT2}")
    a(f"s_lshl_b32 s{sZB}, s{sFB}, 17")
    a(f"s_add_u32 s{sZB}, s{sZB}, {WS_Z2}")
    a(f"s_and_b32 s{sTH}, s{gw}, 1")
    a(f"s_lshl_b32 s{sT0}, s{sTH}, 11")
    a(f"s_add_u32 s{sZO}, s{sZB}, s{sT0}")
    assert WS_Z2 % 0x20000 == 0
    a(f"s_mov_b32 s{sSPB}, s{sSPO}")
    RC, RR = (int(v) for v in os.environ.get("ROT2", "9,32").split(","))
    a(f"s_mul_i32 s{sT0}, s{sCG}, {RC}")
    a(f"s_mul_i32 s{sT1}, s{sRB}, {RR}")
    a(f"s_add_u32 s{sT0}, s{sT0}, s{sT1}")
    a(f"s_bfe_u32 s{sT0}, s{sT0}, 0x50002")
    a(f"s_lshl_b32 s{sT1}, s{sT0}, 7")
    a(f"s_add_u32 s{sSPO}, s{sSPO}, s{sT1}")
    a(f"s_lshl_b32 s{sT1}, s{sT0}, 12")
    a(f"s_add_u32 s{sZO}, s{sZO}, s{sT1}")
    a(f"v_lshrrev_b32 v166, 3, v{vLANE}")
    a(f"v_lshlrev_b32 v166, 12, v166")
    a(f"v_lshrrev_b32 v167, 4, v{vLANE}")
    a(f"v_xor_b32 v167, v167, v{vLANE}")
    a(f"v_and_b32 v167, 7, v167")
    a(f"v_lshl_add_u32 v{vS0}, v167, 4, v166")
    a(f"v_xor_b32 v167, 4, v167")
    a(f"v_lshl_add_u32 v{vS1g}, v167, 4, v166")
    a(f"v_add_u32 v{vS1g}, {8*4096}, v{vS1g}")
    a(f"v_bfe_u32 v166, v164, 1, 3")
    a(f"v_xor_b32 v166, v166, v165")
    a(f"s_lshl_b32 s{sT1}, s{sT2}, 2")
    a(f"v_xor_b32 v166, s{sT1}, v166")
    a(f"v_lshlrev_b32 v166, 4, v166")
    a(f"v_lshl_add_u32 v166, v164, 7, v166")
    a(f"s_lshl_b32 s{sT0}, s{sTH}, 13")
    a(f"v_add_u32 v{vWa}, s{sT0}, v166")
    a(f"v_xor_b32 v{vWa+1}, 32, v{vWa}")
    a(f"s_waitcnt vmcnt({NT})")
    a("s_barrier")
    a(f"s_cmp_lg_u32 s{sW4}, 0")
    a("s_cbranch_scc1 LF_nnw")
    a(f"s_mov_b32 s{sT1}, 0x20000")
    a.label("LF_npoll")
    a(f"v_cmp_eq_u32 vcc, 1, v{zNL+2}")
    a("s_nop 0")
    a("s_cbranch_vccnz LF_ngot")
    a(f"global_load_dwordx4 {vr(zNL,4)}, v{zZERO}, s[16:17] sc0 sc1")
    a("s_waitcnt vmcnt(0)")
    a(f"s_sub_u32 s{sT1}, s{sT1}, 1")
    a("s_cbranch_scc0 LF_npoll")
    a.label("LF_ngot")
    a(f"v_mov_b32 v25, {NON}")
    a(f"ds_write_b64 v25, {vr(zNL,2)}")
    a("s_waitcnt lgkmcnt(0)")
    a.label("LF_nnw")
    a(f"s_mul_i32 s{sT0}, s{sT2}, {4096+2048}")
    a(f"s_add_u32 s{sT0}, s{sT0}, 16384")
    a(f"v_add_u32 v{vZa}, s{sT0}, v{vL16}")
    a(f"v_xor_b32 v{vZa+1}, 4096, v{vZa}")
    for st in (1, 2):
        for k in range(2):
            a(f"v_add_u32 v{vWa+2*st+k}, {2*GSLOT*st}, v{vWa+k}")
            a(f"v_add_u32 v{vZa+2*st+k}, {2*GSLOT*st}, v{vZa+k}")
    a(f"v_mov_b32 v{vONE}, 1")
    a(f"v_mov_b32 v26, 0xffff0000")
    a(f"v_mov_b32 v25, {NON}")
    a("s_barrier")
    a(f"ds_read_b64 {vr(zNL,2)}, v25")
    a("s_barrier")
    stamp(a, 3)
    NW0 = 2
    a(f"s_cmp_ge_u32 s{sCG}, 14")
    a("s_cbranch_scc1 LF_now")
    a(f"s_lshl_b32 s{sT0}, s{sRB}, 8")
    a(f"s_lshl_b32 s{sT1}, s{sTH}, 7")
    a(f"s_add_u32 s{sT0}, s{sT0}, s{sT1}")
    a(f"v_lshlrev_b32 v166, 1, v164")
    a(f"buffer_load_ushort v28, v166, {sr(sBI,4)}, s{sT0} offen")
    a(f"buffer_load_ushort v29, v166, {sr(sBI,4)}, s{sT0} offen offset:64")
    for c in range(NW0): g_dma(a, c, "w")
    a.label("LF_now")
    for r in range(16):
        a(f"v_mov_b32 v{GA[0][1]+r}, 0")
        a(f"v_mov_b32 v{GA[1][1]+r}, 0")
    a(f"s_cmp_le_u32 s{sG}, 2")
    a(f"s_cselect_b32 s{sT0}, 2, 1")
    spin_lds(a, 31, f"s{sT0}", 30, sleep=2)
    stamp(a, 4)
    a(f"s_cmp_ge_u32 s{sG}, 14")
    a("s_cbranch_scc1 LF_nonorm")
    UN = GA[0][0]
    UN2 = GA[1][0]
    for q in range(4):
        a(f"ds_read_b128 {vr(NR+4*q,4)}, v27 offset:{1024*q}")
    a(f"s_lshl_b32 s{sT3}, s{sTG}, 13")
    a(f"s_add_u32 s{sT3}, s{sT3}, {WS_ST}")
    a(f"s_add_u32 s{sT2}, s{sT3}, 4096")
    a(f"s_cmp_eq_u32 s{sG}, 0")
    a(f"s_cselect_b32 s{sT0}, 0, -1")
    a(f"s_cselect_b32 s{sT1}, 0, 0xffff0000")
    for r in range(4): a(f"v_mov_b32 v{124+r}, 0")
    a("s_waitcnt lgkmcnt(2)")
    for k in range(8): a(f"v_and_b32 v{NR+k}, s{sT0}, v{NR+k}")
    for k in range(16):
        if k == 8: a("s_waitcnt lgkmcnt(0)")
        un = (UN, UN2)[k >> 3] + 2*(k & 7)
        a(f"v_lshlrev_b32 v{un}, 16, v{NR+k}")
        a(f"v_and_b32 v{un+1}, v26, v{NR+k}")
        a(f"v_pk_add_f32 v[124:125], v[124:125], {vr(un,2)}")
        a(f"v_pk_fma_f32 v[126:127], {vr(un,2)}, {vr(un,2)}, v[126:127]")
    a(f"v_add_f32 v124, v124, v125")
    a(f"v_add_f32 v126, v126, v127")
    a(f"s_lshl_b32 s{sT1}, s{sG}, 9")
    a(f"s_add_u32 s{sT1}, s{sT1}, s{sT3}")
    a(f"v_permlane32_swap_b32 v124, v126")
    a("s_nop 0")
    a(f"v_add_f32 v124, v124, v126")
    a(f"v_mov_b32 v125, v124")
    a(f"v_mov_b32 v126, v{zNL}")
    a(f"v_mov_b32 v127, v{zNL+1}")
    a(f"v_permlane32_swap_b32 v124, v125")
    a("s_mov_b32 exec_hi, 0")
    a(f"buffer_store_dwordx4 v[124:127], v{vL16}, {sr(sW,4)}, s{sT1} offen {WT}")
    a("s_mov_b32 exec_hi, -1")
    if 'stw' in EXP: spin_lds(a, 31, 2, 30, sleep=2)
    a("s_waitcnt vmcnt(0)")
    a(f"s_sleep {int(os.environ.get('STD', '8'))}")
    poll_tags(a, [(f"buffer_load_dwordx4 {vr(NS+4*i,4)}, v{vL16}, {sr(sW,4)}, s{sT3 if i < 4 else sT2} offen offset:{1024*(i%4)} sc0 sc1", NS+4*i+2) for i in range(7)], zNL, sT0, sleep=SL2)
    stamp(a, 9)
    for i in (1, 2, 3):
        a(f"v_add_f32 v{NS+4*i}, v{NS+4*i}, v{NS+4*i+12}")
        a(f"v_add_f32 v{NS+4*i+1}, v{NS+4*i+1}, v{NS+4*i+13}")
    for i in (1, 2, 3):
        a(f"v_add_f32 v{NS}, v{NS}, v{NS+4*i}")
        a(f"v_add_f32 v{NS+1}, v{NS+1}, v{NS+4*i+1}")
    a(f"s_lshl_b32 s{sT1}, s{sG}, 1")
    a(f"s_sub_u32 s{sT0}, s{sT1}, 1")
    a(f"v_permlane32_swap_b32 v{NS}, v{NS+1}")
    a(f"s_cselect_b32 s{sT0}, 27, s{sT0}")
    a(f"v_add_f32 v{NS}, v{NS}, v{NS+1}")
    a(f"v_mul_f32 v{NS}, {hx(1.0/864)}, v{NS}")
    a(f"v_mov_b32 v{NS+1}, v{NS}")
    a(f"s_lshl_b32 s{sT2}, s{sT0}, 9")
    a(f"s_lshl_b32 s{sT3}, s{sT1}, 9")
    a(f"v_permlane32_swap_b32 v{NS}, v{NS+1}")
    a(f"s_lshl_b32 s{sT0}, s{sT0}, 17")
    a(f"v_fma_f32 v{NS+1}, -v{NS}, v{NS}, v{NS+1}")
    a(f"v_max_f32 v{NS+1}, 0, v{NS+1}")
    a(f"v_add_f32 v{NS+1}, {hx(1e-5)}, v{NS+1}")
    a(f"v_rsq_f32 v{NS+1}, v{NS+1}")
    a(f"s_lshl_b32 s{sT1}, s{sT1}, 17")
    a(f"v_mul_f32 v{NS}, -v{NS}, v{NS+1}")
    a(f"s_lshl_b32 s{sLOOP}, s{sTG}, 11")
    a(f"s_add_u32 s{sLOOP}, s{sLOOP}, {WS_Z2}")
    a(f"s_add_u32 s{sT0}, s{sT0}, s{sLOOP}")
    a(f"s_add_u32 s{sT1}, s{sT1}, s{sLOOP}")
    a(f"s_lshl3_add_u32 s{sLOOP}, s{sTG}, {F_Z2}")
    a(f"s_add_u32 s{sT2}, s{sT2}, s{sLOOP}")
    a(f"s_add_u32 s{sT3}, s{sT3}, s{sLOOP}")
    for q in range(4):
        for k in range(4):
            un = (UN, UN2)[q >> 1] + 2*(4*(q & 1) + k)
            a(f"v_fma_f32 v{un}, v{un}, v{NS+1}, v{NS}")
            a(f"v_fma_f32 v{un+1}, v{un+1}, v{NS+1}, v{NS}")
            a(f"v_cvt_pk_bf16_f32 v{NR+4*q+k}, v{un}, v{un+1}")
        for k in range(2):
            a(f"ds_write_b64 v24, {vr(NR+4*q+2*k,2)} offset:{(q>>1)*2048 + (q&1)*32 + 16*k}")
    a("s_waitcnt lgkmcnt(0)")
    for q in range(4):
        for k in range(2):
            a(f"ds_read_b64_tr_b16 {vr(NR+4*q+2*k,2)}, v23 offset:{q*1024 + k*256}")
    for q in range(4):
        a(f"s_waitcnt lgkmcnt({6-2*q})")
        a(f"buffer_store_dwordx4 {vr(NR+4*q,4)}, v{vL16}, {sr(sW,4)}, s{(sT0, sT1)[q>>1]} offen offset:{1024*(q&1)} {WT}")
    put_flags(a, sT2, zNL, 166)
    put_flags(a, sT3, zNL, 166, wait=False)
    if 'zw' in EXP: a("s_waitcnt vmcnt(0)")
    a.label("LF_nonorm")
    stamp(a, 10)
    a(f"s_cmp_ge_u32 s{sCG}, 14")
    a("s_cbranch_scc1 LF_idle")
    a(f"s_lshl_b32 s{sTG}, s{sRB}, 2")
    a(f"s_lshl1_add_u32 s{sTG}, s{sTH}, s{sTG}")
    spin_lds(a, 31, 2, 30, sleep=2)
    a(f"s_lshl_b32 s{sT0}, s{sTH}, 13")
    a(f"s_lshr_b32 s{sT1}, s{gw}, 1")
    a(f"s_lshl_b32 s{sT1}, s{sT1}, 11")
    a(f"s_add_u32 s{sT0}, s{sT0}, s{sT1}")
    a(f"s_add_u32 s{sT0}, s{sT0}, {Z1P}")
    a(f"v_add_u32 v30, s{sT0}, v{vL16}")
    for q in range(4):
        a(f"ds_read_b128 {vr(ZL+4*q,4)}, v30 offset:{(q>>1)*4096 + (q&1)*1024}")
    a("s_waitcnt vmcnt(2) lgkmcnt(0)")
    a(f"v_lshlrev_b32 v28, 16, v28")
    a(f"v_lshlrev_b32 v29, 16, v29")
    for r in range(16):
        a(f"v_mov_b32 v{GA[0][0]+r}, v28")
        a(f"v_mov_b32 v{GA[1][0]+r}, v29")
    a(f"s_cmp_lg_u32 s{gw}, 0")
    a("s_cbranch_scc1 LF_gnp")
    a(f"s_lshl_b32 s{sT1}, s{sCG}, 10")
    a(f"s_add_u32 s{sT1}, s{sT1}, {F_Z2}")
    poll_tags(a, [(f"buffer_load_dwordx4 {vr(NS,4)}, v{vL16}, {sr(sW,4)}, s{sT1} offen {PL}", (NS, NS+2))], zNL, sT0, sleep=SL3, adv=(sT1,))
    a.label("LF_gnp")
    stamp(a, 11)
    arrive(a); flag_read(a)
    a(f"s_mov_b32 s{sNEED}, 1")
    flag_check(a, sleep=True, low=False)
    for c in range(PFD): g_dma(a, c, "z" if c < NW0 else "wz")
    spin_lds(a, 31, 5, 30, sleep=2)
    a(f"s_waitcnt vmcnt({6*(PFD-2)})")
    arrive(a); flag_read(a)
    a(f"s_mov_b32 s{sNEED}, 2")
    flag_check(a)
    a(f"s_mov_b32 s{sNEED}, 1")
    for x in g_reads(0, 0): a(x)
    stamp(a, 5); stamp_rt(a, 12)
    a(f"s_mov_b32 s{sLOOP}, 4")
    a.raw(".p2align 6")
    a.label("LF_gloop")
    st = len(a.lines)
    WS = 6 * (PFD - 3) + 2
    for i in range(NSL):
        g_step(a, i, True, WS)
    a(f"s_sub_u32 s{sLOOP}, s{sLOOP}, 1")
    a(f"s_cmp_lg_u32 s{sLOOP}, 0")
    a("s_cbranch_scc1 LF_gloop")
    for p in check_linear(a.lines[st:] + a.lines[st:], "kf gemm loop x2"): print("HAZARD", p)
    if 'wt' in EXP:
        a("s_setprio 3")
        a(f"s_mov_b32 s{sT2}, {F_W}")
        a(f"buffer_load_dwordx4 {vr(128,4)}, v{vL16}, {sr(sW,4)}, s{sT2} offen {PL}")
    for i in range(24, 32 - PFD):
        g_step(a, i, True, WS)
        if 'wt' in EXP and i == 25:
            a("s_setprio 3")
            a(f"v_cmp_ne_u64 vcc, v[128:129], {vr(zNL,2)}")
            a(f"v_cmp_ne_u64 {sr(sM,2)}, v[130:131], {vr(zNL,2)}")
            a(f"v_lshlrev_b32 v132, 7, v{vLANE}")
            a(f"s_or_b64 vcc, vcc, {sr(sM,2)}")
            a("s_cbranch_vccnz LF_nt")
            a(f"s_lshl2_add_u32 s{sT0}, s{sJ}, s{gw}")
            a(f"s_lshl_b32 s{sT0}, s{sT0}, 14")
            a(f"s_add_u32 s{sT0}, s{sT0}, {WS_WT}")
            a(f"buffer_load_dword v133, v132, {sr(sW,4)}, s{sT0} offen {RD}")
            a(f"s_add_u32 s{sT0}, s{sT0}, 8192")
            a(f"buffer_load_dword v133, v132, {sr(sW,4)}, s{sT0} offen {RD}")
            a.label("LF_nt")
    for i in range(32 - PFD, 32):
        g_step(a, i, False, 6 * max(0, 31 - (i + 2)), last=(i == 31))
    stamp(a, 6); stamp_rt(a, 13)
    a("s_setprio 3")
    a(f"s_lshl_b32 s{sT0}, s{sTH}, 13")
    a(f"s_add_u32 s{sT1}, s{sT0}, {5*GSLOT}")
    a(f"s_cmp_lt_u32 s{gw}, 2")
    a(f"s_cselect_b32 s{sT2}, s{sT1}, s{sT0}")
    a(f"s_cselect_b32 s{sT0}, s{sT0}, s{sT1}")
    a(f"v_add_u32 v22, s{sT2}, v{vL16}")
    a(f"v_add_u32 v23, s{sT0}, v{vL16}")
    a("s_nop 4")
    for u in range(2):
        for k in range(4):
            a(f"ds_write_b128 v22, {vr(GA[u][1]+4*k,4)} offset:{u*4096 + k*1024}")
    a("s_waitcnt lgkmcnt(0)")
    arrive(a); flag_read(a)
    a(f"s_add_u32 s{sNEED}, s{sNEED}, 2")
    flag_check(a, low=False)
    a(f"s_cmp_ge_u32 s{sFB}, 27")
    a("s_cbranch_scc1 LF_gend")
    for u in range(2):
        for k in range(4):
            a(f"ds_read_b128 {vr(GA[u][1]+4*k,4)}, v23 offset:{u*4096 + k*1024}")
    a(f"s_mul_i32 s{sT0}, s{sTG}, {OH_TG}")
    a(f"s_lshl_b32 s{sT1}, s{sFB}, 11")
    a(f"s_add_u32 s{sT0}, s{sT0}, s{sT1}")
    a(f"s_add_u32 s{sT0}, s{sT0}, {WS_OH + 40960}")
    a("s_waitcnt vmcnt(0)")
    for u in range(2):
        G, H = GA[u]
        a(f"s_waitcnt lgkmcnt({4-4*u})")
        for k in range(8):
            z = ZL + 8*u + k
            a(f"v_add_f32 v{G+2*k}, v{G+2*k}, v{H+2*k}")
            a(f"v_add_f32 v{G+2*k+1}, v{G+2*k+1}, v{H+2*k+1}")
            a(f"v_lshlrev_b32 v24, 16, v{z}")
            a(f"v_and_b32 v25, v26, v{z}")
            a(f"v_mul_f32 v24, v24, v{G+2*k}")
            a(f"v_mul_f32 v25, v25, v{G+2*k+1}")
            a(f"v_cvt_pk_bf16_f32 v{z}, v24, v25")
        a(f"buffer_store_dwordx4 {vr(ZL+8*u,4)}, v{vL16}, {sr(sW,4)}, s{sT0} offen {WT if FULL else ''}")
        a(f"buffer_store_dwordx4 {vr(ZL+8*u+4,4)}, v{vL16}, {sr(sW,4)}, s{sT0} offen offset:1024 {WT if FULL else ''}")
        a(f"s_add_u32 s{sT0}, s{sT0}, {OH_TG}")
    if FULL:
        a(f"s_lshl_b32 s{sT1}, s{sTG}, 8")
        a(f"s_lshl3_add_u32 s{sT1}, s{sFB}, s{sT1}")
        a(f"s_add_u32 s{sT1}, s{sT1}, {F_H}")
        put_flags(a, sT1, zNL, 166, 1, 8, ncp=2)
    a.label("LF_gend")
    a(f"v_mov_b32 v{vONE}, 64")
    a(f"ds_write_b32 v{vFW}, v{vONE}")
    if FULL:
        a(f"s_cmp_ge_u32 s{gw}, 2")
        a("s_cbranch_scc1 LF_fin")
        a("s_setprio 1")
        spin_lds(a, vFA, 64, 30, sleep=2)
        a(f"s_lshr_b32 s{sT0}, s{sJ}, 3")
        a(f"s_lshl2_add_u32 s{sT1}, s{sXC}, s{sT0}")
        a(f"s_lshl_b32 s{sT1}, s{sT1}, 9")
        a(f"s_sub_u32 s{sT0}, s{sG}, 1")
        a(f"s_cmp_lt_u32 s{sT0}, 2")
        a(f"s_cselect_b32 s{sT0}, {CPS}, 0")
        a(f"s_cselect_b32 s{sT3}, 6, 5")
        a(f"s_add_u32 s{sT1}, s{sT1}, s{sT0}")
        a(f"s_cmp_eq_u32 s{gw}, 0")
        a(f"s_mov_b32 s{sT0}, {F_H}")
        a(f"s_cselect_b32 s{sT0}, s{sT0}, {F_O}")
        a(f"s_cselect_b32 s{sT2}, 208, -1")
        a(f"s_cselect_b32 s{sT3}, s{sT3}, 8")
        a(f"s_add_u32 s{sT1}, s{sT1}, s{sT0}")
        a(f"v_and_b32 v24, 0xf8, v{vL8}")
        a(f"v_min_u32 v24, s{sT2}, v24")
        a(f"v_and_b32 v25, 0x100, v{vL8}")
        a(f"v_or_b32 v24, v24, v25")
        spin_lds(a, 31, f"s{sT3}", 30, sleep=4)
        a(f"s_mov_b32 s{sT2}, {F_W}")
        poll_tags(a, [(f"buffer_load_dwordx4 v[32:35], v{vL16}, {sr(sW,4)}, s{sT2} offen {PL}", (32, 34))], zNL, sT0, sleep=16)
        a(f"s_sleep {int(os.environ.get('HD', '1'))}")
        poll_tags(a, [(f"buffer_load_dwordx2 v[26:27], v24, {sr(sW,4)}, s{sT1} offen {PL}", 26)], zNL, sT0, sleep=8)
        a(f"v_mov_b32 v{vONE}, 65")
        a(f"ds_write_b32 v{vFW}, v{vONE}")
    a("s_branch LF_fin")

    a.label("LF_idle")
    a(f"v_mov_b32 v{vONE}, 32")
    a(f"ds_write_b32 v{vFW}, v{vONE}")
    srd(a, sSP, 4, 640*1280)
    srd(a, sBI, 6, 864*1280)
    sUN, sKS = sSPO, sZO
    a(f"s_lshl1_add_u32 s{sUN}, s{sRB}, s{sG}")
    a(f"s_sub_u32 s{sUN}, s{sUN}, 1")
    a(f"s_lshl2_add_u32 s{sUN}, s{sUN}, s{gw}")
    a(f"v_lshrrev_b32 v16, 3, v{vLANE}")
    a(f"v_mul_u32_u24 v16, 1280, v16")
    a(f"v_and_b32 v17, 7, v{vLANE}")
    a(f"v_lshl_add_u32 v{vS0}, v17, 4, v16")
    a(f"v_bfe_u32 v16, v{vLANE}, 2, 2")
    a(f"v_and_b32 v17, 3, v{vLANE}")
    a(f"v_lshlrev_b32 v17, 3, v17")
    a(f"v_lshl_add_u32 v16, v16, 7, v17")
    a(f"v_add_u32 v16, s{sSPD}, v16")
    a(f"v_lshrrev_b32 v17, 4, v{vLANE}")
    a(f"v_lshl_add_u32 v8, v17, 10, v16")
    a(f"v_add_u32 v9, 512, v8")
    a(f"v_lshrrev_b32 v18, 1, v17")
    a(f"v_lshl_add_u32 v10, v18, 11, v16")
    a(f"v_and_b32 v18, 1, v17")
    a(f"v_lshl_add_u32 v10, v18, 9, v10")
    a(f"v_add_u32 v11, 1024, v10")
    a.label("LF_iloop")
    a(f"s_mul_i32 s{sKS}, s{sUN}, 6554")
    a(f"s_lshr_b32 s{sKS}, s{sKS}, 16")
    a(f"s_mul_i32 s{sT0}, s{sKS}, 10")
    a(f"s_sub_u32 s{sCG}, s{sUN}, s{sT0}")
    a(f"s_lshl_b32 s{sT1}, s{sCG}, 7")
    a(f"s_cmp_ge_u32 s{sKS}, 20")
    a("s_cbranch_scc1 LF_idh")
    a(f"s_mul_i32 s{sT0}, s{sKS}, {32*1280}")
    a(f"s_add_u32 s{sT0}, s{sT0}, s{sT1}")
    for k in range(4):
        a(f"s_add_u32 m0, s{sSPD}, {1024*k}")
        a("s_nop 0")
        a(f"buffer_load_dwordx4 v{vS0}, {sr(sSP,4)}, s{sT0} offen lds")
        a(f"s_add_u32 s{sT0}, s{sT0}, {8*1280}")
    a("s_branch LF_itr")
    a.label("LF_idh")
    a(f"s_sub_u32 s{sT0}, s{sKS}, 20")
    a(f"s_mul_i32 s{sT0}, s{sT0}, {32*1280}")
    a(f"s_add_u32 s{sT0}, s{sT0}, s{sT1}")
    for k in range(4):
        a(f"s_add_u32 m0, s{sSPD}, {1024*k}")
        a("s_nop 0")
        a(f"buffer_load_dwordx4 v{vS0}, {sr(sBI,4)}, s{sT0} offen lds")
        a(f"s_add_u32 s{sT0}, s{sT0}, {8*1280}")
    a.label("LF_itr")
    a(f"s_cmp_ge_u32 s{sKS}, 20")
    a(f"s_cselect_b64 vcc, -1, 0")
    a(f"v_cndmask_b32 v12, v8, v10, vcc")
    a(f"v_cndmask_b32 v13, v9, v11, vcc")
    a("s_waitcnt vmcnt(0)")
    for q in range(4):
        a(f"ds_read_b64_tr_b16 {vr(32+4*q,2)}, v12 offset:{32*q}")
        a(f"ds_read_b64_tr_b16 {vr(34+4*q,2)}, v13 offset:{32*q}")
    for q in range(4):
        a(f"s_lshl2_add_u32 s{sT0}, s{sCG}, {q}")
        a(f"s_mul_i32 s{sT1}, s{sT0}, 13108")
        a(f"s_lshr_b32 s{sT1}, s{sT1}, 16")
        a(f"s_mul_i32 s{sT2}, s{sT1}, {47*5 - 5}")
        a(f"s_add_u32 s{sT0}, s{sT0}, s{sT2}")
        a(f"s_mul_i32 s{sT2}, s{sKS}, 5")
        a(f"s_add_u32 s{sT0}, s{sT0}, s{sT2}")
        a(f"s_lshl_b32 s{sT0}, s{sT0}, 10")
        a(f"s_add_u32 s{sT0}, s{sT0}, {WS_WT}")
        a(f"s_waitcnt lgkmcnt({6-2*q})")
        a(f"buffer_store_dwordx4 {vr(32+4*q,4)}, v{vL16}, {sr(sW,4)}, s{sT0} offen {WT}")
    a(f"s_add_u32 s{sUN}, s{sUN}, 128")
    a(f"s_cmp_lt_u32 s{sUN}, 470")
    a("s_cbranch_scc1 LF_iloop")
    a(f"s_and_b32 s{sUN}, s{sUN}, 127")
    a(f"s_lshl3_add_u32 s{sT1}, s{sUN}, {F_W}")
    put_flags(a, sT1, zNL, 166, ncp=1)
    a("s_branch LF_gend")

def gen_kf(a):
    KN = NAME + "_kernel" if FULL else "kf_kernel"
    kernel_header(a, KN)
    a("s_cmp_ge_u32 s2, 256")
    a("s_cbranch_scc1 LF_end")
    stamp(a, 0); stamp_rt(a, 8)
    a("s_load_dwordx8 s[4:11], s[0:1], 0")
    a("s_load_dwordx2 s[12:13], s[0:1], 48")
    a("s_load_dwordx4 s[16:19], s[0:1], 88")
    a(f"v_and_b32 v{vLANE}, 63, v0")
    a("v_lshrrev_b32 v16, 6, v0")
    a(f"s_and_b32 s{sXC}, s2, 7")
    a(f"v_readfirstlane_b32 s{sWAVE}, v16")
    a(f"s_lshr_b32 s{sJ}, s2, 3")
    a(f"s_lshr_b32 s{sRB}, s{sXC}, 1")
    a(f"s_lshr_b32 s{sT2}, s{sJ}, 3")
    a(f"s_lshl2_add_u32 s{sRB}, s{sRB}, s{sT2}")
    a(f"s_and_b32 s{sG}, s{sXC}, 1")
    a(f"s_and_b32 s{sT2}, s{sJ}, 7")
    a(f"s_lshl3_add_u32 s{sG}, s{sG}, s{sT2}")
    a(f"s_and_b32 s{sW4}, s{sWAVE}, 3")
    a(f"v_lshlrev_b32 v{vL16}, 4, v{vLANE}")
    a(f"v_lshlrev_b32 v{vL8}, 3, v{vLANE}")
    a(f"s_cmp_lt_u32 s{sWAVE}, 8")
    a("s_cbranch_scc1 LF_A")
    a("s_setprio 3")
    a(f"s_lshl_b32 s{sT0}, s{sW4}, 8")
    a(f"s_add_u32 s{sT0}, s{sT0}, {FL}")
    a(f"v_lshl_add_u32 v{vFW}, v{vLANE}, 2, s{sT0}")
    a(f"v_mov_b32 v{vONE}, 0")
    a(f"ds_write_b32 v{vFW}, v{vONE}")
    gen_loader(a)

    a.label("LF_A")
    code_prefetch(a, KN, 8, vD, 16, vLANE, sp=54)
    a(f"s_mov_b32 s{sHI}, 0")
    a(f"s_mov_b32 s{sHI+1}, -1")
    a(f"s_lshl_b32 s{sT0}, s{sWAVE}, 8")
    a(f"s_add_u32 s{sT0}, s{sT0}, {FL + 1024}")
    a(f"v_lshl_add_u32 v{vROW}, v{vLANE}, 2, s{sT0}")
    for r in list(range(ACC[0], vCS+8)):
        a(f"v_mov_b32 v{r}, 0")
    a(f"ds_write_b32 v{vROW}, v{vCS}")
    a(f"s_and_b32 s{sT0}, s{sWAVE}, 1")
    a(f"s_lshl_b32 s{sT0}, s{sT0}, 1")
    a(f"s_lshr_b32 s{sT1}, s{sWAVE}, 1")
    a(f"s_cmp_lt_u32 s{sWAVE}, 4")
    a(f"s_cselect_b32 s{sT0}, s{sT0}, s{sW4}")
    a(f"s_cselect_b32 s{sT1}, s{sT1}, 4")
    a(f"v_and_b32 v32, 31, v{vLANE}")
    a(f"v_lshrrev_b32 v33, 5, v{vLANE}")
    a(f"v_mov_b32 v34, s{sT0}")
    a(f"v_lshl_add_u32 v35, v34, 5, v32")
    a(f"v_lshl_add_u32 v36, v34, 1, v33")
    a(f"v_bfe_u32 v37, v32, 1, 3")
    a(f"v_xor_b32 v36, v36, v37")
    a(f"v_lshlrev_b32 v36, 4, v36")
    a(f"v_lshl_add_u32 v{vXA}, v35, 7, v36")
    for s in range(1, 4):
        a(f"v_xor_b32 v{vXA+s}, {32*s}, v{vXA}")
    a(f"v_lshlrev_b32 v35, 10, v34")
    a(f"v_lshl_add_u32 v35, v33, 9, v35")
    a(f"v_bfe_u32 v36, v{vLANE}, 2, 2")
    a(f"v_lshl_add_u32 v35, v36, 6, v35")
    a(f"v_bfe_u32 v36, v{vLANE}, 4, 1")
    a(f"v_lshl_add_u32 v35, v36, 5, v35")
    a(f"v_and_b32 v37, 3, v{vLANE}")
    a(f"v_lshl_add_u32 v35, v37, 3, v35")
    a(f"s_lshl_b32 s{sT0}, s{sT1}, 12")
    a(f"s_add_u32 s{sT0}, s{sT0}, 16384")
    a(f"v_add_u32 v{vWA}, s{sT0}, v35")
    for s in range(1, 4):
        a(f"v_xor_b32 v{vWA+s}, {1024*s}, v{vWA}")
    a(f"s_lshl_b32 s{sCSB}, s{sT1}, 9")
    a(f"s_add_u32 s{sCSB}, s{sCSB}, {CSR}")
    a(f"v_and_b32 v{vSEL+1}, 15, v{vLANE}")
    a(f"v_cmp_eq_u32 vcc, v36, v{vSEL+1}")
    a(f"v_mov_b32 v{vSEL+1}, 0x3f803f80")
    a(f"v_mov_b32 v{vGC}, {hx(GC1)}")
    a(f"v_cndmask_b32 v{vSEL}, 0, v{vSEL+1}, vcc")
    a(f"v_mov_b32 v{vGC+1}, {hx(GC0)}")
    for i in range(1, 4):
        a(f"v_mov_b32 v{vSEL+i}, v{vSEL}")
    a(f"s_mov_b32 s{sT1}, {SLOT}")
    a(f"s_mov_b32 s{sT2}, {-3*SLOT}")
    a("s_waitcnt lgkmcnt(0) vmcnt(0)")
    srd(a, sW, 18, WS_END)
    a(f"s_cmp_ge_u32 s{sWAVE}, 4")
    a("s_cbranch_scc1 LF_S")
    gen_P(a)
    gen_S(a)
    gen_att(a)
    if FULL: gen_p3(a)
    gen_gemm(a)
    a.label("LF_fin")
    if STAMP: a("s_waitcnt vmcnt(0)")
    stamp(a, 7)
    stamp_flush(a, 14, 0, sWAVE, 18, 12, 30)
    a.label("LF_end")
    a("s_endpgm")
    return dict(name=KN, grid=256, block=768, lds=KF_LDS, vgpr=168, sgpr=102 if STAMP else 64, accum=168)
```

```python
import sys, importlib
from common import *
import k1

def build(kernels, out):
    hdr = open("cdna_kernels/" + NAME + ".s.ref").read().split("; Override launch")[0]
    a = Asm()
    infos = []
    for gen in kernels:
        start = len(a.lines)
        infos.append(gen(a))
        for p in check_linear(a.lines[start:], infos[-1]["name"]):
            print("HAZARD", p)
    s = hdr
    for i in infos:
        if len(infos) == 1 and not os.environ.get("ASLIST"):
            s += f"; @launch grid=({i['grid']},1,1) block=({i['block']},1,1) lds={i['lds']}\n"
            continue
        s += f"; @launch kernel={i['name']} grid=({i['grid']},1,1) block=({i['block']},1,1) lds={i['lds']}\n"
    s += '.amdgcn_target "amdgcn-amd-amdhsa--gfx950"\n.text\n'
    s += a.text()
    s += "Lcode_end:\n"
    s += '.section .rodata,"a"\n'
    for i in infos:
        s += kernel_desc(i["name"], i["vgpr"], i["sgpr"], i["accum"])
    open(out, "w").write(s)

if __name__ == "__main__":
    import k2, k3
    kf = importlib.import_module(os.environ.get('KF', 'kh'))
    ks = [k1.gen_k1, k2.gen_k2, k3.gen_k3] if os.environ.get("THREE") else ([kf.gen_kf] if kf.FULL else [kf.gen_kf, k3.gen_k3])
    out = sys.argv[1] if len(sys.argv) > 1 else "cdna_kernels/" + NAME + ".s"
    build(ks, out)
```

```python
import math, struct
from asmlib import *

NAME = "parallel_sum__grouped_kv_mqa__mixer_gmlp__prompt"
WS_Q  = 0
WS_Z1 = 0x280000
WS_Z2 = 0x5E0000
WS_KV = 0x960000
WS_OH = 0x9A0000
WS_WT = 0xF80000
WS_ST = 0x1160000
WS_FL = 0x1200000
CPS = 0x10000
F_Q  = WS_FL
F_O  = WS_FL + 0x4000
F_H  = WS_FL + 0x80000
F_W  = WS_FL + 0x84000
F_Z2 = WS_FL + 0x8000
F_KV = WS_FL + 0xC000
F_ST = WS_FL + 0xD000
WS_EP = WS_FL + 0xF000
WS_XS = WS_FL + 0xA0000
WS_ZR = 0x1300000
WS_END = WS_ZR + 0x380000
OH_TG = 96256
KVREC = 3584

def f2u(f):
    return struct.unpack("<I", struct.pack("<f", f))[0]
def hx(f):
    return "0x%08x" % f2u(f)

LOG2E = math.log2(math.e)
QSCALE = LOG2E / math.sqrt(20.0)
GC0 = -2.0 * math.sqrt(2.0 / math.pi) * LOG2E
GC1 = GC0 * 0.044715

def kernel_header(a, name):
    a.raw(f".globl {name}")
    a.raw(".p2align 8")
    a.raw(f".type {name},@function")
    a.label(name)

def kernel_desc(name, vgpr, sgpr, accum):
    return f""".p2align 6
.amdhsa_kernel {name}
  .amdhsa_next_free_vgpr {vgpr}
  .amdhsa_next_free_sgpr {sgpr}
  .amdhsa_accum_offset {accum}
  .amdhsa_group_segment_fixed_size 0
  .amdhsa_kernarg_size 104
  .amdhsa_user_sgpr_count 2
  .amdhsa_user_sgpr_kernarg_segment_ptr 1
  .amdhsa_system_sgpr_workgroup_id_x 1
.end_amdhsa_kernel
"""

def srd(a, d, base, size):
    a(f"s_mov_b32 s{d}, s{base}")
    a(f"s_mov_b32 s{d+1}, s{base+1}")
    a(f"s_mov_b32 s{d+2}, {size}")
    a(f"s_mov_b32 s{d+3}, 0x20000")

import os
STAMP = bool(os.environ.get("STAMP"))
WS_STAMP = 0x2000000
RTD = os.environ.get("RTD")
def stamp(a, i):
    if RTD:
        a(f"s_memrealtime s[{64+2*i}:{65+2*i}]")
        a("s_waitcnt lgkmcnt(0)")
    if STAMP:
        a(f"s_memtime s[{64+2*i}:{65+2*i}]")
        a("s_waitcnt lgkmcnt(0)")
def stamp_flush(a, n, kidx, swave, ws_pair, nwaves, vt):
    if not STAMP: return
    a(f"s_memrealtime s[{64+2*n}:{65+2*n}]")
    a("s_waitcnt lgkmcnt(0)")
    a(f"s_mul_i32 s100, s2, {nwaves}")
    a(f"s_add_u32 s100, s100, s{swave}")
    a("s_lshl_b32 s100, s100, 6")
    a(f"s_add_u32 s100, s100, {WS_STAMP + kidx*0x100000}")
    a("s_mov_b64 exec, 1")
    a(f"v_mov_b32 v{vt}, s100")
    for i in range(n + 1):
        a(f"v_mov_b32 v{vt+1}, s{64+2*i}")
        a(f"global_store_dword v{vt}, v{vt+1}, s[{ws_pair}:{ws_pair+1}] offset:{4*i}")

def stamp_rt(a, i):
    if STAMP:
        a(f"s_memrealtime s[{64+2*i}:{65+2*i}]")
        a("s_waitcnt lgkmcnt(0)")

def code_prefetch(a, label, kb_per_wave, vtmp, vwave, vlane, sp=96, vdst=None):
    a(f"s_getpc_b64 s[{sp}:{sp+1}]")
    a.label(f"Lpc_{label}")
    a(f"s_sub_u32 s{sp}, s{sp}, Lpc_{label}-{label}")
    a(f"s_subb_u32 s{sp+1}, s{sp+1}, 0")
    a(f"v_lshlrev_b32 v{vtmp}, 7, v{vlane}")
    a(f"v_lshl_add_u32 v{vtmp}, v{vwave}, 13, v{vtmp}")
    a(f"v_min_u32 v{vtmp}, Lcode_end-{label}-4, v{vtmp}")
    a(f"global_load_dword v{vtmp+1 if vdst is None else vdst}, v{vtmp}, s[{sp}:{sp+1}]")

DIAG = bool(os.environ.get("DIAG"))
WS_DG = 0x3000000
def diag(a, idx, swave, wsel, ws_pair, vt, sbase=90, pre=False):
    if not DIAG: return
    L = f"Ldg{idx}"
    a(f"s_lshl_b32 s{sbase}, s2, 4")
    a(f"s_add_u32 s{sbase}, s{sbase}, s{swave}")
    a(f"s_cmp_lg_u32 s{sbase}, {wsel + 16*int(os.environ.get('DWG', '43'))}")
    a(f"s_cbranch_scc1 {L}")
    if not pre: a(f"s_memrealtime s[{sbase+2}:{sbase+3}]")
    a("s_waitcnt lgkmcnt(0)")
    a(f"v_mov_b32 v{vt}, {WS_DG + 4*idx}")
    a(f"v_mov_b32 v{vt+1}, s{sbase+2}")
    a(f"global_store_dword v{vt}, v{vt+1}, s[{ws_pair}:{ws_pair+1}]")
    a.label(L)
```

```python
from common import *
EXP = os.environ.get('EXP', '').split(',')
MARGIN = float(os.environ.get('MARGIN', '90'))
WT = "sc0 sc1"
RD = "sc1"
PL = os.environ.get("PL", "sc0 sc1")
NCP = int(os.environ.get("NCP", "2"))
SL1, SL2, SL3 = (int(v) for v in os.environ.get("SLP", "8,6,8").split(","))

SLOT = 36864
NSL, GSLOT = 6, 24576
NON = 147456
CSR = NON + 512
STR = CSR + 2560
MX = STR + 1024
FL = MX + 4096
OST = (STR, FL + 3072)
KF_LDS = FL + 3072 + 5120
ROWP = 336
PART = 64 * ROWP
FULL = 'k3' not in EXP
QB = 5 * GSLOT
KB = QB + 10240
ZP = 2 * GSLOT
VTR = 3 * GSLOT
Z1P = VTR + 8192
NSC = 4 * GSLOT
assert MX % 4096 == 0

sX, sA, sB, sC, sW = 20, 24, 28, 32, 36
sSP, sBI = 24, 28
sWAVE, sRB, sG, sW4, sXC, sJ, sLOOP, sTG = 40, 41, 42, 43, 44, 45, 46, 47
sT0, sT1, sT2, sT3 = 48, 49, 50, 51
sHI = 52
sM = 54
sXO, sAO, sBO, sCO, sAS, sBS, sCS_, sXD, sWD, sSLOT, sROT = 56, 57, 58, 59, 60, 61, 62, 63, 14, 15, 3
sSPO, sZO, sSPD, sZD, sSPB, sZB, sNEED, sCG, sFB, sTH, sRB2 = 56, 57, 58, 59, 60, 61, 62, 63, 14, 15, 3
sB0, sTY, sU, sCSB, sKO, sVO, sHEAD, sKT, sF1 = 56, 57, 58, 59, 60, 61, 62, 63, 14

vLANE, vL16, vL8 = 1, 2, 3
vROW, vGRP = 4, 5
vSTO = 6
vXA, vWA, vSEL, vMU, vR, vGC, vN = 8, 12, 16, 20, 24, 28, 30
BUF = (32, 48)
ACC = (64, 80, 96, 112)
vCS, vT, vD, vSA = 128, 136, 152, 160
vSQ = vSA + 2
vS1, vS2, vS3, vS4 = 164, 165, 166, 167

def mf16(d, a_, b, c):
    cc = c if isinstance(c, str) else vr(c, 16)
    return f"v_mfma_f32_32x32x16_bf16 {vr(d,16)}, {vr(a_,4)}, {vr(b,4)}, {cc}"
def mf8(d, a_, b):
    return f"v_mfma_f32_32x32x8bf16_1k {vr(d,16)}, {vr(a_,2)}, {vr(b,2)}, {vr(d,16)}"

_uid = [0]
def uid(p):
    _uid[0] += 1
    return f"LF_{p}{_uid[0]}"

def spin_lds(a, vaddr, need, vt, sleep=1):
    L = uid("sp")
    a.label(L)
    a(f"ds_read_b32 v{vt}, v{vaddr}")
    a("s_waitcnt lgkmcnt(0)")
    a(f"v_cmp_gt_u32 vcc, {need}, v{vt}")
    a("s_nop 0")
    a(f"s_cbranch_vccz {L}d")
    if sleep: a(f"s_sleep {sleep}")
    a(f"s_branch {L}")
    a.label(L + "d")

def poll_tags(a, loads, vn, scnt, sleep=2, adv=()):
    L = uid("pl")
    a(f"s_mov_b32 s{scnt}, 0x20000")
    a.label(L)
    for ins, _ in loads: a(ins)
    n = len(loads)
    first = True
    for i, (_, ts) in enumerate(loads):
        a(f"s_waitcnt vmcnt({n-1-i})")
        for t in (ts if isinstance(ts, tuple) else (ts,)):
            a(f"v_cmp_ne_u64 {'vcc' if first else sr(sM,2)}, {vr(t,2)}, {vr(vn,2)}")
            a("s_nop 0")
            if not first: a(f"s_or_b64 vcc, vcc, {sr(sM,2)}")
            first = False
    a(f"s_cbranch_vccz {L}d")
    if adv:
        a(f"s_cmp_gt_u32 s{scnt}, {0x20000 - (NCP-1)}")
        a(f"s_cselect_b32 s{sM}, {CPS}, 0")
        for r in adv: a(f"s_add_u32 s{r}, s{r}, s{sM}")
    a(f"s_sleep {sleep}")
    a(f"s_sub_u32 s{scnt}, s{scnt}, 1")
    a(f"s_cbranch_scc0 {L}")
    a.label(L + "d")

def put_flags(a, soff, vn, vt, lb=0, ls=0, ncp=None, wait=True):
    ncp = NCP if ncp is None else ncp
    a(f"v_lshrrev_b32 v{vt}, {lb}, v{vLANE}")
    a(f"v_lshlrev_b32 v{vt}, 16, v{vt}")
    if lb:
        a(f"v_and_b32 v{vt+1}, {(1 << lb) - 1}, v{vLANE}")
        if isinstance(ls, str): a(f"v_mad_u32_u24 v{vt}, v{vt+1}, {ls}, v{vt}")
        else: a(f"v_lshl_add_u32 v{vt}, v{vt+1}, {ls}, v{vt}")
    if wait: a("s_waitcnt vmcnt(0)")
    n = ncp << lb
    assert n <= 32
    a("s_mov_b32 exec_hi, 0")
    a(f"s_mov_b32 exec_lo, {hex((1 << n) - 1)}")
    a(f"buffer_store_dwordx2 {vr(vn,2)}, v{vt}, {sr(sW,4)}, s{soff} offen {WT}")
    a("s_mov_b64 exec, -1")

def reads(a, s, n):
    buf = BUF[s & 1]
    for u in range(n):
        a(f"ds_read_b128 {vr(buf+4*u,4)}, v{vXA+s} offset:{u*4096}")
        for h in range(2):
            a(f"ds_read_b64_tr_b16 {vr(buf+8+4*u+2*h,2)}, v{vWA+s} offset:{u*8192 + h*256}")

def mfmas(a, s, n):
    buf = BUF[s & 1]
    for (u, b) in ((0, 0), (1, 0), (0, 1), (1, 1)):
        if u < n and b < n:
            a(mf16(ACC[2*b+u], buf+8+4*b, buf+4*u, ACC[2*b+u]))
            if u == n - 1 and s < n:
                a(f"v_mfma_f32_16x16x32_bf16 {vr(vCS+4*b,4)}, {vr(buf+8+4*b,4)}, {vr(vSEL,4)}, {vr(vCS+4*b,4)}")
    if n == 1:
        for r in range(4):
            t = vT + 2*(r & 1)
            a(f"v_lshlrev_b32 v{t}, 16, v{buf+r}")
            a(f"v_and_b32 v{t+1}, v{vT+4}, v{buf+r}")
            a(f"v_add_f32 v{vS1}, v{vS1}, v{t}")
            a(f"v_fmac_f32 v{vS2}, v{t}, v{t}")
            a(f"v_add_f32 v{vS3}, v{vS3}, v{t+1}")
            a(f"v_fmac_f32 v{vS4}, v{t+1}, v{t+1}")

def compute_loop(a, tag, n):
    nr = 3 * n
    a("s_barrier")
    stamp(a, 1)
    reads(a, 0, n)
    a(f"s_mov_b32 s{sLOOP}, 0")
    a.raw(".p2align 6")
    a.label(f"LF_loop{tag}")
    st = len(a.lines)
    for s in range(3):
        reads(a, s+1, n)
        if s == 2:
            a(f"s_add_u32 s{sLOOP}, s{sLOOP}, 1")
            a(f"s_and_b32 s{sT0}, s{sLOOP}, 3")
            a(f"s_cselect_b32 s{sT0}, s{sT1}, s{sT2}")
            for i in range(4):
                a(f"v_add_u32 v{vXA+i}, s{sT0}, v{vXA+i}")
                a(f"v_add_u32 v{vWA+i}, s{sT0}, v{vWA+i}")
        a(f"s_waitcnt lgkmcnt({nr})")
        mfmas(a, s, n)
    a("s_waitcnt lgkmcnt(0)")
    a("s_barrier")
    reads(a, 0, n)
    mfmas(a, 3, n)
    a(f"s_cmp_lt_u32 s{sLOOP}, 10")
    a(f"s_cbranch_scc1 LF_loop{tag}")
    for p in check_linear(a.lines[st:] + a.lines[st:], "kf loop x2"): print("HAZARD", p)
    a("s_waitcnt lgkmcnt(0)")
    stamp(a, 2)

def write_colsum(a, n, sslot):
    a(f"v_and_b32 v{vT}, 1, v{vLANE}")
    a(f"v_lshlrev_b32 v{vT}, 8, v{vT}")
    a(f"v_lshrrev_b32 v{vT+1}, 4, v{vLANE}")
    a(f"v_lshl_add_u32 v{vT}, v{vT+1}, 6, v{vT}")
    a(f"s_lshl2_add_u32 s{sT0}, s{sslot}, s{sCSB}")
    a(f"v_add_u32 v{vT}, s{sT0}, v{vT}")
    m = 4 * n
    for k in range(m): a(f"v_cvt_pk_bf16_f32 v{vT+2+k}, v{vCS+k}, v{vCS+k}")
    for k in range(m): a(f"v_lshlrev_b32 v{vT+2+k}, 16, v{vT+2+k}")
    for k in range(m): a(f"v_sub_f32 v{vT+2+k}, v{vCS+k}, v{vT+2+k}")
    for k in range(m): a(f"v_cvt_pk_bf16_f32 v{vT+2+k}, v{vCS+k}, v{vT+2+k}")
    a("s_mov_b32 exec_lo, 0x00030003")
    a("s_mov_b32 exec_hi, 0x00030003")
    for b in range(n):
        for r in range(4):
            a(f"ds_write_b32 v{vT}, v{vT+2+4*b+r} offset:{b*1024 + r*16}")
    a("s_mov_b64 exec, -1")

def scale(a, acc, hi, r=vR):
    sel = "op_sel:[0,1] op_sel_hi:[1,1]" if hi else "op_sel_hi:[1,0]"
    for i in range(8):
        a(f"v_pk_mul_f32 {vr(acc+2*i,2)}, {vr(acc+2*i,2)}, {vr(r,2)} {sel}")

def gelu(a, acc, r):
    scale(a, acc, False, r)
    for i in range(8):
        a(f"v_pk_mul_f32 {vr(vT+2*i,2)}, {vr(acc+2*i,2)}, {vr(acc+2*i,2)}")
    for i in range(8):
        a(f"v_pk_fma_f32 {vr(vT+2*i,2)}, {vr(vT+2*i,2)}, {vr(vGC,2)}, {vr(vGC,2)} op_sel:[0,0,1] op_sel_hi:[1,0,1]")
    for i in range(8):
        a(f"v_pk_mul_f32 {vr(vT+2*i,2)}, {vr(vT+2*i,2)}, {vr(acc+2*i,2)}")
    for i in range(16):
        a(f"v_exp_f32 v{vT+i}, v{vT+i}")
    for i in range(8):
        a(f"v_pk_add_f32 {vr(vT+2*i,2)}, {vr(vT+2*i,2)}, 1.0 op_sel_hi:[1,0]")
    for i in range(16):
        a(f"v_rcp_f32 v{vT+i}, v{vT+i}")
    for i in range(8):
        a(f"v_pk_mul_f32 {vr(acc+2*i,2)}, {vr(acc+2*i,2)}, {vr(vT+2*i,2)}")

def pack(a, acc, d=vD):
    for i in range(8):
        a(f"v_cvt_pk_bf16_f32 v{d+i}, v{acc+2*i}, v{acc+2*i+1}")

def swaps(a, d=vD, n=2):
    a("s_nop 1")
    for i in range(n):
        a(f"v_permlane32_swap_b32 v{d+4*i}, v{d+4*i+2}")
        a(f"v_permlane32_swap_b32 v{d+4*i+1}, v{d+4*i+3}")

def store_lin(a, soff, d=vD):
    a(f"buffer_store_dwordx4 {vr(d,4)}, v{vL16}, {sr(sW,4)}, s{soff} offen {WT}")
    a(f"buffer_store_dwordx4 {vr(d+4,4)}, v{vL16}, {sr(sW,4)}, s{soff} offen offset:1024 {WT}")
    a("s_nop 1")

def epi_q(a, acc, sblk, u=0):
    scale(a, acc, True, vR + 2*u)
    pack(a, acc)
    swaps(a)
    if u == 0:
        a(f"s_mul_i32 s{sT0}, s{sTG}, 40960")
        a(f"s_lshl_b32 s{sT1}, s{sblk}, 11")
        a(f"s_add_u32 s{sT0}, s{sT0}, s{sT1}")
        if WS_Q: a(f"s_add_u32 s{sT0}, s{sT0}, {WS_Q}")
    else:
        a(f"s_add_u32 s{sT0}, s{sT0}, 40960")
    store_lin(a, sT0)

def epi_z(a, u):
    acc = ACC[u]
    gelu(a, acc, vR + 2*u)
    pack(a, acc)
    if u == 0:
        a(f"s_cmp_eq_u32 s{sU}, 2")
        a("s_cbranch_scc0 LF_pq")
        put_flags(a, sF1, vN, vT, 1, 8)
        a.label("LF_pq")
    a(f"ds_write_b128 v{vSTO+1}, {vr(vD,4)} offset:{u*4096}")
    a(f"ds_write_b128 v{vSTO+1}, {vr(vD+4,4)} offset:{u*4096 + 1024}")

def gen_P(a):
    sB1, sTY1 = sKO, sVO
    compute_loop(a, "p", 2)
    a(f"s_and_b32 s{sT3}, s{sWAVE}, 1")
    write_colsum(a, 2, sT3)
    a(f"s_lshr_b32 s{sT2}, s{sWAVE}, 1")
    a(f"s_cmp_le_u32 s{sG}, 2")
    a(f"s_cselect_b32 s{sB0}, 2, 13")
    a(f"s_cselect_b32 s{sB1}, 13, -3")
    a(f"s_cselect_b32 s{sTY}, 0, 1")
    a(f"s_cmp_ge_u32 s{sG}, 14")
    a(f"s_cselect_b32 s{sB0}, -14, s{sB0}")
    a(f"s_cselect_b32 s{sTY}, 0, s{sTY}")
    a(f"s_add_i32 s{sB0}, s{sB0}, s{sG}")
    a(f"s_add_i32 s{sB1}, s{sB1}, s{sG}")
    a(f"s_lshl1_add_u32 s{sB0}, s{sB0}, s{sT2}")
    a(f"s_lshl1_add_u32 s{sB1}, s{sB1}, s{sT2}")
    a(f"s_lshl_b32 s{sTG}, s{sRB}, 2")
    a(f"s_lshl1_add_u32 s{sTG}, s{sT3}, s{sTG}")
    a(f"v_and_b32 v{vT}, 0x1f0, v{vL16}")
    a(f"v_add_u32 v{vT}, s{sCSB}, v{vT}")
    a(f"v_and_b32 v{vT+1}, 0xf8, v{vL8}")
    a(f"s_lshl_b32 s{sT0}, s{sT3}, 9")
    a(f"s_add_u32 s{sT0}, s{sT0}, {STR}")
    a(f"v_add_u32 v{vT+1}, s{sT0}, v{vT+1}")
    a(f"v_mov_b32 v{vT+6}, {NON}")
    a(f"s_lshl_b32 s{sT0}, s{sT3}, 13")
    a(f"s_lshl_b32 s{sT1}, s{sT2}, 11")
    a(f"s_add_u32 s{sT0}, s{sT0}, s{sT1}")
    a(f"s_add_u32 s{sT0}, s{sT0}, {ZP}")
    a(f"v_add_u32 v{vSTO}, s{sT0}, v{vL16}")
    a(f"v_mov_b32 v{vSA}, 1")
    a("s_setprio 2")
    a("s_waitcnt lgkmcnt(0)")
    a("s_barrier")
    a(f"ds_read_b64 {vr(vT+2,2)}, v{vT+1}")
    a(f"ds_read_b64 {vr(vT+4,2)}, v{vT+1} offset:256")
    for b in range(2):
        a(f"ds_read_b64 {vr(BUF[0]+4*b,2)}, v{vT} offset:{b*1024}")
        a(f"v_mov_b32 v{BUF[0]+4*b+2}, 0")
        a(f"v_mov_b32 v{BUF[0]+4*b+3}, 0")
    a(f"ds_read_b64 {vr(vN,2)}, v{vT+6}")
    a("s_waitcnt lgkmcnt(3)")
    MU = (vMU, BUF[1])
    for u in range(2):
        a(f"v_cndmask_b32 v{MU[u]}, v{vT+2+2*u}, 0, {sr(sHI,2)}")
        a(f"v_mov_b32 v{vR+2*u}, v{vT+3+2*u}")
        for i in range(1, 4):
            a(f"v_mov_b32 v{MU[u]+i}, v{MU[u]}")
        a(f"v_mul_f32 v{vR+2*u+1}, {hx(QSCALE)}, v{vT+3+2*u}")
    a("s_waitcnt lgkmcnt(0)")
    for b in range(2):
        for u in range(2):
            a(mf16(ACC[2*b+u], BUF[0]+4*b, MU[u], ACC[2*b+u]))
    a(f"s_mov_b32 s{sU}, 0")
    a("s_nop 7")
    stamp(a, 3)
    a(f"s_cmp_eq_u32 s{sTY}, 1")
    a("s_cbranch_scc1 LF_pg")
    epi_q(a, ACC[0], sB0, 0)
    epi_q(a, ACC[1], sB0, 1)
    a(f"s_lshl_b32 s{sF1}, s{sTG}, 8")
    a(f"s_lshl3_add_u32 s{sF1}, s{sB0}, s{sF1}")
    a(f"s_add_u32 s{sF1}, s{sF1}, {F_Q}")
    a("s_branch LF_pn")
    a.label("LF_pg")
    a(f"s_cmp_ge_u32 s{sB0}, 27")
    a(f"s_cselect_b32 s{sT0}, 0, {Z1P - ZP}")
    a(f"v_add_u32 v{vSTO+1}, s{sT0}, v{vSTO}")
    epi_z(a, 0)
    epi_z(a, 1)
    a("s_waitcnt lgkmcnt(0)")
    a.label("LF_pn")
    a(f"ds_add_u32 v{vROW}, v{vSA}")
    a(f"s_cmp_lg_u32 s{sU}, 0")
    a("s_cbranch_scc1 LF_pd")
    a(f"s_sub_u32 s{sU}, 2, s{sTY}")
    a(f"s_mov_b32 s{sB0}, s{sB1}")
    for r in range(32): a(f"v_mov_b32 v{ACC[0]+r}, v{ACC[2]+r}")
    a("s_branch LF_pg")
    a.label("LF_pd")
    stamp(a, 4)
    a("s_branch LF_att")

def gen_S(a):
    a.label("LF_S")
    a(f"s_lshl_b32 s{sT0}, s2, 2")
    a(f"s_or_b32 s{sT0}, s{sT0}, s{sW4}")
    a("s_cbranch_scc1 LF_nolead")
    a(f"s_mov_b32 s{sT0}, {WS_EP}")
    a(f"buffer_load_dwordx2 {vr(vD,2)}, v{vCS}, {sr(sW,4)}, s{sT0} offen sc0 sc1")
    a("s_waitcnt vmcnt(0)")
    a(f"v_add_u32 v{vD}, 1, v{vD}")
    a(f"v_add_u32 v{vD+1}, 0x9e3779b9, v{vD+1}")
    a(f"v_mov_b32 v{vD+2}, 1")
    a(f"v_mov_b32 v{vD+3}, 1")
    a("s_mov_b64 exec, 1")
    a(f"global_store_dwordx4 v{vCS}, {vr(vD,4)}, s[16:17] sc0 sc1")
    a(f"buffer_store_dwordx2 {vr(vD,2)}, v{vCS}, {sr(sW,4)}, s{sT0} offen sc0 sc1")
    a("s_mov_b64 exec, -1")
    a.label("LF_nolead")
    for r in (vS1, vS2, vS3, vS4):
        a(f"v_mov_b32 v{r}, 0")
    a(f"v_mov_b32 v{vT+4}, 0xffff0000")
    a("s_setprio 1")
    compute_loop(a, "s", 1)
    a("s_setprio 3")
    a(f"v_add_f32 v{vS1}, v{vS1}, v{vS3}")
    a(f"v_add_f32 v{vS2}, v{vS2}, v{vS4}")
    a(f"v_and_b32 v{vS3}, 0xf8, v{vL8}")
    a(f"s_lshl_b32 s{sT0}, s{sW4}, 8")
    a(f"v_permlane32_swap_b32 v{vS1}, v{vS2}")
    a(f"s_add_u32 s{sT0}, s{sT0}, {STR}")
    a(f"v_add_str" if False else f"v_add_u32 v{vS3}, s{sT0}, v{vS3}")
    a(f"v_add_f32 v{vS1}, v{vS1}, v{vS2}")
    a(f"v_mul_f32 v{vS1}, {hx(1.0/640)}, v{vS1}")
    a(f"v_mov_b32 v{vS2}, v{vS1}")
    a("s_nop 1")
    a(f"v_permlane32_swap_b32 v{vS1}, v{vS2}")
    a("s_nop 0")
    a(f"v_cvt_pk_bf16_f32 v{vD}, -v{vS1}, -v{vS1}")
    a(f"v_fma_f32 v{vS2}, -v{vS1}, v{vS1}, v{vS2}")
    a(f"v_max_f32 v{vS2}, 0, v{vS2}")
    a(f"v_add_f32 v{vS2}, {hx(1e-5)}, v{vS2}")
    a(f"v_rsq_f32 v{vD+1}, v{vS2}")
    a("s_nop 0")
    a(f"ds_write_b64 v{vS3}, {vr(vD,2)}")
    write_colsum(a, 1, sW4)
    a(f"v_cndmask_b32 v{vMU}, v{vD}, 0, {sr(sHI,2)}")
    a(f"v_mov_b32 v{vR}, v{vD+1}")
    for i in range(1, 4):
        a(f"v_mov_b32 v{vMU+i}, v{vMU}")
    a(f"v_mul_f32 v{vR+1}, {hx(QSCALE)}, v{vD+1}")
    a(f"v_and_b32 v{vT}, 0x1f0, v{vL16}")
    a(f"v_add_u32 v{vT}, s{sCSB}, v{vT}")
    a(f"v_mov_b32 v{vT+6}, {NON}")
    a(f"s_lshl2_add_u32 s{sTG}, s{sRB}, s{sW4}")
    a("s_waitcnt lgkmcnt(0)")
    a("s_barrier")
    a(f"ds_read_b128 {vr(BUF[0],4)}, v{vT}")
    a(f"ds_read_b64 {vr(vN,2)}, v{vT+6}")
    a("s_waitcnt lgkmcnt(0)")
    acc = ACC[0]
    a(mf16(acc, BUF[0], vMU, acc))
    u = vT
    a("s_nop 6")
    stamp(a, 3)
    a(f"s_cmp_eq_u32 s{sG}, 0")
    a(f"s_cbranch_scc1 LF_ck")
    a(f"s_cmp_eq_u32 s{sG}, 1")
    a(f"s_cbranch_scc1 LF_cv")
    a(f"s_add_u32 s{sB0}, s{sG}, 8")
    a(f"s_cmp_lt_u32 s{sG}, 10")
    a(f"s_cbranch_scc1 LF_cq")
    a(f"s_add_u32 s{sB0}, s{sG}, 4")
    a(f"s_cmp_lt_u32 s{sG}, 14")
    a(f"s_cbranch_scc1 LF_cn")
    a.label("LF_cq")
    epi_q(a, acc, sB0)
    a(f"s_lshl_b32 s{sF1}, s{sTG}, 8")
    a(f"s_lshl3_add_u32 s{sF1}, s{sB0}, s{sF1}")
    a(f"s_add_u32 s{sF1}, s{sF1}, {F_Q}")
    a(f"s_branch LF_cf")
    a.label(f"LF_ck")
    a("s_nop 2")
    scale(a, acc, False)
    pack(a, acc)
    a(f"v_mov_b32 v{u}, 0x3f803f80")
    a(f"v_mov_b32 v{u+1}, 0x00003f80")
    a(f"v_cndmask_b32 v{vD+4}, v{vD+4}, v{u}, {sr(sHI,2)}")
    a(f"v_cndmask_b32 v{vD+5}, v{vD+5}, v{u+1}, {sr(sHI,2)}")
    swaps(a, n=1)
    a(f"s_mul_i32 s{sT0}, s{sTG}, {KVREC}")
    a(f"s_add_u32 s{sT0}, s{sT0}, {WS_KV}")
    a(f"buffer_store_dwordx4 {vr(vD,4)}, v{vL16}, {sr(sW,4)}, s{sT0} offen {WT}")
    a(f"buffer_store_dwordx2 {vr(vD+4,2)}, v{vL8}, {sr(sW,4)}, s{sT0} offen offset:3072 {WT}")
    a(f"s_lshl3_add_u32 s{sF1}, s{sTG}, {F_KV}")
    a(f"s_branch LF_cr")
    a.label(f"LF_cv")
    a("s_nop 0")
    scale(a, acc, False)
    pack(a, acc)
    a(f"v_mov_b32 v{u}, 0x00003f80")
    a(f"v_cndmask_b32 v{vD+4}, v{vD+4}, v{u}, {sr(sHI,2)}")
    a(f"v_cndmask_b32 v{vD+5}, v{vD+5}, 0, {sr(sHI,2)}")
    a(f"v_mov_b32 v{vD+6}, 0")
    a(f"v_mov_b32 v{vD+7}, 0")
    a(f"v_and_b32 v{u+1}, 31, v{vLANE}")
    a(f"v_lshlrev_b32 v{u+1}, 6, v{u+1}")
    a(f"v_lshrrev_b32 v{u+2}, 5, v{vLANE}")
    a(f"v_lshl_add_u32 v{u+1}, v{u+2}, 3, v{u+1}")
    a(f"s_lshl_b32 s{sT0}, s{sW4}, 11")
    a(f"s_add_u32 s{sT0}, s{sT0}, {VTR}")
    a(f"v_add_u32 v{u+1}, s{sT0}, v{u+1}")
    for k in range(4):
        a(f"ds_write_b64 v{u+1}, {vr(vD+2*k,2)} offset:{16*k}")
    a(f"v_bfe_u32 v{u+3}, v{vLANE}, 2, 2")
    a(f"v_lshl_add_u32 v{u+3}, v{u+2}, 2, v{u+3}")
    a(f"v_lshlrev_b32 v{u+3}, 6, v{u+3}")
    a(f"v_bfe_u32 v{u+4}, v{vLANE}, 4, 1")
    a(f"v_lshl_add_u32 v{u+3}, v{u+4}, 5, v{u+3}")
    a(f"v_and_b32 v{u+4}, 3, v{vLANE}")
    a(f"v_lshl_add_u32 v{u+3}, v{u+4}, 3, v{u+3}")
    a(f"v_add_u32 v{u+3}, s{sT0}, v{u+3}")
    a("s_waitcnt lgkmcnt(0)")
    for k in range(4):
        a(f"ds_read_b64_tr_b16 {vr(vD+2*k,2)}, v{u+3} offset:{512*k}")
    a(f"s_mul_i32 s{sT0}, s{sTG}, {KVREC}")
    a(f"s_add_u32 s{sT0}, s{sT0}, {WS_KV + 1024}")
    a("s_waitcnt lgkmcnt(0)")
    store_lin(a, sT0)
    a(f"s_lshl3_add_u32 s{sF1}, s{sTG}, {F_KV + 512}")
    a.label("LF_cr")
    put_flags(a, sF1, vN, u, 2, 10)
    a("s_branch LF_cn")
    a.label("LF_cf")
    put_flags(a, sF1, vN, u)
    a.label("LF_cn")
    a(f"v_mov_b32 v{vT}, 2")
    a(f"ds_write_b32 v{vROW}, v{vT}")
    a("s_setprio 1")
    stamp(a, 4)

S = (8, 24)
P = (40, 48)
O = (56, 72, 88, 104)
QL = (120, 124, 128, 132)
QH = (136, 138, 140, 142)
KL = (144, 148)
VV = (152, 160)
KH = (4, 6)

def phase(a, Sx, Px, mf, x0=(), x2=(), x3=()):
    E = lambda i: f"v_exp_f32 v{Sx+i}, v{Sx+i}"
    C = lambda k: f"v_cvt_pk_bf16_f32 v{Px+k}, v{Sx+2*k}, v{Sx+2*k+1}"
    for x in x0: a(x)
    a(mf[0])
    a(E(0)); a(E(1)); a(E(2)); a(E(3)); a(E(4)); a(C(0))
    a(mf[1])
    a(E(5)); a(E(6)); a(C(1)); a(E(7)); a(E(8)); a(C(2))
    for x in x2: a(x)
    a(mf[2])
    a(E(9)); a(C(3)); a(E(10)); a(E(11)); a(C(4)); a(E(12))
    a(mf[3])
    a(E(13))
    for x in x3: a(x)
    a(C(5)); a(E(14)); a(E(15)); a(C(6)); a(C(7))

KRD = os.environ.get("KRD", RD)
def ldK(b):
    return [f"buffer_load_dwordx4 {vr(KL[b],4)}, v{vL16}, {sr(sW,4)}, s{sKO} offen {KRD}",
            f"buffer_load_dwordx2 {vr(KH[b],2)}, v{vL8}, {sr(sW,4)}, s{sKO} offen offset:3072 {KRD}",
            f"s_add_u32 s{sKO}, s{sKO}, {4*KVREC}"]
def ldV(b):
    return [f"buffer_load_dwordx4 {vr(VV[b],4)}, v{vL16}, {sr(sW,4)}, s{sVO} offen offset:1024 {KRD}",
            f"buffer_load_dwordx4 {vr(VV[b]+4,4)}, v{vL16}, {sr(sW,4)}, s{sVO} offen offset:2048 {KRD}",
            f"s_add_u32 s{sVO}, s{sVO}, {4*KVREC}"]

def att_tile(a, c):
    n = c ^ 1
    def qk(j, kb): return [mf16(S[j & 1], KL[kb], QL[j], "0"), mf8(S[j & 1], KH[kb], QH[j])]
    def pv(j, vb): return [mf16(O[j], VV[vb], P[j & 1], O[j]), mf16(O[j], VV[vb]+4, P[j & 1]+4, O[j])]
    phase(a, S[0], P[0], qk(1, c) + pv(3, n))
    phase(a, S[1], P[1], qk(2, c) + pv(0, c), x2=["s_waitcnt vmcnt(2)"], x3=ldV(n))
    phase(a, S[0], P[0], qk(3, c) + pv(1, c))
    phase(a, S[1], P[1], qk(0, n) + pv(2, c), x0=["s_waitcnt vmcnt(2)"], x3=ldK(c))

def make_qhi(a, Q, vm, t):
    a(f"v_cvt_pk_bf16_f32 v{t}, -v{vm}, -v{vm}")
    a(f"v_lshlrev_b32 v{t}, 16, v{t}")
    a(f"v_add_f32 v{t+1}, v{vm}, v{t}")
    a(f"v_cvt_pk_bf16_f32 v{t+2}, v{t}, -v{t+1}")
    a(f"v_and_b32 v{t}, 0xffff0000, v{t+2}")
    a(f"v_add_f32 v{t+1}, v{t+1}, v{t}")
    a(f"v_cvt_pk_bf16_f32 v{t+3}, -v{t+1}, 0")
    a(f"v_cndmask_b32 v{Q}, v{Q}, v{t+2}, {sr(sHI,2)}")
    a(f"v_cndmask_b32 v{Q+1}, v{Q+1}, v{t+3}, {sr(sHI,2)}")

def max16(a, Sx, vm, first):
    k = 0
    if first:
        a(f"v_max3_f32 v{vm}, v{Sx}, v{Sx+1}, v{Sx+2}")
        a(f"v_max_f32 v{vm}, v{vm}, v{Sx+3}")
        k = 4
    for i in range(k, 16, 2):
        a(f"v_max3_f32 v{vm}, v{vm}, v{Sx+i}, v{Sx+i+1}")

def halves_max(a, vm, t):
    a(f"v_mov_b32 v{t}, v{vm}")
    a("s_nop 1")
    a(f"v_permlane32_swap_b32 v{t}, v{vm}")
    a("s_nop 0")
    a(f"v_max_f32 v{vm}, v{vm}, v{t}")

def gen_att(a):
    a.label("LF_att")
    AD = O[2]
    vrow, vgrp, vstg = AD+14, AD+15, O[3]+15
    a(f"v_mov_b32 v{vrow}, v{vROW}")
    a(f"s_and_b32 s{sKT}, s{sWAVE}, 3")
    a(f"s_lshl_b32 s{sTG}, s{sXC}, 3")
    a(f"s_lshr_b32 s{sT0}, s{sJ}, 2")
    a(f"s_add_u32 s{sTG}, s{sTG}, s{sT0}")
    a(f"s_and_b32 s{sT3}, s{sJ}, 3")
    a(f"s_lshl3_add_u32 s{sHEAD}, s{sT3}, s{sWAVE}")
    a(f"s_mul_i32 s{sVO}, s{sKT}, {KVREC}")
    a(f"s_add_u32 s{sVO}, s{sVO}, {WS_KV}")
    a(f"s_add_u32 s{sKO}, s{sVO}, {4*KVREC}")
    a(f"s_cmp_lt_u32 s{sWAVE}, 4")
    a("s_cbranch_scc1 LF_nst")
    a(f"v_mov_b32 v{O[0]+8}, {FL + 2048}")
    a(f"v_mov_b32 v{O[0]+9}, 3")
    a(f"v_mov_b32 v{O[0]+10}, 4")
    a(f"s_cmp_lg_u32 s{sWAVE}, 4")
    a("s_cbranch_scc1 LF_npl")
    a(f"s_mul_i32 s{sT1}, s{sT3}, 40")
    a(f"s_lshl_b32 s{sT0}, s{sTG}, 8")
    a(f"s_add_u32 s{sT1}, s{sT1}, s{sT0}")
    a(f"s_add_u32 s{sT1}, s{sT1}, {F_Q}")
    a(f"s_and_b32 s{sT2}, s2, 3")
    a(f"s_lshl_b32 s{sT2}, s{sT2}, 10")
    a(f"s_add_u32 s{sT2}, s{sT2}, {F_KV}")
    a(f"v_min_u32 v{O[0]}, 32, v{vL8}")
    a(f"v_and_b32 v{O[0]+1}, 7, v{vLANE}")
    a(f"v_lshlrev_b32 v{O[0]+1}, 8, v{O[0]+1}")
    a(f"v_add_u32 v{O[0]+1}, {FL + 1024}, v{O[0]+1}")
    spin_lds(a, O[0]+1, int(os.environ.get('APW', '2')), O[0]+2, sleep=2)
    poll_tags(a, [(f"buffer_load_dwordx4 {vr(O[0]+4,4)}, v{vL16}, {sr(sW,4)}, s{sT2} offen {PL}", (O[0]+4, O[0]+6)),
                  (f"buffer_load_dwordx2 {vr(O[0]+2,2)}, v{O[0]}, {sr(sW,4)}, s{sT1} offen {PL}", O[0]+2)], vN, sT0, sleep=SL1, adv=(sT1, sT2))
    a(f"ds_write_b32 v{vrow}, v{O[0]+9}")
    stamp(a, 9)
    a.label("LF_npl")
    a(f"s_mul_i32 s{sT1}, s{sT3}, 10240")
    a(f"s_mul_i32 s{sT0}, s{sTG}, 40960")
    a(f"s_add_u32 s{sT1}, s{sT1}, s{sT0}")
    if WS_Q: a(f"s_add_u32 s{sT1}, s{sT1}, {WS_Q}")
    a(f"s_lshl_b32 s{sT0}, s{sKT}, 10")
    a(f"s_add_u32 s{sT1}, s{sT1}, s{sT0}")
    spin_lds(a, O[0]+8, 3, O[0]+2, sleep=1)
    a(f"s_add_u32 m0, s{sT0}, {KB}")
    a(f"s_add_u32 s{sT2}, s{sT1}, 4096")
    a(f"buffer_load_dwordx4 v{vL16}, {sr(sW,4)}, s{sVO} offen {RD} lds")
    a(f"s_add_u32 m0, s{sT0}, {KB + 4096 - 3072}")
    a("s_nop 0")
    a(f"buffer_load_dwordx4 v{vL16}, {sr(sW,4)}, s{sVO} offen offset:3072 {RD} lds")
    a(f"s_add_u32 m0, s{sT0}, {QB}")
    a("s_nop 0")
    a(f"buffer_load_dwordx4 v{vL16}, {sr(sW,4)}, s{sT1} offen {RD} lds")
    a(f"s_add_u32 m0, s{sT0}, {QB + 4096}")
    a(f"s_cmp_ge_u32 s{sKT}, 2")
    a(f"buffer_load_dwordx4 v{vL16}, {sr(sW,4)}, s{sT2} offen {RD} lds")
    a("s_cbranch_scc1 LF_st2")
    a(f"s_add_u32 m0, s{sT0}, {QB + 8192}")
    a(f"s_add_u32 s{sT2}, s{sT1}, 8192")
    a(f"buffer_load_dwordx4 v{vL16}, {sr(sW,4)}, s{sT2} offen {RD} lds")
    a.label("LF_st2")
    a.label("LF_nst")
    tq = P[0]
    a(f"v_add_u32 v{tq}, {QB}, v{vL16}")
    a(f"v_and_b32 v{tq+1}, 0x1f0, v{vL16}")
    a(f"v_add_u32 v{tq+1}, {QB}, v{tq+1}")
    for j in range(4):
        if j: a(f"s_xor_b32 s{sT0}, s{sWAVE}, {j}")
        a(f"s_mul_i32 s{sT0}, s{sT0 if j else sWAVE}, 5")
        for k in range(3):
            if k == 1: a(f"s_add_u32 s{sT0}, s{sT0}, 1")
            if k == 2: a(f"s_add_u32 s{sT0}, s{sT0}, 3")
            a(f"s_lshr_b32 s{sT1}, s{sT0}, 1")
            a(f"s_lshl_b32 s{sT1}, s{sT1}, 9")
            a(f"s_and_b32 s{sT2}, s{sT0}, 1")
            a(f"s_lshl3_add_u32 s{sT1}, s{sT2}, s{sT1}")
            a(f"v_add_u32 v{AD+3*j+k}, s{sT1}, v{tq if k < 2 else tq+1}")
    a(f"v_add_u32 v{tq+1}, {KB + 4096}, v{vL8}")
    a(f"s_lshl_b32 s{sT0}, s{sKT}, 10")
    a(f"v_add_u32 v{AD+12}, s{sT0}, v{tq}")
    a(f"v_add_u32 v{AD+13}, s{sT0}, v{tq+1}")
    a(f"v_and_b32 v{vgrp}, 3, v{vLANE}")
    a(f"v_lshlrev_b32 v{vgrp}, 8, v{vgrp}")
    a(f"s_and_b32 s{sT0}, s{sWAVE}, 4")
    a(f"s_lshl_b32 s{sT0}, s{sT0}, 8")
    a(f"s_add_u32 s{sT0}, s{sT0}, {FL + 1024}")
    a(f"v_add_u32 v{vgrp}, s{sT0}, v{vgrp}")
    a(f"v_and_b32 v{vstg}, 3, v{vLANE}")
    a(f"v_lshlrev_b32 v{vstg}, 8, v{vstg}")
    a(f"v_add_u32 v{vstg}, {FL + 2048}, v{vstg}")
    for r in list(range(O[3], O[3]+15)) + list(range(P[1], P[1]+8)) + list(range(VV[1], VV[1]+8)):
        a(f"v_mov_b32 v{r}, 0")
    a(f"s_cmp_lt_u32 s{sWAVE}, 4")
    a("s_cbranch_scc1 LF_st3")
    a("s_waitcnt vmcnt(0)")
    a(f"ds_write_b32 v{vrow}, v{O[0]+10}")
    a.label("LF_st3")
    spin_lds(a, vstg, 4, S[0], sleep=1)
    a('s_setprio 3')
    stamp(a, 10)
    kb = [(O[0], O[0]+4), (O[0]+8, O[0]+12), (O[1], O[1]+4), (O[1]+8, O[1]+12)]
    def rq(j):
        for k in range(3):
            dst = vr(QL[j] + 2*k, 2) if k < 2 else vr(QH[j], 2)
            a(f"ds_read_b64 {dst}, v{AD+3*j+k}")
    rq(0)
    for t in range(4):
        a(f"ds_read_b128 {vr(kb[t][0],4)}, v{tq} offset:{KB - QB + 1024*t}")
        a(f"ds_read_b64 {vr(kb[t][1],2)}, v{tq+1} offset:{1024*t}")
    a("s_waitcnt lgkmcnt(8)")
    for r in (QH[0], QH[0]+1):
        a(f"v_cndmask_b32 v{r}, v{r}, 0, {sr(sHI,2)}")
    vm = P[0] + 2
    for t in range(4):
        Sx = S[t & 1]
        a(f"s_waitcnt lgkmcnt({6-2*t})")
        if t == 0: a("s_nop 0")
        a(mf16(Sx, kb[t][0], QL[0], "0"))
        a(mf8(Sx, kb[t][1], QH[0]))
        if t >= 1:
            if t == 1: a("s_nop 8")
            if t == 3:
                a(f"ds_read_b128 {vr(KL[0],4)}, v{AD+12} offset:{KB - QB}")
                a(f"ds_read_b64 {vr(KH[0],2)}, v{AD+13}")
                for j in (1, 2, 3): rq(j)
            max16(a, S[(t-1) & 1], vm, t == 1)
            a("s_nop 1")
    a("s_nop 1")
    max16(a, S[1], vm, False)
    halves_max(a, vm, vm+1)
    a(f"v_add_f32 v{vm}, {hx(MARGIN)}, v{vm}")
    make_qhi(a, QH[0], vm, vm+2)
    va = S[1]
    a(f"s_lshl_b32 s{sT0}, s{sWAVE}, 9")
    a(f"s_add_u32 s{sT0}, s{sT0}, {MX}")
    a(f"v_add_u32 v{va}, s{sT0}, v{vL8}")
    a(f"ds_write_b64 v{va}, {vr(vm+4,2)}")
    for j in range(1, 4):
        a(f"v_xor_b32 v{va+j}, {512*j}, v{va}")
    a(f"v_mov_b32 v{va+4}, 5")
    a("s_waitcnt lgkmcnt(0)")
    a(f"ds_write_b32 v{vrow}, v{va+4}")
    a(mf16(S[0], KL[0], QL[0], "0"))
    a(mf8(S[0], KH[0], QH[0]))
    for x in ldV(0) + ldK(1): a(x)
    for r in range(O[0], O[0]+32):
        a(f"v_mov_b32 v{r}, 0")
    spin_lds(a, vgrp, 5, va+5)
    for j in range(1, 4):
        a(f"ds_read_b64 {vr(va+4+2*j,2)}, v{va+j}")
    for r in list(range(O[2], O[2]+16)) + [vstg]:
        a(f"v_mov_b32 v{r}, 0")
    a("s_waitcnt lgkmcnt(0)")
    for j in range(1, 4):
        a(f"v_cndmask_b32 v{QH[j]}, v{QH[j]}, v{va+4+2*j}, {sr(sHI,2)}")
        a(f"v_cndmask_b32 v{QH[j]+1}, v{QH[j]+1}, v{va+5+2*j}, {sr(sHI,2)}")
    stamp(a, 5); stamp_rt(a, 12)
    a(f"s_mov_b32 s{sLOOP}, 8")
    PS = [int(v) for v in os.environ.get("PSTEP", "3,1").split(",")]
    a("s_setprio 2")
    a.raw(".p2align 6")
    a.label("LF_aloop")
    st = len(a.lines)
    att_tile(a, 0)
    att_tile(a, 1)
    a(f"s_sub_u32 s{sLOOP}, s{sLOOP}, 1")
    a(f"s_cmp_gt_u32 s{sLOOP}, {PS[0]}")
    a("s_cbranch_scc1 LF_aloop")
    a("s_setprio 1")
    a(f"s_cmp_gt_u32 s{sLOOP}, {PS[1]}")
    a("s_cbranch_scc1 LF_aloop")
    a("s_setprio 0")
    a(f"s_cmp_lg_u32 s{sLOOP}, 0")
    a("s_cbranch_scc1 LF_aloop")
    for p in check_linear(a.lines[st:] + a.lines[st:], "kf att loop x2"): print("HAZARD", p)
    a(mf16(O[3], VV[1], P[1], O[3]))
    a(mf16(O[3], VV[1]+4, P[1]+4, O[3]))
    stamp(a, 6); stamp_rt(a, 13)
    va = S[0]
    a("s_setprio 2")
    a(f"v_and_b32 v{va+5}, 3, v{vLANE}")
    a(f"v_lshlrev_b32 v{va+5}, 8, v{va+5}")
    a(f"v_add_u32 v{va+5}, {FL}, v{va+5}")
    a(f"s_lshr_b32 s{sT2}, s{sWAVE}, 2")
    a(f"s_lshl_b32 s{sT0}, s{sT2}, 10")
    a(f"s_add_u32 s{sT0}, s{sT0}, 1024")
    a(f"v_add_u32 v{va+6}, s{sT0}, v{va+5}")
    a(f"s_lshl_b32 s{sT0}, s{sWAVE}, 8")
    a(f"s_add_u32 s{sT0}, s{sT0}, {FL + 1024}")
    a(f"v_lshl_add_u32 v{va+7}, v{vLANE}, 2, s{sT0}")
    a(f"v_mov_b32 v{va+9}, 6")
    a(f"s_add_u32 s{sT2}, s{sT2}, 30")
    for j in range(4):
        if j: a(f"s_xor_b32 s{sT0}, s{sWAVE}, {j}")
        a(f"s_mul_i32 s{sT0}, s{sT0 if j else sWAVE}, 9216")
        a(f"s_add_u32 s{sT0}, s{sT0}, {2*GSLOT}")
        a(f"v_add_u32 v{va+j}, s{sT0}, v{vL16}")
    spin_lds(a, va+5, f"s{sT2}", va+8)
    for j in range(1, 4):
        for k in range(3):
            a(f"ds_write_b128 v{va+j}, {vr(O[j]+4*k,4)} offset:{(j-1)*3072 + 1024*k}")
    a("s_waitcnt lgkmcnt(0)")
    a(f"ds_write_b32 v{va+7}, v{va+9}")
    t = S[1]
    a(f"s_mul_i32 s{sT0}, s{sKT if FULL else sHEAD}, 5")
    a(f"v_lshrrev_b32 v{t+5}, 5, v{vLANE}")
    a(f"v_add_u32 v{t+5}, s{sT0}, v{t+5}")
    a(f"v_and_b32 v{t+2}, 0x1f0, v{vL16}")
    a(f"v_lshrrev_b32 v{t+3}, 1, v{t+5}")
    a(f"v_lshl_add_u32 v{t+3}, v{t+3}, 9, v{t+2}")
    a(f"v_and_b32 v{t+5}, 1, v{t+5}")
    a(f"v_lshl_add_u32 v{t+3}, v{t+5}, 3, v{t+3}")
    a(f"s_mul_i32 s{sVO}, s{sTG}, {OH_TG}")
    a(f"s_add_u32 s{sVO}, s{sVO}, {WS_OH}")
    if FULL:
        a(f"s_cmp_lt_u32 s{sWAVE}, 4")
        a(f"s_mov_b32 s{sKO}, {OST[0]}")
        a(f"s_cselect_b32 s{sKO}, s{sKO}, {OST[1]}")
        a(f"v_add_u32 v{t+3}, s{sKO}, v{t+3}")
        for k in (5, 6, 7): a(f"v_mov_b32 v{t+3+k}, v{va+k}")
    spin_lds(a, va+6, "6", va+8)
    for j in range(1, 4):
        for k in range(3):
            a(f"ds_read_b128 {vr(O[j]+4*k,4)}, v{va} offset:{(j-1)*3072 + 1024*k}")
    OA = O[0]
    for j in range(1, 4):
        a(f"s_waitcnt lgkmcnt({9-3*j})")
        for k in range(12):
            a(f"v_add_f32 v{OA+k}, v{OA+k}, v{O[j]+k}")
    def get_l():
        a(f"v_mov_b32 v{t}, v{OA+8}")
        a(f"v_mov_b32 v{t+4}, v{OA+8}")
        a("s_nop 1")
        a(f"v_permlane32_swap_b32 v{t+4}, v{t}")
    get_l()
    a(f"v_add_f32 v{t+1}, |v{OA}|, |v{OA+1}|")
    for k in range(2, 8):
        a(f"v_add_f32 v{t+1}, v{t+1}, |v{OA+k}|")
    a(f"v_add_f32 v{t+2}, v{t+1}, |v{OA+8}|")
    for k in range(9, 12):
        a(f"v_add_f32 v{t+2}, v{t+2}, |v{OA+k}|")
    a(f"s_mov_b32 s{sT0}, {hx(2.0**120)}")
    a(f"s_mov_b32 s{sT1}, {hx(2.0**-100)}")
    a(f"s_mov_b32 s{sT2}, {hx(2.0**126)}")
    a(f"v_cmp_gt_f32 s[20:21], s{sT0}, v{t}")
    a(f"v_cmp_le_f32 {sr(sM,2)}, s{sT1}, v{t+1}")
    a(f"v_cmp_gt_f32 vcc, s{sT2}, v{t+2}")
    a("s_nop 1")
    a(f"s_and_b64 s[20:21], s[20:21], {sr(sM,2)}")
    a("s_and_b64 s[20:21], s[20:21], vcc")
    a("s_cmp_eq_u64 s[20:21], -1")
    a("s_cbranch_scc0 LF_fallback")
    a.label("LF_final")
    a(f"v_rcp_f32 v{t}, v{t}")
    a("s_nop 0")
    for k in range(12):
        a(f"v_mul_f32 v{OA+k}, v{OA+k}, v{t}")
    PA = P[0]
    for k in range(6):
        a(f"v_cvt_pk_bf16_f32 v{PA+k}, v{OA+2*k}, v{OA+2*k+1}")
    if FULL:
        a(f"ds_write_b64 v{t+3}, {vr(PA,2)}")
        a(f"ds_write_b64 v{t+3}, {vr(PA+2,2)} offset:512")
        a("s_mov_b32 exec_hi, 0")
        a(f"ds_write_b64 v{t+3}, {vr(PA+4,2)} offset:1024")
        a("s_mov_b64 exec, -1")
        a("s_branch LF_p3")
    else:
        a(f"buffer_store_dwordx2 {vr(PA,2)}, v{t+3}, {sr(sW,4)}, s{sVO} offen")
        a(f"buffer_store_dwordx2 {vr(PA+2,2)}, v{t+3}, {sr(sW,4)}, s{sVO} offen offset:512")
        a("s_mov_b32 exec_hi, 0")
        a(f"buffer_store_dwordx2 {vr(PA+4,2)}, v{t+3}, {sr(sW,4)}, s{sVO} offen offset:1024")
        a("s_mov_b64 exec, -1")
        a("s_branch LF_fin")
    a.label("LF_fallback")
    a("s_waitcnt vmcnt(0)")
    for r in (QH[0], QH[0]+1):
        a(f"v_cndmask_b32 v{r}, v{r}, 0, {sr(sHI,2)}")
    vm = P[1]
    SA = S[0]
    a(f"v_mov_b32 v{vm}, 0xff800000")
    a(f"s_mov_b32 s{sT0}, {WS_KV}")
    a.label("LF_fb1")
    a(f"buffer_load_dwordx4 {vr(KL[0],4)}, v{vL16}, {sr(sW,4)}, s{sT0} offen {RD}")
    a(f"buffer_load_dwordx2 {vr(KH[0],2)}, v{vL8}, {sr(sW,4)}, s{sT0} offen offset:3072 {RD}")
    a("s_waitcnt vmcnt(0)")
    a(mf16(SA, KL[0], QL[0], "0"))
    a(mf8(SA, KH[0], QH[0]))
    a("s_nop 11")
    max16(a, SA, vm, False)
    a(f"s_add_u32 s{sT0}, s{sT0}, {KVREC}")
    a(f"s_cmp_lt_u32 s{sT0}, {WS_KV + 64*KVREC}")
    a("s_cbranch_scc1 LF_fb1")
    halves_max(a, vm, vm+1)
    make_qhi(a, QH[0], vm, vm+2)
    for r in range(OA, OA+16):
        a(f"v_mov_b32 v{r}, 0")
    a(f"s_mov_b32 s{sT0}, {WS_KV}")
    a.label("LF_fb2")
    a(f"buffer_load_dwordx4 {vr(KL[0],4)}, v{vL16}, {sr(sW,4)}, s{sT0} offen {RD}")
    a(f"buffer_load_dwordx2 {vr(KH[0],2)}, v{vL8}, {sr(sW,4)}, s{sT0} offen offset:3072 {RD}")
    a(f"buffer_load_dwordx4 {vr(VV[0],4)}, v{vL16}, {sr(sW,4)}, s{sT0} offen offset:1024 {RD}")
    a(f"buffer_load_dwordx4 {vr(VV[0]+4,4)}, v{vL16}, {sr(sW,4)}, s{sT0} offen offset:2048 {RD}")
    a("s_waitcnt vmcnt(0)")
    a(mf16(SA, KL[0], QL[0], "0"))
    a(mf8(SA, KH[0], QH[0]))
    a("s_nop 11")
    for i in range(16):
        a(f"v_exp_f32 v{SA+i}, v{SA+i}")
    a("s_nop 0")
    for k in range(8):
        a(f"v_cvt_pk_bf16_f32 v{PA+k}, v{SA+2*k}, v{SA+2*k+1}")
    a("s_nop 1")
    a(mf16(OA, VV[0], PA, OA))
    a(mf16(OA, VV[0]+4, PA+4, OA))
    a(f"s_add_u32 s{sT0}, s{sT0}, {KVREC}")
    a(f"s_cmp_lt_u32 s{sT0}, {WS_KV + 64*KVREC}")
    a("s_nop 11")
    a("s_cbranch_scc1 LF_fb2")
    get_l()
    a("s_branch LF_final")


def gen_p3(a):
    t = S[1]
    vG, vGR, vRW, vC = 160, 161, 162, 163
    vNN = 164
    vA3, vR0, vAL, vX = 4, 5, 6, 7
    AC, B0, B1 = 8, 88, 124
    sAO3, sWO3, sN3, sPT, sOO, sTB, sNG = sB0, sTY, sU, sCSB, sF1, sHEAD, sG
    sXs, sOs = 24, 28
    a.label("LF_p3")
    a("s_waitcnt vmcnt(0)")
    a(f"v_mov_b32 v{vG}, v{t+8}")
    a(f"v_mov_b32 v{vGR}, v{t+9}")
    a(f"v_mov_b32 v{vRW}, v{t+10}")
    a(f"v_mov_b32 v{vC}, {NON}")
    a(f"ds_read_b64 {vr(vNN,2)}, v{vC}")
    a("s_load_dwordx2 s[6:7], s[0:1], 80")
    def mark(v):
        a(f"v_mov_b32 v{vC}, {v}")
        a(f"ds_write_b32 v{vRW}, v{vC}")
    a("s_waitcnt lgkmcnt(0)")
    mark(7)
    a(f"s_lshr_b32 s{sT0}, s{sHEAD}, 2")
    a(f"s_mul_i32 s{sT0}, s{sT0}, 5120")
    a(f"s_add_u32 s{sVO}, s{sVO}, s{sT0}")
    a(f"s_lshl_b32 s{sT0}, s{sKT}, 10")
    a(f"s_add_u32 s{sVO}, s{sVO}, s{sT0}")
    a(f"s_add_u32 s{sKO}, s{sKO}, s{sT0}")
    a(f"v_add_u32 v{vX}, s{sKO}, v{vL16}")
    a(f"s_lshl_b32 s{sT1}, s{sTG}, 8")
    a(f"s_lshl3_add_u32 s{sT1}, s{sHEAD}, s{sT1}")
    a(f"s_add_u32 s{sT1}, s{sT1}, {F_O}")
    spin_lds(a, vGR, 7, vC)
    a(f"ds_read_b128 {vr(B0,4)}, v{vX}")
    a(f"s_cmp_lg_u32 s{sKT}, 0")
    a("s_cbranch_scc1 LF_o1")
    a(f"ds_read_b128 {vr(B0+4,4)}, v{vX} offset:4096")
    a(f"s_add_u32 s{sT0}, s{sVO}, 4096")
    a("s_waitcnt lgkmcnt(0)")
    a(f"buffer_store_dwordx4 {vr(B0+4,4)}, v{vL16}, {sr(sW,4)}, s{sT0} offen {WT}")
    a.label("LF_o1")
    a("s_waitcnt lgkmcnt(0)")
    a(f"buffer_store_dwordx4 {vr(B0,4)}, v{vL16}, {sr(sW,4)}, s{sVO} offen {WT}")
    a(f"s_lshr_b32 s{sT0}, s{sJ}, 3")
    a(f"s_lshl2_add_u32 s{sTB}, s{sXC}, s{sT0}")
    a(f"s_and_b32 s{sNG}, s{sJ}, 7")
    srd(a, sXs, 4, 2048*1280)
    srd(a, sOs, 6, 2048*1280)
    a(f"s_mul_i32 s{sOO}, s{sTB}, {64*1280}")
    a(f"s_mul_i32 s{sT0}, s{sNG}, 160")
    a(f"s_add_u32 s{sOO}, s{sOO}, s{sT0}")
    def item_addr(r, go, lo, tp):
        if r == 0: a(f"v_mov_b32 v{tp}, v0")
        else:
            a(f"s_lshl_b32 s{sT0}, s{sWAVE}, 4")
            a(f"s_add_u32 s{sT0}, s{sT0}, 512")
            a(f"v_add_u32 v{tp}, s{sT0}, v{vLANE}")
        a(f"v_mul_u32_u24 v{tp+1}, 6554, v{tp}")
        a(f"v_lshrrev_b32 v{tp+1}, 16, v{tp+1}")
        a(f"v_mul_u32_u24 v{tp+2}, 10, v{tp+1}")
        a(f"v_sub_u32 v{tp+2}, v{tp}, v{tp+2}")
        a(f"v_mul_u32_u24 v{tp+3}, 1280, v{tp+1}")
        a(f"v_lshl_add_u32 v{go}, v{tp+2}, 4, v{tp+3}")
        if lo is not None:
            a(f"v_mul_u32_u24 v{tp+3}, {ROWP}, v{tp+1}")
            a(f"v_lshl_add_u32 v{lo}, v{tp+2}, 5, v{tp+3}")
    item_addr(0, B1+8, None, B1+4)
    item_addr(1, B1+9, None, B1+4)
    a(f"v_lshrrev_b32 v{B1}, 4, v{vLANE}")
    a(f"v_and_b32 v{B1+1}, 0xf0, v{vL16}")
    a(f"v_lshl_add_u32 v{vA3}, v{B1}, 9, v{B1+1}")
    a(f"v_mov_b32 v{vR0}, {FL + 1024}")
    a(f"v_and_b32 v{vAL}, 7, v{vLANE}")
    a(f"v_lshl_add_u32 v{vAL}, v{vAL}, 8, v{vR0}")
    for r in range(80): a(f"v_mov_b32 v{AC+r}, 0")
    put_flags(a, sT1, vNN, B1, ncp=2)
    mark(8)
    a(f"s_mov_b32 m0, s{sKO}")
    a(f"s_cmp_lg_u32 s{sKT}, 0")
    a(f"buffer_load_dwordx4 v{B1+8}, {sr(sXs,4)}, s{sOO} offen lds")
    a("s_cbranch_scc1 LF_x1")
    a(f"s_add_u32 m0, s{sKO}, 4096")
    a("s_nop 0")
    a(f"buffer_load_dwordx4 v{B1+9}, {sr(sXs,4)}, s{sOO} offen lds")
    a.label("LF_x1")
    stamp(a, 11)
    a("s_setprio 0")
    HF = int(os.environ.get("HF", "1"))
    a(f"s_mov_b32 s{sPT}, {HF}")
    a(f"v_mov_b32 v{vG}, {FL}")
    a(f"v_mov_b32 v{vR0}, {FL + 256}")
    a.label("LF_part")
    a(f"s_lshl2_add_u32 s{sT0}, s{sPT}, s{sWAVE}")
    if HF: a(f"s_add_u32 s{sT0}, s{sT0}, 4")
    a(f"s_and_b32 s{sT0}, s{sT0}, 7")
    a(f"s_cmp_lt_u32 s{sT0}, 4")
    a(f"s_cselect_b32 s{sN3}, 3, 2")
    a(f"s_cmp_eq_u32 s{sT0}, 3")
    a(f"s_cselect_b32 s{sT1}, 0, s{sPT}")
    a(f"s_add_u32 s{sN3}, s{sN3}, s{sT1}")
    a(f"s_mul_i32 s{sT1}, s{sPT}, 20")
    a(f"s_add_u32 s{sT0}, s{sT0}, s{sT1}")
    a(f"s_mul_i32 s{sAO3}, s{sTB}, {2*OH_TG}")
    a(f"s_lshl_b32 s{sT1}, s{sT0}, 11")
    a(f"s_add_u32 s{sAO3}, s{sAO3}, s{sT1}")
    a(f"s_add_u32 s{sAO3}, s{sAO3}, {WS_OH}")
    a(f"s_mul_i32 s{sWO3}, s{sNG}, 47")
    a(f"s_add_u32 s{sWO3}, s{sWO3}, s{sT0}")
    a(f"s_mul_i32 s{sWO3}, s{sWO3}, 5120")
    a(f"s_add_u32 s{sWO3}, s{sWO3}, {WS_WT}")
    def LW(b):
        a(f"s_add_u32 s{sT3}, s{sWO3}, 4096")
        for nb in range(4):
            a(f"buffer_load_dwordx4 {vr(b+16+4*nb,4)}, v{vL16}, {sr(sW,4)}, s{sWO3} offen offset:{1024*nb} {RD}")
        a(f"buffer_load_dwordx4 {vr(b+32,4)}, v{vL16}, {sr(sW,4)}, s{sT3} offen {RD}")
        a(f"s_add_u32 s{sWO3}, s{sWO3}, {8*5120}")
    def LA(b):
        a(f"s_add_u32 s{sT1}, s{sAO3}, {OH_TG}")
        a(f"buffer_load_dwordx4 {vr(b,4)}, v{vA3}, {sr(sW,4)}, s{sAO3} offen {RD}")
        a(f"buffer_load_dwordx4 {vr(b+4,4)}, v{vA3}, {sr(sW,4)}, s{sAO3} offen offset:256 {RD}")
        a(f"buffer_load_dwordx4 {vr(b+8,4)}, v{vA3}, {sr(sW,4)}, s{sT1} offen {RD}")
        a(f"buffer_load_dwordx4 {vr(b+12,4)}, v{vA3}, {sr(sW,4)}, s{sT1} offen offset:256 {RD}")
        a(f"s_add_u32 s{sAO3}, s{sAO3}, {8*2048}")
    def MM(b, w):
        a(f"s_waitcnt vmcnt({w})")
        for nb in range(5):
            for m in range(4):
                d = AC + (nb * 4 + m) * 4
                a(f"v_mfma_f32_16x16x32_bf16 {vr(d,4)}, {vr(b+16+4*nb,4)}, {vr(b+4*m,4)}, {vr(d,4)}")
    if 'pre' in EXP: LW(B0); LW(B1)
    a(f"s_cmp_eq_u32 s{sPT}, 1")
    a("s_cbranch_scc1 LF_wh")
    spin_lds(a, vR0, 65, vC, sleep=2)
    stamp(a, 3)
    a("s_branch LF_go")
    a.label("LF_wh")
    spin_lds(a, vG, 65, vC, sleep=2)
    a.label("LF_go")
    if 'pre' in EXP:
        LA(B0); LA(B1)
        MM(B0, 4)
    else:
        LA(B0); LW(B0); LA(B1); LW(B1)
        MM(B0, 9)
    a(f"s_cmp_eq_u32 s{sN3}, 2")
    a("s_cbranch_scc1 LF_l1")
    LA(B0); LW(B0)
    MM(B1, 9)
    a(f"s_cmp_eq_u32 s{sN3}, 3")
    a("s_cbranch_scc0 LF_n4")
    MM(B0, 0)
    a("s_branch LF_pe")
    a.label("LF_n4")
    LA(B1); LW(B1)
    MM(B0, 9)
    a.label("LF_l1")
    MM(B1, 0)
    a.label("LF_pe")
    a(f"s_cmp_eq_u32 s{sPT}, {1-HF}")
    a("s_cbranch_scc1 LF_red")
    a(f"s_mov_b32 s{sPT}, {1-HF}")
    stamp(a, 9)
    a("s_branch LF_part")
    a.label("LF_red")
    stamp(a, 10)
    XR, XO, LO, TP = 128, 136, 138, 144
    XCH = 4 * PART
    a(f"s_mul_i32 s{sT0}, s{sKT}, {PART}")
    a(f"s_mul_i32 s{sT1}, s{sWAVE}, 5120")
    a(f"s_mul_i32 s{sT1}, s{sKT}, 10240")
    a(f"s_add_u32 s{sT1}, s{sT1}, {XCH}")
    a(f"s_cmp_lt_u32 s{sWAVE}, 4")
    a(f"s_cselect_b32 s{sT2}, s{sT1}, s{sT0}")
    a(f"s_cselect_b32 s{sT3}, s{sT0}, s{sT1}")
    a(f"v_add_u32 v{vX}, s{sT2}, v{vL16}")
    a(f"v_add_u32 v{TP+9}, s{sT3}, v{vL16}")
    a(f"v_subrev_u32 v{vR0}, {FL + 1024}, v{vRW}")
    a(f"v_xor_b32 v{vR0}, 1024, v{vR0}")
    a(f"v_add_u32 v{vR0}, {FL + 1024}, v{vR0}")
    a("s_cbranch_scc0 LF_r1")
    for hi in range(2):
        keep, send = AC + 40*hi, AC + 40*(1-hi)
        if hi: a.label("LF_r1")
        for k in range(10):
            a(f"ds_write_b128 v{vX}, {vr(send+4*k,4)} offset:{1024*k}")
        a(f"v_and_b32 v{TP}, 15, v{vLANE}")
        a(f"v_mul_u32_u24 v{TP}, {ROWP}, v{TP}")
        a(f"v_lshrrev_b32 v{TP+1}, 4, v{vLANE}")
        a(f"v_lshl_add_u32 v{TP}, v{TP+1}, 4, v{TP}")
        a(f"v_add_u32 v{vA3}, s{sT0}, v{TP}")
        a("s_waitcnt lgkmcnt(0)")
        mark(11)
        spin_lds(a, vR0, 11, vC, sleep=1)
        a("s_setprio 2")
        for k in range(10):
            a(f"ds_read_b128 {vr(B0+4*k,4)}, v{TP+9} offset:{1024*k}")
        if not hi:
            a("s_waitcnt lgkmcnt(0)")
            mark(12)
        for k in range(10):
            if hi: a(f"s_waitcnt lgkmcnt({9-k})")
            a(f"v_pk_add_f32 {vr(keep+4*k,2)}, {vr(keep+4*k,2)}, {vr(B0+4*k,2)}")
            a(f"v_pk_add_f32 {vr(keep+4*k+2,2)}, {vr(keep+4*k+2,2)}, {vr(B0+4*k+2,2)}")
        if hi: spin_lds(a, vR0, 12, vC, sleep=0)
        for k in range(10):
            q = k + 10*hi
            a(f"ds_write_b128 v{vA3}, {vr(keep+4*k,4)} offset:{(q%4)*16*ROWP + (q//4)*64}")
        if not hi: a("s_branch LF_r2")
    a.label("LF_r2")
    a(f"v_add_u32 v{TP+8}, s{sKO}, v{vL16}")
    a(f"ds_read_b128 {vr(XR,4)}, v{TP+8}")
    a(f"ds_read_b128 {vr(XR+4,4)}, v{TP+8} offset:4096")
    item_addr(0, XO, LO, TP)
    a("s_waitcnt lgkmcnt(0)")
    mark(13)
    item_addr(1, XO+1, LO+1, TP)
    spin_lds(a, vAL, 13, vC, sleep=0)
    stamp(a, 4)
    def rd(r):
        b = AC + 32 * r
        for w in range(4):
            a(f"ds_read_b128 {vr(b+8*w,4)}, v{LO+r} offset:{w*PART}")
            a(f"ds_read_b128 {vr(b+8*w+4,4)}, v{LO+r} offset:{w*PART+16}")
    def fin(r):
        b = AC + 32 * r
        for i in range(4):
            a(f"v_lshlrev_b32 v{TP+2*i}, 16, v{XR+4*r+i}")
            a(f"v_and_b32 v{TP+1+2*i}, 0xffff0000, v{XR+4*r+i}")
        a("s_waitcnt lgkmcnt(0)")
        for i in range(4):
            a(f"v_pk_add_f32 {vr(b+2*i,2)}, {vr(b+2*i,2)}, {vr(b+8+2*i,2)}")
            a(f"v_pk_add_f32 {vr(b+16+2*i,2)}, {vr(b+16+2*i,2)}, {vr(b+24+2*i,2)}")
        for i in range(4):
            a(f"v_pk_add_f32 {vr(b+2*i,2)}, {vr(b+2*i,2)}, {vr(TP+2*i,2)}")
        for i in range(4):
            a(f"v_pk_add_f32 {vr(b+2*i,2)}, {vr(b+2*i,2)}, {vr(b+16+2*i,2)}")
        for i in range(4):
            a(f"v_cvt_pk_bf16_f32 v{b+8+i}, v{b+2*i}, v{b+2*i+1}")
        a(f"buffer_store_dwordx4 {vr(b+8,4)}, v{XO+r}, {sr(sOs,4)}, s{sOO} offen")
    rd(0)
    fin(0)
    a(f"s_cmp_lg_u32 s{sKT}, 0")
    a("s_cbranch_scc1 LF_fin")
    rd(1)
    fin(1)
    a("s_branch LF_fin")

zX0, zX1, zA, zB, zC, zPF, zZERO = 8, 9, 10, 11, 12, 13, 14
zNL = 160
GA = ((32, 48), (64, 80))
FB = (96, 112)
ZL = 144
vWa, vZa = 8, 14
vS0, vS1g = 4, 5
vFA, vFW, vONE, vFL = 6, 7, 20, 21
PFD = 4

def z_issue(a):
    a(f"s_add_u32 s{sT0}, s{sXD}, s{sSLOT}")
    a(f"s_add_u32 s{sT1}, s{sWD}, s{sSLOT}")
    a(f"s_mov_b32 m0, s{sT0}")
    a(f"s_add_u32 s{sT2}, s{sXO}, {16*1280}")
    a(f"buffer_load_dwordx4 v{zX0}, {sr(sX,4)}, s{sXO} offen lds")
    a(f"s_add_u32 m0, s{sT0}, 1024")
    a(f"s_add_u32 s{sSLOT}, s{sSLOT}, {SLOT}")
    a(f"buffer_load_dwordx4 v{zX1}, {sr(sX,4)}, s{sXO} offen lds")
    a(f"s_add_u32 m0, s{sT0}, 2048")
    a(f"s_add_u32 s{sXO}, s{sXO}, 128")
    a(f"buffer_load_dwordx4 v{zX0}, {sr(sX,4)}, s{sT2} offen lds")
    a(f"s_add_u32 m0, s{sT0}, 3072")
    a(f"s_cmp_eq_u32 s{sSLOT}, {4*SLOT}")
    a(f"buffer_load_dwordx4 v{zX1}, {sr(sX,4)}, s{sT2} offen lds")
    a(f"s_cselect_b32 s{sSLOT}, 0, s{sSLOT}")
    a(f"s_mov_b32 m0, s{sT1}")
    a("s_nop 0")
    a(f"buffer_load_dwordx4 v{zA}, {sr(sA,4)}, s{sAO} offen lds")
    a(f"s_add_u32 m0, s{sT1}, {4096-64}")
    a("s_nop 0")
    a(f"buffer_load_dwordx4 v{zA}, {sr(sA,4)}, s{sAO} offen offset:64 lds")
    a(f"s_add_u32 m0, s{sT1}, 8192")
    a(f"s_add_u32 s{sAO}, s{sAO}, s{sAS}")
    a(f"buffer_load_dwordx4 v{zB}, {sr(sB,4)}, s{sBO} offen lds")
    a(f"s_add_u32 m0, s{sT1}, {12288-64}")
    a("s_nop 0")
    a(f"buffer_load_dwordx4 v{zB}, {sr(sB,4)}, s{sBO} offen offset:64 lds")
    a(f"s_add_u32 m0, s{sT1}, 16384")
    a(f"s_add_u32 s{sBO}, s{sBO}, s{sBS}")
    a(f"buffer_load_dwordx4 v{zC}, {sr(sC,4)}, s{sCO} offen lds")
    a(f"s_add_u32 s{sCO}, s{sCO}, s{sCS_}")
    a(f"s_add_u32 s{sROT}, s{sROT}, 1")
    a(f"s_cmp_lg_u32 s{sROT}, 10")
    a("s_cbranch_scc1 LF_nowrap")
    a(f"s_sub_u32 s{sXO}, s{sXO}, 1280")
    for o, st in ((sAO, sAS), (sBO, sBS), (sCO, sCS_)):
        a(f"s_mul_i32 s{sT0}, s{st}, 10")
        a(f"s_sub_u32 s{o}, s{o}, s{sT0}")
    a.label("LF_nowrap")

def gen_loader(a):
    a(f"v_lshrrev_b32 v22, 3, v{vLANE}")
    a(f"v_mul_u32_u24 v22, 1280, v22")
    a(f"v_lshrrev_b32 v23, 4, v{vLANE}")
    a(f"v_xor_b32 v23, v23, v{vLANE}")
    a(f"v_and_b32 v23, 7, v23")
    a(f"v_lshl_add_u32 v{zX0}, v23, 4, v22")
    a(f"v_xor_b32 v23, 4, v23")
    a(f"v_lshl_add_u32 v{zX1}, v23, 4, v22")
    a(f"v_add_u32 v{zX1}, {8*1280}, v{zX1}")
    a(f"v_lshrrev_b32 v24, 2, v{vLANE}")
    a(f"s_lshl_b32 s{sT0}, s{sW4}, 4")
    a(f"v_add_u32 v24, s{sT0}, v24")
    a(f"v_and_b32 v25, 0x30, v{vL16}")
    a(f"s_lshl_b32 s{sXD}, s{sW4}, 12")
    a(f"s_lshl_b32 s{sWD}, s{sW4}, 10")
    a(f"s_add_u32 s{sWD}, s{sWD}, 16384")
    a(f"s_lshl2_add_u32 s{sTG}, s{sRB}, s{sW4}")
    a(f"s_mul_i32 s{sXO}, s{sTG}, {32*1280}")
    a(f"s_mov_b32 s{sSLOT}, 0")
    def pitch_col(cmp, colA, colB, sO, sStep, vdst):
        a(f"s_add_i32 s{sT0}, s{sG}, {colA}")
        a(f"s_add_i32 s{sT1}, s{sG}, {colB}")
        a(cmp)
        a(f"s_cselect_b32 s{sT2}, 27, 10")
        a(f"s_cselect_b32 s{sO}, s{sT0}, s{sT1}")
        a(f"s_lshl_b32 s{sT2}, s{sT2}, 7")
        a(f"s_lshl_b32 s{sStep}, s{sT2}, 6")
        a(f"s_lshl_b32 s{sO}, s{sO}, 7")
        a(f"v_mad_u32_u24 v{vdst}, v24, s{sT2}, v25")
    a(f"s_cmp_le_u32 s{sG}, 2")
    a(f"s_cselect_b32 s{sT1}, 2, -14")
    a(f"s_cselect_b32 s{sBO}, 13, -3")
    a(f"s_sub_u32 s{sT3}, s{sG}, 3")
    a(f"s_cmp_lt_u32 s{sT3}, 11")
    a(f"s_cselect_b32 s{sAO}, 13, s{sT1}")
    a(f"s_cselect_b32 s{sT2}, 27, 10")
    a(f"s_add_i32 s{sAO}, s{sAO}, s{sG}")
    a(f"s_add_i32 s{sBO}, s{sBO}, s{sG}")
    a(f"s_lshl_b32 s{sAO}, s{sAO}, 7")
    a(f"s_lshl_b32 s{sBO}, s{sBO}, 7")
    a(f"s_lshl_b32 s{sT2}, s{sT2}, 7")
    a(f"s_lshl_b32 s{sAS}, s{sT2}, 6")
    a(f"v_mad_u32_u24 v{zA}, v24, s{sT2}, v25")
    a(f"s_mul_i32 s{sA+2}, s{sT2}, 640")
    a(f"s_movk_i32 s{sT2}, 3456")
    a(f"s_mov_b32 s{sBS}, {3456*64}")
    a(f"v_mad_u32_u24 v{zB}, v24, s{sT2}, v25")
    a(f"s_mov_b32 s{sB+2}, {640*3456}")
    a(f"s_add_u32 s{sT0}, s{sG}, 8")
    a(f"s_add_u32 s{sT1}, s{sG}, 4")
    a(f"s_cmp_lt_u32 s{sG}, 10")
    a(f"s_cselect_b32 s{sT0}, s{sT0}, s{sT1}")
    a(f"s_lshl_b32 s{sT0}, s{sT0}, 6")
    a(f"s_movk_i32 s{sT1}, 1280")
    a(f"s_cmp_le_u32 s{sG}, 1")
    a(f"s_cselect_b32 s{sT2}, 40, s{sT1}")
    a(f"s_cselect_b32 s{sCO}, 0, s{sT0}")
    a(f"s_mul_i32 s{sC+2}, s{sT2}, 640")
    a(f"s_sub_u32 s{sT1}, s{sG}, 10")
    a(f"s_cmp_lt_u32 s{sT1}, 4")
    a(f"s_cselect_b32 s{sC+2}, 0, s{sC+2}")
    a(f"s_lshl_b32 s{sCS_}, s{sT2}, 6")
    a(f"v_mad_u32_u24 v{zC}, v24, s{sT2}, v25")
    RG, RR = (int(v) for v in os.environ.get("ROT1", "5,10").split(","))
    a(f"s_and_b32 s{sT0}, s{sG}, 7")
    a(f"s_mul_i32 s{sT0}, s{sT0}, {RG}")
    a(f"s_and_b32 s{sT1}, s{sRB}, 3")
    a(f"s_mul_i32 s{sT1}, s{sT1}, {RR}")
    a(f"s_add_u32 s{sT0}, s{sT0}, s{sT1}")
    a(f"s_lshr_b32 s{sROT}, s{sT0}, 2")
    a(f"s_sub_u32 s{sT0}, s{sROT}, 10")
    a(f"s_cselect_b32 s{sROT}, s{sROT}, s{sT0}")
    a(f"s_lshl_b32 s{sT0}, s{sROT}, 7")
    a(f"s_add_u32 s{sXO}, s{sXO}, s{sT0}")
    for o, st in ((sAO, sAS), (sBO, sBS), (sCO, sCS_)):
        a(f"s_mul_i32 s{sT0}, s{st}, s{sROT}")
        a(f"s_add_u32 s{o}, s{o}, s{sT0}")
    for r in (sX+3, sA+3, sB+3, sC+3, sW+3):
        a(f"s_mov_b32 s{r}, 0x20000")
    a(f"s_mov_b32 s{sX+2}, {2048*1280}")
    a(f"s_mov_b32 s{sW+2}, {WS_END}")
    a("s_waitcnt lgkmcnt(0)")
    a(f"s_mov_b64 {sr(sX,2)}, s[4:5]")
    a(f"s_mov_b64 {sr(sW,2)}, s[18:19]")
    a(f"s_cmp_lt_u32 s{sT3}, 11")
    a(f"s_cselect_b64 {sr(sA,2)}, s[12:13], s[6:7]")
    a(f"s_mov_b64 {sr(sB,2)}, s[12:13]")
    a(f"s_cmp_eq_u32 s{sG}, 0")
    a(f"s_cselect_b64 {sr(sC,2)}, s[8:9], s[10:11]")
    a(f"s_cmp_le_u32 s{sG}, 1")
    a(f"s_cselect_b64 {sr(sC,2)}, {sr(sC,2)}, s[6:7]")
    a(f"s_mov_b32 s{sLOOP}, 0")
    a.label("LF_zloop")
    z_issue(a)
    a(f"s_add_u32 s{sLOOP}, s{sLOOP}, 1")
    NPRO = int(os.environ.get("NPRO", "2"))
    a(f"s_cmp_eq_u32 s{sLOOP}, {NPRO}")
    a("s_cbranch_scc1 LF_zfirst")
    a(f"s_cmp_lt_u32 s{sLOOP}, 4")
    a("s_cbranch_scc1 LF_zloop")
    a(f"s_cmp_eq_u32 s{sLOOP}, 10")
    a("s_cbranch_scc1 LF_ztail")
    a("s_waitcnt vmcnt(18)")
    a("s_barrier")
    a("s_branch LF_zloop")
    a.label("LF_zfirst")
    a(f"s_waitcnt vmcnt({9*(NPRO-1)})")
    a("s_barrier")
    stamp(a, 1)
    a("s_branch LF_zloop")

def g_dma_groups(slot, part="wz"):
    b = slot * GSLOT
    g = []
    if "w" in part:
        g += [[f"s_add_u32 m0, s{sSPD}, {b}", f"s_add_u32 s{sT0}, s{sSPO}, 65536",
               f"buffer_load_dwordx4 v{vS0}, {sr(sSP,4)}, s{sSPO} offen lds"],
              [f"s_add_u32 m0, s{sSPD}, {b+1024}", f"s_add_u32 s{sT1}, s{sSPO}, 128",
               f"buffer_load_dwordx4 v{vS1g}, {sr(sSP,4)}, s{sSPO} offen lds"],
              [f"s_add_u32 m0, s{sSPD}, {b+2048}", f"s_and_b32 s{sT1}, s{sT1}, 0xfff",
               f"buffer_load_dwordx4 v{vS0}, {sr(sSP,4)}, s{sT0} offen lds"],
              [f"s_add_u32 m0, s{sSPD}, {b+3072}", f"s_or_b32 s{sSPO}, s{sSPB}, s{sT1}",
               f"buffer_load_dwordx4 v{vS1g}, {sr(sSP,4)}, s{sT0} offen lds"]]
    if "z" in part:
        g += [[f"s_add_u32 m0, s{sZD}, {b+16384}", f"s_add_u32 s{sT1}, s{sZO}, 4096",
               f"buffer_load_dwordx4 v{vL16}, {sr(sW,4)}, s{sZO} offen {RD} lds"],
              [f"s_and_b32 s{sT1}, s{sT1}, 0x1ffff",
               f"buffer_load_dwordx4 v{vL16}, {sr(sW,4)}, s{sZO} offen offset:1024 {RD} lds",
               f"s_or_b32 s{sZO}, s{sZB}, s{sT1}"]]
    return g
def g_dma(a, slot, part="wz"):
    for g in g_dma_groups(slot, part):
        for x in g: a(x)

def arrive(a): a(f"ds_add_u32 v{vFW}, v{vONE}")
def flag_read(a): a(f"ds_read_b32 v{vFL}, v{vFA}")
def flag_check(a, sleep=False, low=True):
    L = uid("sb")
    if low: a("s_setprio 3")
    a("s_waitcnt lgkmcnt(0)")
    a(f"v_cmp_gt_u32 vcc, s{sNEED}, v{vFL}")
    a("s_nop 0")
    a(f"s_cbranch_vccz {L}d")
    a.label(L)
    if sleep: a("s_sleep 2")
    flag_read(a)
    a("s_waitcnt lgkmcnt(0)")
    a(f"v_cmp_gt_u32 vcc, s{sNEED}, v{vFL}")
    a("s_nop 0")
    a(f"s_cbranch_vccnz {L}")
    a.label(L + "d")
    if low: a(f"s_setprio {os.environ.get('GLOW', '0')}")

def g_reads(i, ks):
    slot = i % NSL
    st, so = slot // 2, (slot % 2) * GSLOT
    f = FB[ks]
    return [f"ds_read_b128 {vr(f,4)}, v{vWa+2*st+ks} offset:{so}",
            f"ds_read_b128 {vr(f+8,4)}, v{vZa+2*st} offset:{so + ks*1024}",
            f"ds_read_b128 {vr(f+4,4)}, v{vWa+2*st+ks} offset:{so + 4096}",
            f"ds_read_b128 {vr(f+12,4)}, v{vZa+2*st+1} offset:{so + ks*1024}"]

def g_step(a, i, issue, wait, last=False):
    def M(ks, u, v):
        f = FB[ks]
        a(mf16(GA[u][v], f+8+4*v, f+4*u, GA[u][v]))
    D = g_dma_groups((i + PFD) % NSL) if issue else [[]] * 6
    def dma(k):
        for x in D[k]: a(x)
    r1 = g_reads(i, 1)
    r0 = g_reads(i + 1, 0)
    a("s_waitcnt lgkmcnt(2)")
    M(0, 0, 0)
    a(r1[0]); a(r1[1])
    a("s_waitcnt lgkmcnt(3)")
    M(0, 1, 0)
    a(r1[2]); a(r1[3])
    a("s_waitcnt lgkmcnt(4)")
    M(0, 0, 1)
    dma(0)
    flag_read(a)
    M(0, 1, 1)
    dma(1)
    a(f"s_add_u32 s{sNEED}, s{sNEED}, 1")
    flag_check(a)
    M(1, 0, 0)
    a(f"s_waitcnt vmcnt({wait})")
    arrive(a)
    if not last: a(r0[0]); a(r0[1])
    M(1, 1, 0)
    if not last: a(r0[2]); a(r0[3])
    dma(2)
    M(1, 0, 1)
    dma(3); dma(4)
    M(1, 1, 1)
    dma(5)

def gen_gemm(a):
    gw = sW4
    NR, NS = 128, 96
    a.label("LF_ztail")
    a(f"v_mov_b32 v{zZERO}, 0")
    a(f"v_lshlrev_b32 v{zPF}, 7, v{vLANE}")
    a(f"s_cmp_lg_u32 s{sW4}, 0")
    a(f"s_cbranch_scc1 LF_nonl")
    a(f"global_load_dwordx4 {vr(zNL,4)}, v{zZERO}, s[16:17] sc0 sc1")
    a.label("LF_nonl")
    a("s_load_dwordx4 s[8:11], s[0:1], 56")
    a("s_load_dwordx2 s[4:5], s[0:1], 32")
    a("s_load_dwordx2 s[6:7], s[0:1], 72")
    a("s_waitcnt vmcnt(18)")
    a("s_barrier")
    a(f"s_lshr_b32 s{sT0}, s{sXC}, 1")
    a(f"s_lshl_b32 s{sT0}, s{sT0}, 7")
    a(f"s_lshl2_add_u32 s{sT0}, s{sJ}, s{sT0}")
    a(f"s_add_u32 s{sT0}, s{sT0}, s{sW4}")
    a(f"s_lshl_b32 s{sT1}, s{sT0}, 14")
    a(f"s_and_b32 s{sT0}, s{sXC}, 1")
    a(f"s_lshl_b32 s{sT0}, s{sT0}, 13")
    a(f"s_add_u32 s{sT1}, s{sT1}, s{sT0}")
    a(f"s_xor_b32 s{sT0}, s{sT1}, 8192")
    a("s_waitcnt lgkmcnt(0)")
    srd(a, sSP, 8, 2048*4096)
    srd(a, sBI, 10, 4096)
    NT = int(os.environ.get("NTOUCH", "2"))
    a(f"buffer_load_dword v22, v{zPF}, {sr(sSP,4)}, s{sT1} offen")
    if NT == 2: a(f"buffer_load_dword v22, v{zPF}, {sr(sSP,4)}, s{sT0} offen")
    a(f"v_and_b32 v{vFA}, 3, v{vLANE}")
    a(f"v_lshlrev_b32 v{vFA}, 8, v{vFA}")
    a(f"v_add_u32 v{vFA}, {FL}, v{vFA}")
    a(f"v_and_b32 v31, 7, v{vLANE}")
    a(f"v_lshlrev_b32 v31, 8, v31")
    a(f"v_add_u32 v31, {FL + 1024}, v31")
    a(f"s_sub_u32 s{sCG}, s{sG}, 3")
    a(f"s_cmp_eq_u32 s{sG}, 0")
    a(f"s_cselect_b32 s{sCG}, 13, s{sCG}")
    a(f"v_and_b32 v164, 31, v{vLANE}")
    a(f"v_lshrrev_b32 v165, 5, v{vLANE}")
    a(f"s_lshl_b32 s{sSPD}, s{gw}, 12")
    a(f"s_add_u32 s{sT2}, s{sSPD}, {NSC}")
    a(f"v_lshlrev_b32 v24, 6, v164")
    a(f"v_lshl_add_u32 v24, v165, 3, v24")
    a(f"v_add_u32 v24, s{sT2}, v24")
    a(f"v_bfe_u32 v23, v{vLANE}, 2, 2")
    a(f"v_lshl_add_u32 v23, v165, 3, v23")
    a(f"v_lshlrev_b32 v23, 6, v23")
    a(f"v_bfe_u32 v167, v{vLANE}, 4, 1")
    a(f"v_lshl_add_u32 v23, v167, 5, v23")
    a(f"v_and_b32 v167, 3, v{vLANE}")
    a(f"v_lshl_add_u32 v23, v167, 3, v23")
    a(f"v_add_u32 v23, s{sT2}, v23")
    a(f"s_add_u32 s{sT2}, s{sSPD}, {ZP}")
    a(f"v_add_u32 v27, s{sT2}, v{vL16}")
    a(f"s_waitcnt vmcnt({9+NT})")
    a("s_barrier")
    a(f"s_lshl_b32 s{sZD}, s{gw}, 11")
    a(f"s_lshl_b32 s{sSPO}, s{sRB}, 19")
    a(f"s_lshl_b32 s{sT0}, s{gw}, 17")
    a(f"s_add_u32 s{sSPO}, s{sSPO}, s{sT0}")
    a(f"s_lshr_b32 s{sT2}, s{gw}, 1")
    a(f"s_lshl1_add_u32 s{sFB}, s{sCG}, s{sT2}")
    a(f"s_lshl_b32 s{sZB}, s{sFB}, 17")
    a(f"s_add_u32 s{sZB}, s{sZB}, {WS_Z2}")
    a(f"s_and_b32 s{sTH}, s{gw}, 1")
    a(f"s_lshl_b32 s{sT0}, s{sTH}, 11")
    a(f"s_add_u32 s{sZO}, s{sZB}, s{sT0}")
    assert WS_Z2 % 0x20000 == 0
    a(f"s_mov_b32 s{sSPB}, s{sSPO}")
    RC, RR = (int(v) for v in os.environ.get("ROT2", "9,32").split(","))
    a(f"s_mul_i32 s{sT0}, s{sCG}, {RC}")
    a(f"s_mul_i32 s{sT1}, s{sRB}, {RR}")
    a(f"s_add_u32 s{sT0}, s{sT0}, s{sT1}")
    a(f"s_bfe_u32 s{sT0}, s{sT0}, 0x50002")
    a(f"s_lshl_b32 s{sT1}, s{sT0}, 7")
    a(f"s_add_u32 s{sSPO}, s{sSPO}, s{sT1}")
    a(f"s_lshl_b32 s{sT1}, s{sT0}, 12")
    a(f"s_add_u32 s{sZO}, s{sZO}, s{sT1}")
    a(f"v_lshrrev_b32 v166, 3, v{vLANE}")
    a(f"v_lshlrev_b32 v166, 12, v166")
    a(f"v_lshrrev_b32 v167, 4, v{vLANE}")
    a(f"v_xor_b32 v167, v167, v{vLANE}")
    a(f"v_and_b32 v167, 7, v167")
    a(f"v_lshl_add_u32 v{vS0}, v167, 4, v166")
    a(f"v_xor_b32 v167, 4, v167")
    a(f"v_lshl_add_u32 v{vS1g}, v167, 4, v166")
    a(f"v_add_u32 v{vS1g}, {8*4096}, v{vS1g}")
    a(f"v_bfe_u32 v166, v164, 1, 3")
    a(f"v_xor_b32 v166, v166, v165")
    a(f"s_lshl_b32 s{sT1}, s{sT2}, 2")
    a(f"v_xor_b32 v166, s{sT1}, v166")
    a(f"v_lshlrev_b32 v166, 4, v166")
    a(f"v_lshl_add_u32 v166, v164, 7, v166")
    a(f"s_lshl_b32 s{sT0}, s{sTH}, 13")
    a(f"v_add_u32 v{vWa}, s{sT0}, v166")
    a(f"v_xor_b32 v{vWa+1}, 32, v{vWa}")
    a(f"s_waitcnt vmcnt({NT})")
    a("s_barrier")
    a(f"s_cmp_lg_u32 s{sW4}, 0")
    a("s_cbranch_scc1 LF_nnw")
    a(f"s_mov_b32 s{sT1}, 0x20000")
    a.label("LF_npoll")
    a(f"v_cmp_eq_u32 vcc, 1, v{zNL+2}")
    a("s_nop 0")
    a("s_cbranch_vccnz LF_ngot")
    a(f"global_load_dwordx4 {vr(zNL,4)}, v{zZERO}, s[16:17] sc0 sc1")
    a("s_waitcnt vmcnt(0)")
    a(f"s_sub_u32 s{sT1}, s{sT1}, 1")
    a("s_cbranch_scc0 LF_npoll")
    a.label("LF_ngot")
    a(f"v_mov_b32 v25, {NON}")
    a(f"ds_write_b64 v25, {vr(zNL,2)}")
    a("s_waitcnt lgkmcnt(0)")
    a.label("LF_nnw")
    a(f"s_mul_i32 s{sT0}, s{sT2}, {4096+2048}")
    a(f"s_add_u32 s{sT0}, s{sT0}, 16384")
    a(f"v_add_u32 v{vZa}, s{sT0}, v{vL16}")
    a(f"v_xor_b32 v{vZa+1}, 4096, v{vZa}")
    for st in (1, 2):
        for k in range(2):
            a(f"v_add_u32 v{vWa+2*st+k}, {2*GSLOT*st}, v{vWa+k}")
            a(f"v_add_u32 v{vZa+2*st+k}, {2*GSLOT*st}, v{vZa+k}")
    a(f"v_mov_b32 v{vONE}, 1")
    a(f"v_mov_b32 v26, 0xffff0000")
    a(f"v_mov_b32 v25, {NON}")
    a("s_barrier")
    a(f"ds_read_b64 {vr(zNL,2)}, v25")
    a("s_barrier")
    stamp(a, 3)
    NW0 = 2
    a(f"s_cmp_ge_u32 s{sCG}, 14")
    a("s_cbranch_scc1 LF_now")
    a(f"s_lshl_b32 s{sT0}, s{sRB}, 8")
    a(f"s_lshl_b32 s{sT1}, s{sTH}, 7")
    a(f"s_add_u32 s{sT0}, s{sT0}, s{sT1}")
    a(f"v_lshlrev_b32 v166, 1, v164")
    a(f"buffer_load_ushort v28, v166, {sr(sBI,4)}, s{sT0} offen")
    a(f"buffer_load_ushort v29, v166, {sr(sBI,4)}, s{sT0} offen offset:64")
    for c in range(NW0): g_dma(a, c, "w")
    a.label("LF_now")
    for r in range(16):
        a(f"v_mov_b32 v{GA[0][1]+r}, 0")
        a(f"v_mov_b32 v{GA[1][1]+r}, 0")
    a(f"s_cmp_le_u32 s{sG}, 2")
    a(f"s_cselect_b32 s{sT0}, 2, 1")
    spin_lds(a, 31, f"s{sT0}", 30, sleep=2)
    stamp(a, 4)
    a(f"s_cmp_ge_u32 s{sG}, 14")
    a("s_cbranch_scc1 LF_nonorm")
    UN = GA[0][0]
    UN2 = GA[1][0]
    for q in range(4):
        a(f"ds_read_b128 {vr(NR+4*q,4)}, v27 offset:{1024*q}")
    a(f"s_lshl_b32 s{sT3}, s{sTG}, 13")
    a(f"s_add_u32 s{sT3}, s{sT3}, {WS_ST}")
    a(f"s_add_u32 s{sT2}, s{sT3}, 4096")
    a(f"s_cmp_eq_u32 s{sG}, 0")
    a(f"s_cselect_b32 s{sT0}, 0, -1")
    a(f"s_cselect_b32 s{sT1}, 0, 0xffff0000")
    for r in range(4): a(f"v_mov_b32 v{124+r}, 0")
    a("s_waitcnt lgkmcnt(2)")
    for k in range(8): a(f"v_and_b32 v{NR+k}, s{sT0}, v{NR+k}")
    for k in range(16):
        if k == 8: a("s_waitcnt lgkmcnt(0)")
        un = (UN, UN2)[k >> 3] + 2*(k & 7)
        a(f"v_lshlrev_b32 v{un}, 16, v{NR+k}")
        a(f"v_and_b32 v{un+1}, v26, v{NR+k}")
        a(f"v_pk_add_f32 v[124:125], v[124:125], {vr(un,2)}")
        a(f"v_pk_fma_f32 v[126:127], {vr(un,2)}, {vr(un,2)}, v[126:127]")
    a(f"v_add_f32 v124, v124, v125")
    a(f"v_add_f32 v126, v126, v127")
    a(f"s_lshl_b32 s{sT1}, s{sG}, 9")
    a(f"s_add_u32 s{sT1}, s{sT1}, s{sT3}")
    a(f"v_permlane32_swap_b32 v124, v126")
    a("s_nop 0")
    a(f"v_add_f32 v124, v124, v126")
    a(f"v_mov_b32 v125, v124")
    a(f"v_mov_b32 v126, v{zNL}")
    a(f"v_mov_b32 v127, v{zNL+1}")
    a(f"v_permlane32_swap_b32 v124, v125")
    a("s_mov_b32 exec_hi, 0")
    a(f"buffer_store_dwordx4 v[124:127], v{vL16}, {sr(sW,4)}, s{sT1} offen {WT}")
    a("s_mov_b32 exec_hi, -1")
    if 'stw' in EXP: spin_lds(a, 31, 2, 30, sleep=2)
    a("s_waitcnt vmcnt(0)")
    a(f"s_sleep {int(os.environ.get('STD', '8'))}")
    poll_tags(a, [(f"buffer_load_dwordx4 {vr(NS+4*i,4)}, v{vL16}, {sr(sW,4)}, s{sT3 if i < 4 else sT2} offen offset:{1024*(i%4)} sc0 sc1", NS+4*i+2) for i in range(7)], zNL, sT0, sleep=SL2)
    stamp(a, 9)
    for i in (1, 2, 3):
        a(f"v_add_f32 v{NS+4*i}, v{NS+4*i}, v{NS+4*i+12}")
        a(f"v_add_f32 v{NS+4*i+1}, v{NS+4*i+1}, v{NS+4*i+13}")
    for i in (1, 2, 3):
        a(f"v_add_f32 v{NS}, v{NS}, v{NS+4*i}")
        a(f"v_add_f32 v{NS+1}, v{NS+1}, v{NS+4*i+1}")
    a(f"s_lshl_b32 s{sT1}, s{sG}, 1")
    a(f"s_sub_u32 s{sT0}, s{sT1}, 1")
    a(f"v_permlane32_swap_b32 v{NS}, v{NS+1}")
    a(f"s_cselect_b32 s{sT0}, 27, s{sT0}")
    a(f"v_add_f32 v{NS}, v{NS}, v{NS+1}")
    a(f"v_mul_f32 v{NS}, {hx(1.0/864)}, v{NS}")
    a(f"v_mov_b32 v{NS+1}, v{NS}")
    a(f"s_lshl_b32 s{sT2}, s{sT0}, 9")
    a(f"s_lshl_b32 s{sT3}, s{sT1}, 9")
    a(f"v_permlane32_swap_b32 v{NS}, v{NS+1}")
    a(f"s_lshl_b32 s{sT0}, s{sT0}, 17")
    a(f"v_fma_f32 v{NS+1}, -v{NS}, v{NS}, v{NS+1}")
    a(f"v_max_f32 v{NS+1}, 0, v{NS+1}")
    a(f"v_add_f32 v{NS+1}, {hx(1e-5)}, v{NS+1}")
    a(f"v_rsq_f32 v{NS+1}, v{NS+1}")
    a(f"s_lshl_b32 s{sT1}, s{sT1}, 17")
    a(f"v_mul_f32 v{NS}, -v{NS}, v{NS+1}")
    a(f"s_lshl_b32 s{sLOOP}, s{sTG}, 11")
    a(f"s_add_u32 s{sLOOP}, s{sLOOP}, {WS_Z2}")
    a(f"s_add_u32 s{sT0}, s{sT0}, s{sLOOP}")
    a(f"s_add_u32 s{sT1}, s{sT1}, s{sLOOP}")
    a(f"s_lshl3_add_u32 s{sLOOP}, s{sTG}, {F_Z2}")
    a(f"s_add_u32 s{sT2}, s{sT2}, s{sLOOP}")
    a(f"s_add_u32 s{sT3}, s{sT3}, s{sLOOP}")
    for q in range(4):
        for k in range(4):
            un = (UN, UN2)[q >> 1] + 2*(4*(q & 1) + k)
            a(f"v_fma_f32 v{un}, v{un}, v{NS+1}, v{NS}")
            a(f"v_fma_f32 v{un+1}, v{un+1}, v{NS+1}, v{NS}")
            a(f"v_cvt_pk_bf16_f32 v{NR+4*q+k}, v{un}, v{un+1}")
        for k in range(2):
            a(f"ds_write_b64 v24, {vr(NR+4*q+2*k,2)} offset:{(q>>1)*2048 + (q&1)*32 + 16*k}")
    a("s_waitcnt lgkmcnt(0)")
    for q in range(4):
        for k in range(2):
            a(f"ds_read_b64_tr_b16 {vr(NR+4*q+2*k,2)}, v23 offset:{q*1024 + k*256}")
    for q in range(4):
        a(f"s_waitcnt lgkmcnt({6-2*q})")
        a(f"buffer_store_dwordx4 {vr(NR+4*q,4)}, v{vL16}, {sr(sW,4)}, s{(sT0, sT1)[q>>1]} offen offset:{1024*(q&1)} {WT}")
    put_flags(a, sT2, zNL, 166)
    put_flags(a, sT3, zNL, 166, wait=False)
    if 'zw' in EXP: a("s_waitcnt vmcnt(0)")
    a.label("LF_nonorm")
    stamp(a, 10)
    a(f"s_cmp_ge_u32 s{sCG}, 14")
    a("s_cbranch_scc1 LF_idle")
    a(f"s_lshl_b32 s{sTG}, s{sRB}, 2")
    a(f"s_lshl1_add_u32 s{sTG}, s{sTH}, s{sTG}")
    spin_lds(a, 31, 2, 30, sleep=2)
    a(f"s_lshl_b32 s{sT0}, s{sTH}, 13")
    a(f"s_lshr_b32 s{sT1}, s{gw}, 1")
    a(f"s_lshl_b32 s{sT1}, s{sT1}, 11")
    a(f"s_add_u32 s{sT0}, s{sT0}, s{sT1}")
    a(f"s_add_u32 s{sT0}, s{sT0}, {Z1P}")
    a(f"v_add_u32 v30, s{sT0}, v{vL16}")
    for q in range(4):
        a(f"ds_read_b128 {vr(ZL+4*q,4)}, v30 offset:{(q>>1)*4096 + (q&1)*1024}")
    a("s_waitcnt vmcnt(2) lgkmcnt(0)")
    a(f"v_lshlrev_b32 v28, 16, v28")
    a(f"v_lshlrev_b32 v29, 16, v29")
    for r in range(16):
        a(f"v_mov_b32 v{GA[0][0]+r}, v28")
        a(f"v_mov_b32 v{GA[1][0]+r}, v29")
    a(f"s_cmp_lg_u32 s{gw}, 0")
    a("s_cbranch_scc1 LF_gnp")
    a(f"s_lshl_b32 s{sT1}, s{sCG}, 10")
    a(f"s_add_u32 s{sT1}, s{sT1}, {F_Z2}")
    poll_tags(a, [(f"buffer_load_dwordx4 {vr(NS,4)}, v{vL16}, {sr(sW,4)}, s{sT1} offen {PL}", (NS, NS+2))], zNL, sT0, sleep=SL3, adv=(sT1,))
    a.label("LF_gnp")
    stamp(a, 11)
    arrive(a); flag_read(a)
    a(f"s_mov_b32 s{sNEED}, 1")
    flag_check(a, sleep=True, low=False)
    for c in range(PFD): g_dma(a, c, "z" if c < NW0 else "wz")
    spin_lds(a, 31, 5, 30, sleep=2)
    a(f"s_waitcnt vmcnt({6*(PFD-2)})")
    arrive(a); flag_read(a)
    a(f"s_mov_b32 s{sNEED}, 2")
    flag_check(a)
    a(f"s_mov_b32 s{sNEED}, 1")
    for x in g_reads(0, 0): a(x)
    stamp(a, 5); stamp_rt(a, 12)
    a(f"s_mov_b32 s{sLOOP}, 4")
    a.raw(".p2align 6")
    a.label("LF_gloop")
    st = len(a.lines)
    WS = 6 * (PFD - 3) + 2
    for i in range(NSL):
        g_step(a, i, True, WS)
    a(f"s_sub_u32 s{sLOOP}, s{sLOOP}, 1")
    a(f"s_cmp_lg_u32 s{sLOOP}, 0")
    a("s_cbranch_scc1 LF_gloop")
    for p in check_linear(a.lines[st:] + a.lines[st:], "kf gemm loop x2"): print("HAZARD", p)
    if 'wt' in EXP:
        a("s_setprio 3")
        a(f"s_mov_b32 s{sT2}, {F_W}")
        a(f"buffer_load_dwordx4 {vr(128,4)}, v{vL16}, {sr(sW,4)}, s{sT2} offen {PL}")
    for i in range(24, 32 - PFD):
        g_step(a, i, True, WS)
        if 'wt' in EXP and i == 25:
            a("s_setprio 3")
            a(f"v_cmp_ne_u64 vcc, v[128:129], {vr(zNL,2)}")
            a(f"v_cmp_ne_u64 {sr(sM,2)}, v[130:131], {vr(zNL,2)}")
            a(f"v_lshlrev_b32 v132, 7, v{vLANE}")
            a(f"s_or_b64 vcc, vcc, {sr(sM,2)}")
            a("s_cbranch_vccnz LF_nt")
            a(f"s_lshl2_add_u32 s{sT0}, s{sJ}, s{gw}")
            a(f"s_lshl_b32 s{sT0}, s{sT0}, 14")
            a(f"s_add_u32 s{sT0}, s{sT0}, {WS_WT}")
            a(f"buffer_load_dword v133, v132, {sr(sW,4)}, s{sT0} offen {RD}")
            a(f"s_add_u32 s{sT0}, s{sT0}, 8192")
            a(f"buffer_load_dword v133, v132, {sr(sW,4)}, s{sT0} offen {RD}")
            a.label("LF_nt")
    for i in range(32 - PFD, 32):
        g_step(a, i, False, 6 * max(0, 31 - (i + 2)), last=(i == 31))
    stamp(a, 6); stamp_rt(a, 13)
    a("s_setprio 3")
    a(f"s_lshl_b32 s{sT0}, s{sTH}, 13")
    a(f"s_add_u32 s{sT1}, s{sT0}, {5*GSLOT}")
    a(f"s_cmp_lt_u32 s{gw}, 2")
    a(f"s_cselect_b32 s{sT2}, s{sT1}, s{sT0}")
    a(f"s_cselect_b32 s{sT0}, s{sT0}, s{sT1}")
    a(f"v_add_u32 v22, s{sT2}, v{vL16}")
    a(f"v_add_u32 v23, s{sT0}, v{vL16}")
    a("s_nop 4")
    for u in range(2):
        for k in range(4):
            a(f"ds_write_b128 v22, {vr(GA[u][1]+4*k,4)} offset:{u*4096 + k*1024}")
    a("s_waitcnt lgkmcnt(0)")
    arrive(a); flag_read(a)
    a(f"s_add_u32 s{sNEED}, s{sNEED}, 2")
    flag_check(a, low=False)
    a(f"s_cmp_ge_u32 s{sFB}, 27")
    a("s_cbranch_scc1 LF_gend")
    for u in range(2):
        for k in range(4):
            a(f"ds_read_b128 {vr(GA[u][1]+4*k,4)}, v23 offset:{u*4096 + k*1024}")
    a(f"s_mul_i32 s{sT0}, s{sTG}, {OH_TG}")
    a(f"s_lshl_b32 s{sT1}, s{sFB}, 11")
    a(f"s_add_u32 s{sT0}, s{sT0}, s{sT1}")
    a(f"s_add_u32 s{sT0}, s{sT0}, {WS_OH + 40960}")
    a("s_waitcnt vmcnt(0)")
    for u in range(2):
        G, H = GA[u]
        a(f"s_waitcnt lgkmcnt({4-4*u})")
        for k in range(8):
            z = ZL + 8*u + k
            a(f"v_add_f32 v{G+2*k}, v{G+2*k}, v{H+2*k}")
            a(f"v_add_f32 v{G+2*k+1}, v{G+2*k+1}, v{H+2*k+1}")
            a(f"v_lshlrev_b32 v24, 16, v{z}")
            a(f"v_and_b32 v25, v26, v{z}")
            a(f"v_mul_f32 v24, v24, v{G+2*k}")
            a(f"v_mul_f32 v25, v25, v{G+2*k+1}")
            a(f"v_cvt_pk_bf16_f32 v{z}, v24, v25")
        a(f"buffer_store_dwordx4 {vr(ZL+8*u,4)}, v{vL16}, {sr(sW,4)}, s{sT0} offen {WT if FULL else ''}")
        a(f"buffer_store_dwordx4 {vr(ZL+8*u+4,4)}, v{vL16}, {sr(sW,4)}, s{sT0} offen offset:1024 {WT if FULL else ''}")
        a(f"s_add_u32 s{sT0}, s{sT0}, {OH_TG}")
    if FULL:
        a(f"s_lshl_b32 s{sT1}, s{sTG}, 8")
        a(f"s_lshl3_add_u32 s{sT1}, s{sFB}, s{sT1}")
        a(f"s_add_u32 s{sT1}, s{sT1}, {F_H}")
        put_flags(a, sT1, zNL, 166, 1, 8, ncp=2)
    a.label("LF_gend")
    a(f"v_mov_b32 v{vONE}, 64")
    a(f"ds_write_b32 v{vFW}, v{vONE}")
    if FULL:
        a(f"s_cmp_ge_u32 s{gw}, 2")
        a("s_cbranch_scc1 LF_fin")
        a("s_setprio 1")
        spin_lds(a, vFA, 64, 30, sleep=2)
        a(f"s_lshr_b32 s{sT0}, s{sJ}, 3")
        a(f"s_lshl2_add_u32 s{sT1}, s{sXC}, s{sT0}")
        a(f"s_lshl_b32 s{sT1}, s{sT1}, 9")
        a(f"s_sub_u32 s{sT0}, s{sG}, 1")
        a(f"s_cmp_lt_u32 s{sT0}, 2")
        a(f"s_cselect_b32 s{sT0}, {CPS}, 0")
        a(f"s_cselect_b32 s{sT3}, 6, 5")
        a(f"s_add_u32 s{sT1}, s{sT1}, s{sT0}")
        a(f"s_cmp_eq_u32 s{gw}, 0")
        a(f"s_mov_b32 s{sT0}, {F_H}")
        a(f"s_cselect_b32 s{sT0}, s{sT0}, {F_O}")
        a(f"s_cselect_b32 s{sT2}, 208, -1")
        a(f"s_cselect_b32 s{sT3}, s{sT3}, 8")
        a(f"s_add_u32 s{sT1}, s{sT1}, s{sT0}")
        a(f"v_and_b32 v24, 0xf8, v{vL8}")
        a(f"v_min_u32 v24, s{sT2}, v24")
        a(f"v_and_b32 v25, 0x100, v{vL8}")
        a(f"v_or_b32 v24, v24, v25")
        spin_lds(a, 31, f"s{sT3}", 30, sleep=4)
        a(f"s_mov_b32 s{sT2}, {F_W}")
        poll_tags(a, [(f"buffer_load_dwordx4 v[32:35], v{vL16}, {sr(sW,4)}, s{sT2} offen {PL}", (32, 34))], zNL, sT0, sleep=16)
        a(f"s_sleep {int(os.environ.get('HD', '1'))}")
        poll_tags(a, [(f"buffer_load_dwordx2 v[26:27], v24, {sr(sW,4)}, s{sT1} offen {PL}", 26)], zNL, sT0, sleep=8)
        a(f"v_mov_b32 v{vONE}, 65")
        a(f"ds_write_b32 v{vFW}, v{vONE}")
    a("s_branch LF_fin")

    a.label("LF_idle")
    a(f"v_mov_b32 v{vONE}, 32")
    a(f"ds_write_b32 v{vFW}, v{vONE}")
    srd(a, sSP, 4, 640*1280)
    srd(a, sBI, 6, 864*1280)
    sUN, sKS = sSPO, sZO
    a(f"s_lshl1_add_u32 s{sUN}, s{sRB}, s{sG}")
    a(f"s_sub_u32 s{sUN}, s{sUN}, 1")
    a(f"s_lshl2_add_u32 s{sUN}, s{sUN}, s{gw}")
    a(f"v_lshrrev_b32 v16, 3, v{vLANE}")
    a(f"v_mul_u32_u24 v16, 1280, v16")
    a(f"v_and_b32 v17, 7, v{vLANE}")
    a(f"v_lshl_add_u32 v{vS0}, v17, 4, v16")
    a(f"v_bfe_u32 v16, v{vLANE}, 2, 2")
    a(f"v_and_b32 v17, 3, v{vLANE}")
    a(f"v_lshlrev_b32 v17, 3, v17")
    a(f"v_lshl_add_u32 v16, v16, 7, v17")
    a(f"v_add_u32 v16, s{sSPD}, v16")
    a(f"v_lshrrev_b32 v17, 4, v{vLANE}")
    a(f"v_lshl_add_u32 v8, v17, 10, v16")
    a(f"v_add_u32 v9, 512, v8")
    a(f"v_lshrrev_b32 v18, 1, v17")
    a(f"v_lshl_add_u32 v10, v18, 11, v16")
    a(f"v_and_b32 v18, 1, v17")
    a(f"v_lshl_add_u32 v10, v18, 9, v10")
    a(f"v_add_u32 v11, 1024, v10")
    a.label("LF_iloop")
    a(f"s_mul_i32 s{sKS}, s{sUN}, 6554")
    a(f"s_lshr_b32 s{sKS}, s{sKS}, 16")
    a(f"s_mul_i32 s{sT0}, s{sKS}, 10")
    a(f"s_sub_u32 s{sCG}, s{sUN}, s{sT0}")
    a(f"s_lshl_b32 s{sT1}, s{sCG}, 7")
    a(f"s_cmp_ge_u32 s{sKS}, 20")
    a("s_cbranch_scc1 LF_idh")
    a(f"s_mul_i32 s{sT0}, s{sKS}, {32*1280}")
    a(f"s_add_u32 s{sT0}, s{sT0}, s{sT1}")
    for k in range(4):
        a(f"s_add_u32 m0, s{sSPD}, {1024*k}")
        a("s_nop 0")
        a(f"buffer_load_dwordx4 v{vS0}, {sr(sSP,4)}, s{sT0} offen lds")
        a(f"s_add_u32 s{sT0}, s{sT0}, {8*1280}")
    a("s_branch LF_itr")
    a.label("LF_idh")
    a(f"s_sub_u32 s{sT0}, s{sKS}, 20")
    a(f"s_mul_i32 s{sT0}, s{sT0}, {32*1280}")
    a(f"s_add_u32 s{sT0}, s{sT0}, s{sT1}")
    for k in range(4):
        a(f"s_add_u32 m0, s{sSPD}, {1024*k}")
        a("s_nop 0")
        a(f"buffer_load_dwordx4 v{vS0}, {sr(sBI,4)}, s{sT0} offen lds")
        a(f"s_add_u32 s{sT0}, s{sT0}, {8*1280}")
    a.label("LF_itr")
    a(f"s_cmp_ge_u32 s{sKS}, 20")
    a(f"s_cselect_b64 vcc, -1, 0")
    a(f"v_cndmask_b32 v12, v8, v10, vcc")
    a(f"v_cndmask_b32 v13, v9, v11, vcc")
    a("s_waitcnt vmcnt(0)")
    for q in range(4):
        a(f"ds_read_b64_tr_b16 {vr(32+4*q,2)}, v12 offset:{32*q}")
        a(f"ds_read_b64_tr_b16 {vr(34+4*q,2)}, v13 offset:{32*q}")
    for q in range(4):
        a(f"s_lshl2_add_u32 s{sT0}, s{sCG}, {q}")
        a(f"s_mul_i32 s{sT1}, s{sT0}, 13108")
        a(f"s_lshr_b32 s{sT1}, s{sT1}, 16")
        a(f"s_mul_i32 s{sT2}, s{sT1}, {47*5 - 5}")
        a(f"s_add_u32 s{sT0}, s{sT0}, s{sT2}")
        a(f"s_mul_i32 s{sT2}, s{sKS}, 5")
        a(f"s_add_u32 s{sT0}, s{sT0}, s{sT2}")
        a(f"s_lshl_b32 s{sT0}, s{sT0}, 10")
        a(f"s_add_u32 s{sT0}, s{sT0}, {WS_WT}")
        a(f"s_waitcnt lgkmcnt({6-2*q})")
        a(f"buffer_store_dwordx4 {vr(32+4*q,4)}, v{vL16}, {sr(sW,4)}, s{sT0} offen {WT}")
    a(f"s_add_u32 s{sUN}, s{sUN}, 128")
    a(f"s_cmp_lt_u32 s{sUN}, 470")
    a("s_cbranch_scc1 LF_iloop")
    a(f"s_and_b32 s{sUN}, s{sUN}, 127")
    a(f"s_lshl3_add_u32 s{sT1}, s{sUN}, {F_W}")
    put_flags(a, sT1, zNL, 166, ncp=1)
    a("s_branch LF_gend")

def gen_kf(a):
    KN = NAME + "_kernel" if FULL else "kf_kernel"
    kernel_header(a, KN)
    a("s_cmp_ge_u32 s2, 256")
    a("s_cbranch_scc1 LF_end")
    stamp(a, 0); stamp_rt(a, 8)
    a("s_load_dwordx8 s[4:11], s[0:1], 0")
    a("s_load_dwordx2 s[12:13], s[0:1], 48")
    a("s_load_dwordx4 s[16:19], s[0:1], 88")
    a(f"v_and_b32 v{vLANE}, 63, v0")
    a("v_lshrrev_b32 v16, 6, v0")
    a(f"s_and_b32 s{sXC}, s2, 7")
    a(f"v_readfirstlane_b32 s{sWAVE}, v16")
    a(f"s_lshr_b32 s{sJ}, s2, 3")
    a(f"s_lshr_b32 s{sRB}, s{sXC}, 1")
    a(f"s_lshr_b32 s{sT2}, s{sJ}, 3")
    a(f"s_lshl2_add_u32 s{sRB}, s{sRB}, s{sT2}")
    a(f"s_and_b32 s{sG}, s{sXC}, 1")
    a(f"s_and_b32 s{sT2}, s{sJ}, 7")
    a(f"s_lshl3_add_u32 s{sG}, s{sG}, s{sT2}")
    a(f"s_and_b32 s{sW4}, s{sWAVE}, 3")
    a(f"v_lshlrev_b32 v{vL16}, 4, v{vLANE}")
    a(f"v_lshlrev_b32 v{vL8}, 3, v{vLANE}")
    a(f"s_cmp_lt_u32 s{sWAVE}, 8")
    a("s_cbranch_scc1 LF_A")
    a("s_setprio 3")
    a(f"s_lshl_b32 s{sT0}, s{sW4}, 8")
    a(f"s_add_u32 s{sT0}, s{sT0}, {FL}")
    a(f"v_lshl_add_u32 v{vFW}, v{vLANE}, 2, s{sT0}")
    a(f"v_mov_b32 v{vONE}, 0")
    a(f"ds_write_b32 v{vFW}, v{vONE}")
    gen_loader(a)

    a.label("LF_A")
    code_prefetch(a, KN, 8, vD, 16, vLANE, sp=54)
    a(f"s_mov_b32 s{sHI}, 0")
    a(f"s_mov_b32 s{sHI+1}, -1")
    a(f"s_lshl_b32 s{sT0}, s{sWAVE}, 8")
    a(f"s_add_u32 s{sT0}, s{sT0}, {FL + 1024}")
    a(f"v_lshl_add_u32 v{vROW}, v{vLANE}, 2, s{sT0}")
    for r in list(range(ACC[0], vCS+8)):
        a(f"v_mov_b32 v{r}, 0")
    a(f"ds_write_b32 v{vROW}, v{vCS}")
    a(f"s_and_b32 s{sT0}, s{sWAVE}, 1")
    a(f"s_lshl_b32 s{sT0}, s{sT0}, 1")
    a(f"s_lshr_b32 s{sT1}, s{sWAVE}, 1")
    a(f"s_cmp_lt_u32 s{sWAVE}, 4")
    a(f"s_cselect_b32 s{sT0}, s{sT0}, s{sW4}")
    a(f"s_cselect_b32 s{sT1}, s{sT1}, 4")
    a(f"v_and_b32 v32, 31, v{vLANE}")
    a(f"v_lshrrev_b32 v33, 5, v{vLANE}")
    a(f"v_mov_b32 v34, s{sT0}")
    a(f"v_lshl_add_u32 v35, v34, 5, v32")
    a(f"v_lshl_add_u32 v36, v34, 1, v33")
    a(f"v_bfe_u32 v37, v32, 1, 3")
    a(f"v_xor_b32 v36, v36, v37")
    a(f"v_lshlrev_b32 v36, 4, v36")
    a(f"v_lshl_add_u32 v{vXA}, v35, 7, v36")
    for s in range(1, 4):
        a(f"v_xor_b32 v{vXA+s}, {32*s}, v{vXA}")
    a(f"v_lshlrev_b32 v35, 10, v34")
    a(f"v_lshl_add_u32 v35, v33, 9, v35")
    a(f"v_bfe_u32 v36, v{vLANE}, 2, 2")
    a(f"v_lshl_add_u32 v35, v36, 6, v35")
    a(f"v_bfe_u32 v36, v{vLANE}, 4, 1")
    a(f"v_lshl_add_u32 v35, v36, 5, v35")
    a(f"v_and_b32 v37, 3, v{vLANE}")
    a(f"v_lshl_add_u32 v35, v37, 3, v35")
    a(f"s_lshl_b32 s{sT0}, s{sT1}, 12")
    a(f"s_add_u32 s{sT0}, s{sT0}, 16384")
    a(f"v_add_u32 v{vWA}, s{sT0}, v35")
    for s in range(1, 4):
        a(f"v_xor_b32 v{vWA+s}, {1024*s}, v{vWA}")
    a(f"s_lshl_b32 s{sCSB}, s{sT1}, 9")
    a(f"s_add_u32 s{sCSB}, s{sCSB}, {CSR}")
    a(f"v_and_b32 v{vSEL+1}, 15, v{vLANE}")
    a(f"v_cmp_eq_u32 vcc, v36, v{vSEL+1}")
    a(f"v_mov_b32 v{vSEL+1}, 0x3f803f80")
    a(f"v_mov_b32 v{vGC}, {hx(GC1)}")
    a(f"v_cndmask_b32 v{vSEL}, 0, v{vSEL+1}, vcc")
    a(f"v_mov_b32 v{vGC+1}, {hx(GC0)}")
    for i in range(1, 4):
        a(f"v_mov_b32 v{vSEL+i}, v{vSEL}")
    a(f"s_mov_b32 s{sT1}, {SLOT}")
    a(f"s_mov_b32 s{sT2}, {-3*SLOT}")
    a("s_waitcnt lgkmcnt(0) vmcnt(0)")
    srd(a, sW, 18, WS_END)
    a(f"s_cmp_ge_u32 s{sWAVE}, 4")
    a("s_cbranch_scc1 LF_S")
    gen_P(a)
    gen_S(a)
    gen_att(a)
    if FULL: gen_p3(a)
    gen_gemm(a)
    a.label("LF_fin")
    if STAMP: a("s_waitcnt vmcnt(0)")
    stamp(a, 7)
    stamp_flush(a, 14, 0, sWAVE, 18, 12, 30)
    if RTD:
        wsel = int(os.environ.get("RTW", "4"))
        a(f"s_lshl_b32 s100, s2, 4")
        a(f"s_add_u32 s100, s100, s{sWAVE}")
        a(f"s_cmp_lg_u32 s100, {43*16 + wsel}")
        a("s_cbranch_scc1 LF_end")
        a("s_mov_b64 exec, 1")
        a("v_mov_b32 v30, 0")
        for i in range(12):
            a(f"s_sub_u32 s100, s{64+2*i}, s64")
            a(f"v_mov_b32 v31, s100")
            a(f"global_store_dword v30, v31, s[16:17] offset:{16+4*i}")
        i0, i1, mul = (int(v) for v in RTD.split(","))
        a(f"s_sub_u32 s94, s{64+2*i1}, s{64+2*i0}")
        a("s_min_u32 s94, s94, 20000")
        a(f"s_mul_i32 s94, s94, {mul}")
        a("s_memrealtime s[96:97]")
        a("s_waitcnt lgkmcnt(0)")
        a.label("LF_spin")
        a("s_memrealtime s[98:99]")
        a("s_waitcnt lgkmcnt(0)")
        a("s_sub_u32 s95, s98, s96")
        a("s_cmp_lt_u32 s95, s94")
        a("s_cbranch_scc1 LF_spin")
    a.label("LF_end")
    a("s_endpgm")
    return dict(name=KN, grid=256, block=768, lds=KF_LDS, vgpr=168, sgpr=102 if (STAMP or RTD) else 64, accum=168)
```

```python
import math, struct
from asmlib import *

NAME = "parallel_sum__grouped_kv_mqa__mixer_gmlp__prompt"
WS_Q  = 0
WS_Z1 = 0x280000
WS_Z2 = 0x5E0000
WS_KV = 0x960000
WS_OH = 0x9A0000
WS_WT = 0xF80000
WS_ST = 0x1160000
WS_FL = 0x1200000
CPS = 0x10000
F_Q  = WS_FL
F_O  = WS_FL + 0x4000
F_H  = WS_FL + 0x80000
F_W  = WS_FL + 0x84000
F_Z2 = WS_FL + 0x8000
F_KV = WS_FL + 0xC000
F_ST = WS_FL + 0xD000
WS_EP = WS_FL + 0xF000
WS_XS = WS_FL + 0xA0000
WS_ZR = 0x1300000
WS_END = WS_ZR + 0x380000
OH_TG = 96256
KVREC = 3584

def f2u(f):
    return struct.unpack("<I", struct.pack("<f", f))[0]
def hx(f):
    return "0x%08x" % f2u(f)

LOG2E = math.log2(math.e)
QSCALE = LOG2E / math.sqrt(20.0)
GC0 = -2.0 * math.sqrt(2.0 / math.pi) * LOG2E
GC1 = GC0 * 0.044715

def kernel_header(a, name):
    a.raw(f".globl {name}")
    a.raw(".p2align 8")
    a.raw(f".type {name},@function")
    a.label(name)

def kernel_desc(name, vgpr, sgpr, accum):
    return f""".p2align 6
.amdhsa_kernel {name}
  .amdhsa_next_free_vgpr {vgpr}
  .amdhsa_next_free_sgpr {sgpr}
  .amdhsa_accum_offset {accum}
  .amdhsa_group_segment_fixed_size 0
  .amdhsa_kernarg_size 104
  .amdhsa_user_sgpr_count 2
  .amdhsa_user_sgpr_kernarg_segment_ptr 1
  .amdhsa_system_sgpr_workgroup_id_x 1
.end_amdhsa_kernel
"""

def srd(a, d, base, size):
    a(f"s_mov_b32 s{d}, s{base}")
    a(f"s_mov_b32 s{d+1}, s{base+1}")
    a(f"s_mov_b32 s{d+2}, {size}")
    a(f"s_mov_b32 s{d+3}, 0x20000")

import os
STAMP = bool(os.environ.get("STAMP"))
LITE = os.environ.get("STAMP") == "lite"
WS_STAMP = 0x2000000
RTD = os.environ.get("RTD")
def stamp(a, i):
    if RTD:
        a(f"s_memrealtime s[{64+2*i}:{65+2*i}]")
        a("s_waitcnt lgkmcnt(0)")
    if STAMP and not LITE:
        a(f"s_memtime s[{64+2*i}:{65+2*i}]")
        a("s_waitcnt lgkmcnt(0)")
def stamp_flush(a, n, kidx, swave, ws_pair, nwaves, vt):
    if not STAMP: return
    a(f"s_memrealtime s[{64+2*n}:{65+2*n}]")
    a("s_waitcnt lgkmcnt(0)")
    a(f"s_mul_i32 s100, s2, {nwaves}")
    a(f"s_add_u32 s100, s100, s{swave}")
    a("s_lshl_b32 s100, s100, 6")
    a(f"s_add_u32 s100, s100, {WS_STAMP + kidx*0x100000}")
    a("s_mov_b64 exec, 1")
    a(f"v_mov_b32 v{vt}, s100")
    for i in range(n + 1):
        if LITE and i not in (8, n): continue
        a(f"v_mov_b32 v{vt+1}, s{64+2*i}")
        a(f"global_store_dword v{vt}, v{vt+1}, s[{ws_pair}:{ws_pair+1}] offset:{4*i}")

def stamp_rt(a, i):
    if STAMP and (not LITE or i == 8):
        a(f"s_memrealtime s[{64+2*i}:{65+2*i}]")
        a("s_waitcnt lgkmcnt(0)")

def code_prefetch(a, label, kb_per_wave, vtmp, vwave, vlane, sp=96, vdst=None):
    a(f"s_getpc_b64 s[{sp}:{sp+1}]")
    a.label(f"Lpc_{label}")
    a(f"s_sub_u32 s{sp}, s{sp}, Lpc_{label}-{label}")
    a(f"s_subb_u32 s{sp+1}, s{sp+1}, 0")
    a(f"v_lshlrev_b32 v{vtmp}, 7, v{vlane}")
    a(f"v_lshl_add_u32 v{vtmp}, v{vwave}, 13, v{vtmp}")
    a(f"v_min_u32 v{vtmp}, Lcode_end-{label}-4, v{vtmp}")
    a(f"global_load_dword v{vtmp+1 if vdst is None else vdst}, v{vtmp}, s[{sp}:{sp+1}]")

DIAG = bool(os.environ.get("DIAG"))
WS_DG = 0x3000000
def diag(a, idx, swave, wsel, ws_pair, vt, sbase=90, pre=False):
    if not DIAG: return
    L = f"Ldg{idx}"
    a(f"s_lshl_b32 s{sbase}, s2, 4")
    a(f"s_add_u32 s{sbase}, s{sbase}, s{swave}")
    a(f"s_cmp_lg_u32 s{sbase}, {wsel + 16*int(os.environ.get('DWG', '43'))}")
    a(f"s_cbranch_scc1 {L}")
    if not pre: a(f"s_memrealtime s[{sbase+2}:{sbase+3}]")
    a("s_waitcnt lgkmcnt(0)")
    a(f"v_mov_b32 v{vt}, {WS_DG + 4*idx}")
    a(f"v_mov_b32 v{vt+1}, s{sbase+2}")
    a(f"global_store_dword v{vt}, v{vt+1}, s[{ws_pair}:{ws_pair+1}]")
    a.label(L)
```
